```python
import torch

def _softmax(x, axis=-1):
    return torch.softmax(x, dim=axis)
def _gelu(x):
    return torch.nn.functional.gelu(x, approximate="tanh")
def _silu(x):
    return torch.nn.functional.silu(x)
def _sigmoid(x):
    return torch.sigmoid(x)
def _layernorm(x, axis=-1, eps=1e-5):
    m = x.mean(dim=axis, keepdim=True)
    v = x.var(dim=axis, keepdim=True, unbiased=False)
    return (x - m) / torch.sqrt(v + eps)
def _scatter_add(tgt, idx, src, axis=0):
    return tgt.clone().index_add_(axis, idx, src)
def _segment_sum(src, seg, n):
    out = torch.zeros((n,) + src.shape[1:], dtype=src.dtype)
    return out.index_add_(0, seg, src)
def _pad(x, pw):
    flat = tuple(v for pair in reversed(pw) for v in pair)
    return torch.nn.functional.pad(x, flat)

kernel_name = 'parallel_sum__softmax_full_mha__swiglu_ffn__prompt'

def setup_inputs():

    _w = (lambda a: (lambda t: t.to(torch.bfloat16) if t.is_floating_point() else t)(torch.as_tensor(a)))
    def _A_setup():
        B, S, D = 1, 2048, 448
        return {
            "x": _w((lambda *s: torch.randn(*s, dtype=torch.bfloat16) * 0.05)(B, S, D)),
            "wqkv": _w((lambda *s: torch.randn(*s, dtype=torch.bfloat16) * 0.2)(D, 3 * D)),
            "wo": _w((lambda *s: torch.randn(*s, dtype=torch.bfloat16) * 0.1)(D, D)),
        }
    _A_in = _A_setup()

    def _B_setup():
        B, S, D, F = 1, 2048, 448, 1792
        return {
            "x": _w((lambda *s: torch.randn(*s, dtype=torch.bfloat16) * 0.05)(B, S, D)),
            "w_gate": _w((lambda *s: torch.randn(*s, dtype=torch.bfloat16) * 0.1)(D, F)),
            "w_up": _w((lambda *s: torch.randn(*s, dtype=torch.bfloat16) * 0.1)(D, F)),
            "w_down": _w((lambda *s: torch.randn(*s, dtype=torch.bfloat16) * 0.1)(F, D)),
        }
    _B_in = _B_setup()

    return {
        "A_x": _A_in["x"],
        "A_wqkv": _A_in["wqkv"],
        "A_wo": _A_in["wo"],
        "B_x": _B_in["x"],
        "B_w_gate": _B_in["w_gate"],
        "B_w_up": _B_in["w_up"],
        "B_w_down": _B_in["w_down"],
    }

def reference(A_x, A_wqkv, A_wo, B_x, B_w_gate, B_w_up, B_w_down):
    def _A_ref(x, wqkv, wo):
        B, S, D = x.shape
        H = 16; Dh = D // H
        qkv = (lambda x, *d: x.permute(*d))((x @ wqkv).reshape(B, S, 3, H, Dh), 2, 0, 3, 1, 4)
        q, k, v = qkv[0], qkv[1], qkv[2]
        scale = Dh ** -0.5
        scores = torch.einsum("bhqd,bhkd->bhqk", q, k) * scale
        p = _softmax(scores, axis=-1)
        o = torch.einsum("bhqk,bhkd->bhqd", p, v)
        return (lambda x, *d: x.permute(*d))(o, 0, 2, 1, 3).reshape(B, S, D) @ wo

    def _B_ref(x, w_gate, w_up, w_down):
        g = _silu(x @ w_gate)
        u = x @ w_up
        return (g * u) @ w_down

    x = A_x
    xn = _layernorm(x, axis=-1)
    return x + _A_ref(xn, A_wqkv, A_wo) + _B_ref(xn, B_w_gate, B_w_up, B_w_down)
```

```python
import re

def v(n, cnt=1):
    return f"v{n}" if cnt == 1 else f"v[{n}:{n+cnt-1}]"
def a(n, cnt=1):
    return f"a{n}" if cnt == 1 else f"a[{n}:{n+cnt-1}]"
def s(n, cnt=1):
    return f"s{n}" if cnt == 1 else f"s[{n}:{n+cnt-1}]"

class Asm:
    def __init__(self, trace=False):
        self.lines = []
        self.trace = trace
        self.uid = 0
    def __call__(self, text):
        for ln in text.split("\n"):
            ln = ln.strip()
            if ln:
                self.lines.append(ln)
    def c(self, text):
        self.lines.append("; " + text)
    def label(self, name):
        self.lines.append(name + ":")
    def newlabel(self, base):
        self.uid += 1
        return f"{base}_{self.uid}"
    def nop(self, n):
        while n > 0:
            k = min(n, 16)
            self(f"s_nop {k-1}")
            n -= k
    def text(self):
        out = []
        for ln in self.lines:
            if ln.endswith(":") or ln.startswith(".") or ln.startswith(";"):
                out.append(ln)
            else:
                out.append("    " + ln)
        return "\n".join(out) + "\n"

REG_RE = re.compile(r"^(v|a|s)(\d+)$|^(v|a|s)\[(\d+):(\d+)\]$")
def regs_of(op):
    op = op.strip()
    neg = op.lstrip("-")
    if neg.startswith("abs(") or neg.startswith("|"):
        neg = neg.replace("abs(", "").replace(")", "").replace("|", "")
    op = neg
    m = REG_RE.match(op)
    if m:
        if m.group(1):
            return [(m.group(1), int(m.group(2)))]
        return [(m.group(3), i) for i in range(int(m.group(4)), int(m.group(5)) + 1)]
    if op == "vcc": return [("s", "vcc")]
    if op == "exec": return [("s", "exec")]
    if op == "m0": return [("s", "m0")]
    if op == "scc": return [("s", "scc")]
    return []

TRANS = ("v_exp_f32", "v_log_f32", "v_rcp_f32", "v_rsq_f32", "v_sqrt_f32", "v_sin_f32", "v_cos_f32")

class Ins:
    __slots__ = ("text", "mn", "ops", "dst", "src", "kind", "mods", "passes", "srcC", "srcAB", "idx")
    def __init__(self, text):
        self.text = text
        t = text.split(";")[0].strip()
        parts = t.split(None, 1)
        self.mn = parts[0]
        rest = parts[1] if len(parts) > 1 else ""
        ops = []; cur = ""; depth = 0
        for ch in rest:
            if ch == "[": depth += 1
            if ch == "]": depth -= 1
            if ch == "," and depth == 0:
                ops.append(cur.strip()); cur = ""
            else:
                cur += ch
        if cur.strip(): ops.append(cur.strip())
        mods = []
        if ops:
            last = ops[-1].split()
            ops[-1] = last[0] if last else ""
            mods = last[1:]
        self.ops = ops; self.mods = mods
        self.dst = []; self.src = []; self.srcC = []; self.srcAB = []; self.passes = 0
        mn = self.mn
        R = regs_of
        if mn.startswith("v_mfma"):
            self.kind = "mfma"
            self.dst = R(ops[0]); self.srcAB = R(ops[1]) + R(ops[2]); self.srcC = R(ops[3])
            self.src = self.srcAB + self.srcC
            self.passes = 8 if "32x32x16" in mn else (4 if "16x16x32" in mn else 16)
        elif mn.startswith("v_cmp"):
            self.kind = "valu"
            self.dst = R(ops[0]);
            for o in ops[1:]: self.src += R(o)
            if mn.startswith("v_cmpx"): self.dst += [("s", "exec")]
        elif mn.startswith("v_readfirstlane") or mn.startswith("v_readlane"):
            self.kind = "valu"; self.dst = R(ops[0])
            for o in ops[1:]: self.src += R(o)
        elif mn.startswith("v_permlane32_swap") or mn.startswith("v_permlane16_swap"):
            self.kind = "valu"; self.dst = R(ops[0]) + R(ops[1]); self.src = R(ops[0]) + R(ops[1])
        elif mn.startswith("v_"):
            self.kind = "trans" if any(mn.startswith(x) for x in TRANS) else "valu"
            self.dst = R(ops[0])
            srcs = ops[1:]
            if mn.startswith(("v_add_co", "v_sub_co", "v_addc_co", "v_subb_co", "v_subrev_co")):
                self.dst += R(ops[1]); srcs = ops[2:]
            for o in srcs: self.src += R(o)
            if mn.startswith(("v_fmac", "v_mac", "v_dot2c", "v_writelane")) or "dpp" in mn or any(m.startswith("row_") or m.startswith("quad_perm") for m in mods) or "UNUSED_PRESERVE" in " ".join(mods):
                self.src += R(ops[0])
            if mn.startswith("v_cndmask") and len(ops) == 3:
                self.src += [("s", "vcc")]
        elif mn.startswith("buffer_") or mn.startswith("global_"):
            self.kind = "vmem"
            islds = ("lds" in mods) or ("_lds_" in mn)
            if mn in ("buffer_inv", "buffer_wbl2"):
                pass
            elif "load" in mn and not islds:
                self.dst = R(ops[0])
                for o in ops[1:]: self.src += R(o)
            elif islds:
                for o in ops: self.src += R(o)
                self.src += [("s", "m0")]
            elif "atomic" in mn:
                for o in ops: self.src += R(o)
                if "sc0" in mods:
                    self.dst = R(ops[0]) if mn.startswith("buffer_") else R(ops[0])
            else:
                for o in ops: self.src += R(o)
        elif mn.startswith("ds_"):
            self.kind = "ds"
            if mn.startswith("ds_read") or mn.startswith("ds_bpermute") or mn.startswith("ds_swizzle") or mn.startswith("ds_permute"):
                self.dst = R(ops[0])
                for o in ops[1:]: self.src += R(o)
            else:
                for o in ops: self.src += R(o)
        elif mn.startswith("s_load") or mn.startswith("s_buffer_load") or mn.startswith("s_memtime") or mn.startswith("s_memrealtime"):
            self.kind = "smem"; self.dst = R(ops[0])
            for o in ops[1:]: self.src += R(o)
        elif mn.startswith("s_"):
            self.kind = "salu"
            if mn in ("s_waitcnt", "s_nop", "s_barrier", "s_endpgm", "s_setprio", "s_sleep", "s_branch") or mn.startswith("s_cbranch"):
                pass
            elif mn.startswith("s_cmp") or mn.startswith("s_bitcmp"):
                for o in ops: self.src += R(o)
            else:
                self.dst = R(ops[0])
                for o in ops[1:]: self.src += R(o)
                if "saveexec" in mn:
                    self.dst += [("s", "exec")]; self.src += [("s", "exec")]
        else:
            self.kind = "other"

def states(ins):
    if ins.mn == "s_nop":
        return int(ins.ops[0], 0) + 1
    return 1

def is_vreg(r): return r[0] in ("v", "a")

def check_trace(lines, name="", verbose=True):
    ins = []
    for ln in lines:
        t = ln.strip()
        if not t or t.startswith(";") or t.startswith(".") or t.endswith(":"):
            continue
        i = Ins(t); ins.append(i)
    errs = []
    pos = []; p = 0
    for i in ins:
        pos.append(p); p += states(i)
    def dist(i, j):
        return pos[j] - pos[i] - states(ins[i])
    lastw = {}
    lastC = {}
    laststore = {}
    vm = []
    lg = []
    pend = {}
    def err(j, msg):
        errs.append(f"[{name}] #{j} '{ins[j].text}': {msg}")
    for j, I in enumerate(ins):
        if I.mn == "s_waitcnt":
            txt = I.text
            m = re.search(r"vmcnt\((\d+)\)", txt)
            if m:
                n = int(m.group(1))
                while len(vm) > n:
                    k, d = vm.pop(0)
                    for r in d:
                        if pend.get(r) == ("vm", k): del pend[r]
            m = re.search(r"lgkmcnt\((\d+)\)", txt)
            if m:
                n = int(m.group(1))
                if any(ins[k].kind == "smem" for k, _ in lg) and n != 0:
                    pass
                else:
                    while len(lg) > n:
                        k, d = lg.pop(0)
                        for r in d:
                            if pend.get(r) == ("lg", k): del pend[r]
            continue
        for r in I.src + I.dst:
            if r in pend:
                err(j, f"uses {r} with outstanding load #{pend[r][1]} '{ins[pend[r][1]].text}'")
        for r in I.src:
            k = lastw.get(r)
            if k is None: continue
            P = ins[k]; d = dist(k, j)
            if P.kind in ("valu", "trans") and is_vreg(r):
                if I.kind == "mfma" and d < 2: err(j, f"VALU->MFMA {r} dist {d}<2 from #{k} '{P.text}'")
                if I.mn.startswith(("v_readlane", "v_readfirstlane")) and d < 1: err(j, f"VALU->readlane {r} dist {d}<1")
                if I.mn.startswith("v_permlane") and d < 2: err(j, f"VALU->permlane {r} dist {d}<2")
                if ("dpp" in I.mn or any(m.startswith(("row_", "quad_perm", "wave_")) for m in I.mods)) and r in regs_of(I.ops[1]) and d < 2:
                    err(j, f"VALU->DPP {r} dist {d}<2")
                if P.kind == "trans" and I.kind in ("valu", "mfma") and d < 1: err(j, f"trans->valu {r} dist {d}<1")
                if ("sdwa" in P.mn and "dst_sel:DWORD" not in " ".join(P.mods)) and d < 1: err(j, f"sdwa->valu {r}")
            if P.kind in ("valu", "trans") and not is_vreg(r):
                if I.kind in ("valu", "trans", "mfma") and d < 2: err(j, f"VALU sgpr write {r} -> VALU read dist {d}<2 from '{P.text}'")
                if I.kind == "vmem" and d < 5: err(j, f"VALU sgpr write {r} -> VMEM dist {d}<5")
                if I.kind == "salu" and d < 4 and r != ("s","exec"): err(j, f"VALU sgpr write {r} -> SALU read dist {d}<4 (padded by convention)")
            if P.kind == "salu" and r == ("s", "m0") and I.kind == "vmem" and d < 1: err(j, "m0 write -> DMA dist<1")
            if P.kind == "mfma":
                need_valu = {8: 12, 4: 8, 16: 20}[P.passes]
                need_part = {8: 10, 4: 6, 16: 18}[P.passes]
                if I.kind == "mfma":
                    if r in I.srcAB and d < need_valu: err(j, f"MFMA D->MFMA A/B {r} dist {d}<{need_valu}")
                    if r in I.srcC:
                        exact = (I.srcC == P.dst and I.passes == P.passes)
                        if not exact and d < need_part: err(j, f"MFMA D->MFMA C partial {r} dist {d}<{need_part}")
                elif I.kind in ("valu", "trans", "vmem", "ds") and d < need_valu:
                    err(j, f"MFMA D->{I.kind} read {r} dist {d}<{need_valu} from #{k} '{P.text}'")
        for r in I.dst:
            k = lastw.get(r)
            if k is not None and ins[k].kind == "mfma" and I.kind in ("valu", "trans", "vmem", "ds"):
                need = {8: 12, 4: 8, 16: 20}[ins[k].passes]
                if dist(k, j) < need: err(j, f"MFMA D->{I.kind} write(WAW) {r} dist {dist(k,j)}<{need}")
            k = lastC.get(r)
            if k is not None and I.kind in ("valu", "trans"):
                need = {8: 7, 4: 3, 16: 15}[ins[k].passes]
                if dist(k, j) < need: err(j, f"MFMA srcC WAR {r} dist {dist(k,j)}<{need}")
            k = laststore.get(r)
            if k is not None:
                need = 2 if I.kind in ("valu", "trans") else 1
                if dist(k, j) < need: err(j, f"wide store data WAR {r} dist {dist(k,j)}<{need}")
        for r in I.dst: lastw[r] = j
        if I.kind == "mfma":
            for r in I.srcC: lastC[r] = j
        if I.kind == "vmem" and ("store" in I.mn) and ("x4" in I.mn or "x3" in I.mn):
            data = regs_of(I.ops[0]) if I.mn.startswith("buffer_") else regs_of(I.ops[1])
            for r in data: laststore[r] = j
        if I.kind == "vmem" and I.mn not in ():
            vm.append((j, list(I.dst)))
            for r in I.dst: pend[r] = ("vm", j)
            if len(vm) > 63: err(j, "vmcnt overflow (>63 outstanding)")
        if I.kind in ("ds", "smem"):
            lg.append((j, list(I.dst)))
            if I.kind == "smem" and len(I.dst) >= 2: lg.append((j, []))
            for r in I.dst: pend[r] = ("lg", j)
            if len(lg) > 15 and verbose:
                pass
    return errs
```

```python
from asmlib import *
import math
QF = 0
KF = 2*1024*1024
VF = 4*1024*1024
HF = 6*1024*1024
HF_BYTES = 64*144*1024
WS_USED = HF + HF_BYTES
SZ_X = 2048*448*2
SZ_WQKV = 448*1344*2
SZ_WO = 448*448*2
SZ_WG = 448*1792*2
SZ_WD = 1792*448*2
SZ_OUT = 2048*448*2
SRD3 = 0x00020000
CSCALE = math.log2(math.e)/math.sqrt(28.0)
LOG2E = math.log2(math.e)
import struct
def f2u(x): return struct.unpack("<I", struct.pack("<f", x))[0]

def kernel_header(A, name, first=False):
    A(".text")
    A(f".globl {name}")
    A(".p2align 8")
    A(f".type {name},@function")
    A.label(name)

def kernel_desc(A, name, vgprs, sgprs=96, accum=None):
    if accum is None: accum = (vgprs+3)//4*4
    A('.section .rodata,"a"')
    A(".p2align 6")
    A(f".amdhsa_kernel {name}")
    A(f".amdhsa_next_free_vgpr {vgprs}")
    A(f".amdhsa_next_free_sgpr {sgprs}")
    A(f".amdhsa_accum_offset {accum}")
    A(".amdhsa_group_segment_fixed_size 0")
    A(".amdhsa_kernarg_size 80")
    A(".amdhsa_user_sgpr_count 2")
    A(".amdhsa_user_sgpr_kernarg_segment_ptr 1")
    A(".amdhsa_system_sgpr_workgroup_id_x 1")
    A(".amdhsa_float_denorm_mode_32 3")
    A(".amdhsa_float_denorm_mode_16_64 3")
    A(".end_amdhsa_kernel")

def make_srd(A, d, ptr, size):
    A(f"s_mov_b32 s{d}, s{ptr}")
    A(f"s_and_b32 s{d+1}, s{ptr+1}, 0xffff")
    A(f"s_mov_b32 s{d+2}, {size}")
    A(f"s_mov_b32 s{d+3}, 0x20000")

def interleave(A, mf, others):
    n = len(mf)
    k = len(others)
    idx = 0
    for i, m in enumerate(mf):
        A(m)
        tgt = (k*(i+1) + n - 1)//n if i < n-1 else k
        tgt = min(tgt, k)
        while idx < tgt:
            A(others[idx]); idx += 1
    while idx < k:
        A(others[idx]); idx += 1


STAMP_OFF = 32*1024*1024
class Stamps:
    def __init__(self, A, base, enabled):
        self.A=A; self.base=base; self.n=0; self.en=enabled
    def stamp(self, real=False):
        if not self.en: return
        r = self.base + 2*self.n; self.n += 1
        self.A(f"s_memrealtime s[{r}:{r+1}]" if real else f"s_memtime s[{r}:{r+1}]")
    def flush(self, sWG, sWave, srd_ptr_pair, vt0, vt1, stmp, srd):
        if not self.en: return
        A=self.A
        A("s_waitcnt lgkmcnt(0)")
        A(f"s_mov_b32 s{srd}, s{srd_ptr_pair}")
        A(f"s_and_b32 s{srd+1}, s{srd_ptr_pair+1}, 0xffff")
        A(f"s_mov_b32 s{srd+2}, 0x10000000")
        A(f"s_mov_b32 s{srd+3}, 0x20000")
        A(f"s_lshl_b32 s{stmp}, s{sWG}, 4")
        A(f"s_add_u32 s{stmp}, s{stmp}, s{sWave}")
        A(f"s_lshl_b32 s{stmp}, s{stmp}, 7")
        A(f"s_add_u32 s{stmp}, s{stmp}, {STAMP_OFF}")
        A(f"v_mov_b32 v{vt0}, 0")
        A(f"s_mov_b64 exec, 1")
        for i in range(self.n):
            r = self.base+2*i
            A(f"v_mov_b32 v{vt1}, s{r}")
            A(f"buffer_store_dword v{vt1}, v{vt0}, s[{srd}:{srd+3}], s{stmp} offen offset:{8*i}")
            A(f"v_mov_b32 v{vt1}, s{r+1}")
            A(f"buffer_store_dword v{vt1}, v{vt0}, s[{srd}:{srd+3}], s{stmp} offen offset:{8*i+4}")
        A(f"s_mov_b64 exec, -1")
```

```python
from common import *

STAGE = 28672
NSLOT = 5
STATS = NSLOT*STAGE
LDS_K1 = STATS + 128*4*2 + 320*4

def gen_k1(A, name="k1_proj_kernel", stamps=False, rot=False):
    kernel_header(A, name)
    ST = Stamps(A, 72, stamps)
    vLane = 1
    vL16 = 2
    vXa = [3, 4]
    vXb = [5, 6]
    vWa = [7, 8, 9]
    vD0, vD1, vD2 = 10, 11, 12
    vT = [13, 14, 15, 16, 17, 18]
    vSX, vSXX = 19, 20
    vCS = [21, 22, 23]
    F = 24
    ACC = 64
    NV = ACC + 96
    ET = 24
    def FX(b, tl): return F + 20*b + 4*tl
    def FW(b, t): return F + 20*b + 8 + 4*t
    def AC(t, tl): return ACC + 32*t + 16*tl
    sX, sUA, sUB, sQK, sWS = 4, 8, 12, 16, 20
    sRB, sG, sWV, sTH, sCH, sP = 24, 25, 26, 27, 28, 29
    sStr = 30
    sColA, sColB = 31, 32
    sKx, sKq, sKU = 33, 34, 35
    sSlotD = 36
    sDelta = 37
    sSlotR = 38
    sCnt, sTmp, sTmp2, sTmp3 = 39, 40, 41, 42
    sChunk = 43
    sIss = 44
    sLo = 46
    sHi = 48
    sE = 50
    sScale = 51
    sPad2, sPad3 = 52, 53
    sIsV = 54
    Ldone = name + "_done"
    A("s_cmp_ge_u32 s2, 256")
    A(f"s_cbranch_scc1 {Ldone}")
    ST.stamp(real=True); ST.stamp()
    A("s_load_dwordx2 s[56:57], s[0:1], 0")
    A("s_load_dwordx2 s[58:59], s[0:1], 8")
    A("s_load_dwordx2 s[60:61], s[0:1], 32")
    A("s_load_dwordx2 s[62:63], s[0:1], 40")
    A("s_load_dwordx2 s[64:65], s[0:1], 72")
    A(f"v_and_b32 v{vLane}, 63, v0")
    A(f"v_lshrrev_b32 v{vT[0]}, 6, v0")
    A(f"s_and_b32 s{sTmp}, s2, 7")
    A(f"v_readfirstlane_b32 s{sWV}, v{vT[0]}")
    A(f"s_lshr_b32 s{sTmp2}, s2, 3")
    A(f"s_and_b32 s{sRB}, s{sTmp}, 1")
    A(f"s_lshl_b32 s{sRB}, s{sRB}, 3")
    A(f"s_and_b32 s{sTmp3}, s{sTmp2}, 7")
    A(f"s_add_u32 s{sRB}, s{sRB}, s{sTmp3}")
    A(f"s_lshr_b32 s{sG}, s{sTmp}, 1")
    A(f"s_lshl_b32 s{sG}, s{sG}, 2")
    A(f"s_lshr_b32 s{sTmp3}, s{sTmp2}, 3")
    A(f"s_add_u32 s{sG}, s{sG}, s{sTmp3}")
    A(f"s_and_b32 s{sTH}, s{sWV}, 1")
    A(f"s_bfe_u32 s{sCH}, s{sWV}, 0x10001")
    A(f"s_and_b32 s{sP}, s{sWV}, 3")
    A(f"s_mov_b32 s{sLo}, -1"); A(f"s_mov_b32 s{sLo+1}, 0")
    A(f"s_mov_b32 s{sHi}, 0"); A(f"s_mov_b32 s{sHi+1}, -1")
    A(f"s_cmp_ge_u32 s{sG}, 14")
    A(f"s_cselect_b32 s{sIsV}, 1, 0")
    A(f"v_lshlrev_b32 v{vL16}, 4, v{vLane}")
    l = vLane
    t0, t1, t2, t3, t4, t5 = vT
    A(f"v_lshlrev_b32 v{t0}, 2, v0")
    A(f"v_add_u32 v{t0}, {STATS}, v{t0}")
    A(f"v_mov_b32 v{t1}, 0")
    A(f"ds_write_b32 v{t0}, v{t1}")
    A(f"ds_write_b32 v{t0}, v{t1} offset:256")
    A(f"s_cmp_eq_u32 s{sIsV}, 1")
    A(f"s_movk_i32 s{sStr}, 3584")
    A(f"s_cselect_b32 s{sStr}, 2688, s{sStr}")
    A(f"s_lshl_b32 s{sTmp}, s{sG}, 8")
    A(f"s_sub_u32 s{sTmp2}, s{sG}, 14")
    A(f"s_mul_i32 s{sTmp2}, s{sTmp2}, 448")
    A(f"s_add_u32 s{sTmp2}, s{sTmp2}, 1792")
    A(f"s_cmp_eq_u32 s{sIsV}, 1")
    A(f"s_cselect_b32 s{sColA}, s{sTmp2}, s{sTmp}")
    A(f"s_add_u32 s{sTmp2}, s{sTmp2}, 256")
    A(f"s_cmp_eq_u32 s{sIsV}, 1")
    A(f"s_cselect_b32 s{sColB}, s{sTmp2}, s{sTmp}")
    A(f"v_lshrrev_b32 v{t0}, 2, v{l}")
    A(f"v_bfe_u32 v{t1}, v{l}, 4, 2")
    A(f"v_and_b32 v{t2}, 3, v{l}")
    A(f"v_xor_b32 v{t1}, v{t1}, v{t2}")
    A(f"s_lshl_b32 s{sTmp}, s{sRB}, 7")
    A(f"s_lshl_b32 s{sTmp2}, s{sP}, 5")
    A(f"s_add_u32 s{sTmp}, s{sTmp}, s{sTmp2}")
    A(f"v_add_u32 v{t0}, s{sTmp}, v{t0}")
    A(f"v_mul_u32_u24 v{t0}, 896, v{t0}")
    A(f"v_lshl_add_u32 v{vD0}, v{t1}, 4, v{t0}")
    A(f"v_lshrrev_b32 v{t0}, 3, v{l}")
    A(f"v_and_b32 v{t1}, 7, v{l}")
    A(f"v_bfe_u32 v{t2}, v{l}, 4, 1")
    A(f"v_lshlrev_b32 v{t2}, 2, v{t2}")
    A(f"v_xor_b32 v{t1}, v{t1}, v{t2}")
    A(f"v_lshlrev_b32 v{t1}, 4, v{t1}")
    A(f"s_lshl_b32 s{sTmp}, s{sP}, 3")
    A(f"v_add_u32 v{t0}, s{sTmp}, v{t0}")
    A(f"v_mul_u32_u24 v{t2}, 2688, v{t0}")
    A(f"s_mul_i32 s{sTmp}, s{sG}, 112")
    A(f"v_add3_u32 v{vD1}, v{t2}, v{t1}, s{sTmp}")
    A(f"v_mul_lo_u32 v{t2}, v{t0}, s{sStr}")
    A(f"v_add_u32 v{vD2}, v{t2}, v{t1}")
    A(f"v_and_b32 v{t0}, 31, v{l}")
    A(f"v_lshrrev_b32 v{t1}, 5, v{l}")
    A(f"v_bfe_u32 v{t2}, v{l}, 2, 2")
    A(f"v_xor_b32 v{t1}, v{t1}, v{t2}")
    A(f"v_lshlrev_b32 v{t1}, 4, v{t1}")
    A(f"v_lshl_add_u32 v{t0}, v{t0}, 6, v{t1}")
    A(f"s_lshl_b32 s{sTmp}, s{sTH}, 12")
    A(f"s_lshl_b32 s{sTmp2}, s{sCH}, 11")
    A(f"s_add_u32 s{sTmp}, s{sTmp}, s{sTmp2}")
    A(f"v_add_u32 v{vXa[0]}, s{sTmp}, v{t0}")
    A(f"v_xor_b32 v{vXa[1]}, 32, v{vXa[0]}")
    A(f"v_xor_b32 v{vXb[0]}, 2048, v{vXa[0]}")
    A(f"v_xor_b32 v{vXb[1]}, 32, v{vXb[0]}")
    def wtile_addr(dst, sbc):
        A(f"v_bfe_u32 v{t0}, v{l}, 4, 1")
        A(f"v_and_b32 v{t1}, 3, v{l}")
        A(f"v_lshlrev_b32 v{t0}, 5, v{t0}")
        A(f"v_lshl_add_u32 v{t0}, v{t1}, 3, v{t0}")
        A(f"v_add_u32 v{t0}, s{sbc}, v{t0}")
        A(f"v_lshrrev_b32 v{t1}, 7, v{t0}")
        A(f"v_lshlrev_b32 v{t1}, 12, v{t1}")
        A(f"v_bfe_u32 v{t2}, v{t0}, 4, 3")
        A(f"v_bfe_u32 v{t3}, v{l}, 3, 1")
        A(f"v_lshlrev_b32 v{t3}, 2, v{t3}")
        A(f"v_xor_b32 v{t2}, v{t2}, v{t3}")
        A(f"v_lshl_add_u32 v{t1}, v{t2}, 4, v{t1}")
        A(f"v_and_b32 v{t0}, 15, v{t0}")
        A(f"v_add_u32 v{t1}, v{t1}, v{t0}")
        A(f"v_lshrrev_b32 v{t2}, 5, v{l}")
        A(f"v_lshl_add_u32 v{t1}, v{t2}, 10, v{t1}")
        A(f"v_bfe_u32 v{t2}, v{l}, 2, 2")
        A(f"v_lshl_add_u32 v{t1}, v{t2}, 7, v{t1}")
        A(f"v_add_u32 v{dst}, 8192, v{t1}")
    A(f"s_lshr_b32 s{sTmp3}, s{sWV}, 2")
    A(f"s_lshl_b32 s{sTmp}, s{sCH}, 1")
    A(f"s_add_u32 s{sTmp}, s{sTmp}, s{sTmp3}")
    A(f"s_lshl_b32 s{sTmp2}, s{sTmp}, 6")
    A(f"s_mul_i32 s{sTmp}, s{sTmp}, 112")
    A(f"s_cmp_eq_u32 s{sIsV}, 1")
    A(f"s_cselect_b32 s{sE}, s{sTmp}, s{sTmp2}")
    wtile_addr(vWa[0], sE)
    A(f"s_add_u32 s{sTmp}, s{sTmp}, 56")
    A(f"s_add_u32 s{sTmp2}, s{sTmp2}, 256")
    A(f"s_cmp_eq_u32 s{sIsV}, 1")
    A(f"s_cselect_b32 s{sE}, s{sTmp}, s{sTmp2}")
    wtile_addr(vWa[1], sE)
    A(f"s_mul_i32 s{sE}, s{sCH}, 56")
    A(f"s_add_u32 s{sE}, s{sE}, 512")
    wtile_addr(vWa[2], sE)
    A(f"v_mov_b32 v{vSX}, 0"); A(f"v_mov_b32 v{vSXX}, 0")
    for r in vCS: A(f"v_mov_b32 v{r}, 0")
    A("s_waitcnt lgkmcnt(0)")
    make_srd(A, sX, 56, SZ_X)
    make_srd(A, sQK, 58, SZ_WQKV)
    make_srd(A, sWS, 64, WS_USED)
    A(f"s_cmp_eq_u32 s{sIsV}, 1")
    A(f"s_cselect_b32 s{sUA}, s58, s60")
    A(f"s_cselect_b32 s{sUA+1}, s59, s61")
    A(f"s_mov_b32 s{sUA+2}, {SZ_WG}")
    A(f"s_cselect_b32 s{sUA+2}, {SZ_WQKV}, s{sUA+2}")
    A(f"s_cselect_b32 s{sUB}, s58, s62")
    A(f"s_cselect_b32 s{sUB+1}, s59, s63")
    A(f"s_mov_b32 s{sUB+2}, s{sUA+2}")
    A(f"s_and_b32 s{sUA+1}, s{sUA+1}, 0xffff")
    A(f"s_and_b32 s{sUB+1}, s{sUB+1}, 0xffff")
    A(f"s_mov_b32 s{sUA+3}, 0x20000")
    A(f"s_mov_b32 s{sUB+3}, 0x20000")
    if rot:
        A(f"s_lshr_b32 s{sTmp}, s2, 3")
        A(f"s_and_b32 s{sTmp2}, s{sTmp}, 7")
        A(f"s_lshr_b32 s{sTmp}, s{sTmp}, 3")
        A(f"s_mul_i32 s{sTmp}, s{sTmp}, 3")
        A(f"s_add_u32 s{sChunk}, s{sTmp}, s{sTmp2}")
        A(f"s_cmp_ge_u32 s{sChunk}, 14")
        A(f"s_cselect_b32 s{sTmp}, 14, 0")
        A(f"s_sub_u32 s{sChunk}, s{sChunk}, s{sTmp}")
    else:
        A(f"s_mov_b32 s{sChunk}, 0")
    A(f"s_mov_b32 s{sIss}, 0")
    A(f"s_mov_b32 s{sSlotD}, 0")

    def dma_issue(role):
        A(f"s_cmp_lt_u32 s{sIss}, 14")
        A(f"s_cselect_b32 s{sTmp}, s{sChunk}, 0x10000")
        A(f"s_cselect_b32 s{sTmp2}, s{sChunk}, 64")
        if role == 0:
            A(f"s_lshl_b32 s{sKx}, s{sTmp}, 6")
            A(f"s_mul_i32 s{sKq}, s{sTmp2}, {32*2688}")
            A(f"s_mul_i32 s{sKU}, s{sTmp2}, s{sStr}")
            A(f"s_lshl_b32 s{sKU}, s{sKU}, 5")
            A(f"s_add_u32 s{sKU}, s{sKU}, s{sColA}")
            A(f"s_lshl_b32 s{sTmp}, s{sP}, 11")
            A(f"s_add_u32 s{sTmp}, s{sTmp}, s{sSlotD}")
            A(f"s_mov_b32 m0, s{sTmp}")
            A(f"s_add_u32 s{sTmp2}, s{sKx}, {16*896}")
            A(f"buffer_load_dwordx4 v{vD0}, s[{sX}:{sX+3}], s{sKx} offen lds")
            A(f"s_add_u32 m0, s{sTmp}, 1024")
            A(f"s_lshl_b32 s{sTmp3}, s{sP}, 10")
            A(f"buffer_load_dwordx4 v{vD0}, s[{sX}:{sX+3}], s{sTmp2} offen lds")
            A(f"s_add_u32 s{sTmp3}, s{sTmp3}, s{sSlotD}")
            A(f"s_add_u32 m0, s{sTmp3}, {8192+16*1024}")
            A("s_nop 0")
            A(f"buffer_load_dwordx4 v{vD1}, s[{sQK}:{sQK+3}], s{sKq} offen lds")
            A(f"s_add_u32 m0, s{sTmp3}, 8192")
            A("s_nop 0")
            A(f"buffer_load_dwordx4 v{vD2}, s[{sUA}:{sUA+3}], s{sKU} offen lds")
        else:
            A(f"s_mul_i32 s{sKU}, s{sTmp2}, s{sStr}")
            A(f"s_lshl_b32 s{sKU}, s{sKU}, 5")
            A(f"s_lshl_b32 s{sTmp3}, s{sP}, 10")
            A(f"s_add_u32 s{sTmp3}, s{sTmp3}, s{sSlotD}")
            A(f"s_add_u32 s{sTmp}, s{sKU}, s{sColA}")
            A(f"s_add_u32 s{sTmp}, s{sTmp}, 128")
            A(f"s_add_u32 m0, s{sTmp3}, {8192+4*1024}")
            A(f"s_add_u32 s{sTmp2}, s{sKU}, s{sColB}")
            A(f"buffer_load_dwordx4 v{vD2}, s[{sUA}:{sUA+3}], s{sTmp} offen lds")
            A(f"s_add_u32 m0, s{sTmp3}, {8192+8*1024}")
            A(f"s_add_u32 s{sTmp}, s{sTmp2}, 128")
            A(f"buffer_load_dwordx4 v{vD2}, s[{sUB}:{sUB+3}], s{sTmp2} offen lds")
            A(f"s_add_u32 m0, s{sTmp3}, {8192+12*1024}")
            A("s_nop 0")
            A(f"buffer_load_dwordx4 v{vD2}, s[{sUB}:{sUB+3}], s{sTmp} offen lds")
        A(f"s_add_u32 s{sIss}, s{sIss}, 1")
        A(f"s_add_u32 s{sChunk}, s{sChunk}, 1")
        A(f"s_cmp_eq_u32 s{sChunk}, 14")
        A(f"s_cselect_b32 s{sChunk}, 0, s{sChunk}")
        A(f"s_add_u32 s{sSlotD}, s{sSlotD}, {STAGE}")
        A(f"s_cmp_eq_u32 s{sSlotD}, {NSLOT*STAGE}")
        A(f"s_cselect_b32 s{sSlotD}, 0, s{sSlotD}")

    def reads(role, b, ks):
        nt = 2 if role == 0 else 3
        L = []
        L.append(f"ds_read_b128 {v(FX(b,0),4)}, v{vXa[ks]}")
        for q in range(2):
            L.append(f"ds_read_b64_tr_b16 {v(FW(b,0)+2*q,2)}, v{vWa[0]} offset:{ks*2048+q*512}")
        L.append(f"ds_read_b128 {v(FX(b,1),4)}, v{vXb[ks]}")
        for t in range(1, nt):
            for q in range(2):
                L.append(f"ds_read_b64_tr_b16 {v(FW(b,t)+2*q,2)}, v{vWa[t]} offset:{ks*2048+q*512}")
        return L
    def mf(role, isV, b, first):
        nt = 2 if role == 0 else 3
        L = []
        for t in range(nt):
            for tl in range(2):
                acc = AC(t, tl)
                c = "0" if first else v(acc,16)
                if isV and t < 2:
                    L.append(f"v_mfma_f32_32x32x16_bf16 {v(acc,16)}, {v(FX(b,tl),4)}, {v(FW(b,t),4)}, {c}")
                else:
                    L.append(f"v_mfma_f32_32x32x16_bf16 {v(acc,16)}, {v(FW(b,t),4)}, {v(FX(b,tl),4)}, {c}")
        return L
    def stats_x(b):
        L = []
        for r in range(4):
            src = FX(b,0)+r
            L += [f"v_lshlrev_b32 v{t0}, 16, v{src}", f"v_and_b32 v{t1}, 0xffff0000, v{src}",
                  f"v_add_f32 v{vSX}, v{vSX}, v{t0}", f"v_fmac_f32 v{vSXX}, v{t0}, v{t0}",
                  f"v_add_f32 v{vSX}, v{vSX}, v{t1}", f"v_fmac_f32 v{vSXX}, v{t1}, v{t1}"]
        return L
    def stats_w(role, b):
        nt = 2 if role == 0 else 3
        L = []
        for t in range(nt):
            for r in range(4):
                src = FW(b,t)+r
                L += [f"v_lshlrev_b32 v{t2}, 16, v{src}", f"v_and_b32 v{t3}, 0xffff0000, v{src}",
                      f"v_add_f32 v{vCS[t]}, v{vCS[t]}, v{t2}", f"v_add_f32 v{vCS[t]}, v{vCS[t]}, v{t3}"]
        return L
    def advance_addrs(role):
        nt = 2 if role == 0 else 3
        L = [f"s_add_u32 s{sSlotR}, s{sSlotR}, {STAGE}",
             f"s_cmp_eq_u32 s{sSlotR}, {NSLOT*STAGE}",
             f"s_movk_i32 s{sDelta}, {STAGE}",
             f"s_cselect_b32 s{sDelta}, {(-(NSLOT-1)*STAGE) & 0xffffffff}, s{sDelta}",
             f"s_cselect_b32 s{sSlotR}, 0, s{sSlotR}"]
        for r in vXa + vXb + vWa[:nt]:
            L.append(f"v_add_u32 v{r}, s{sDelta}, v{r}")
        return L

    def stage(role, isV, par, first=False, last=False):
        nd = 4 if role == 0 else 3
        oth = reads(role, 1, 1)
        if role == 0: oth += stats_x(0)
        if par == 0: oth += stats_w(role, 0)
        A("s_waitcnt lgkmcnt(0)")
        interleave(A, mf(role, isV, 0, first), oth)
        if not last:
            A(f"s_waitcnt vmcnt({2*nd})")
            A("s_barrier")
            for x_ in advance_addrs(role): A(x_)
            dma_issue(role)
        A("s_waitcnt lgkmcnt(0)")
        oth = []
        if not last: oth += reads(role, 0, 0)
        if role == 0: oth += stats_x(1)
        if par == 1: oth += stats_w(role, 1)
        interleave(A, mf(role, isV, 1, False), oth)

    def epilogue(role, isV):
        nt = 2 if role == 0 else 3
        def xhalf_sum(r):
            A(f"v_mov_b32 v{t4}, v{r}")
            A("s_nop 1")
            A(f"v_permlane32_swap_b32 v{r}, v{t4}")
            A("s_nop 1")
            A(f"v_add_f32 v{r}, v{r}, v{t4}")
        if role == 0:
            xhalf_sum(vSX); xhalf_sum(vSXX)
        for t in range(nt): xhalf_sum(vCS[t])
        A(f"v_and_b32 v{t0}, 31, v{l}")
        A(f"v_lshlrev_b32 v{t0}, 2, v{t0}")
        A(f"s_lshl_b32 s{sTmp}, s{sTH}, 8")
        A(f"s_lshl_b32 s{sTmp2}, s{sCH}, 7")
        A(f"s_add_u32 s{sTmp}, s{sTmp}, s{sTmp2}")
        A(f"s_add_u32 s{sTmp}, s{sTmp}, {STATS}")
        A(f"v_add_u32 v{t1}, s{sTmp}, v{t0}")
        A(f"s_mul_i32 s{sTmp2}, s{sCH}, {5*128}")
        A(f"s_add_u32 s{sTmp2}, s{sTmp2}, {STATS + 1024 + role*2*128}")
        A(f"v_add_u32 v{t2}, s{sTmp2}, v{t0}")
        A(f"s_mov_b64 exec, s[{sLo}:{sLo+1}]")
        if role == 0:
            A(f"ds_write_b32 v{t1}, v{vSX}")
            A(f"ds_write_b32 v{t1}, v{vSXX} offset:512")
        for t in range(nt):
            A(f"ds_add_f32 v{t2}, v{vCS[t]} offset:{t*128}")
        A(f"s_mov_b64 exec, -1")
        A("s_waitcnt lgkmcnt(0)")
        A("s_barrier")
        MU = [ET+0, ET+1]; RS = [ET+2, ET+3]
        A(f"v_xor_b32 v{t3}, 128, v{t1}")
        for tl, ad in ((0, t1), (1, t3)):
            A(f"ds_read_b32 v{MU[tl]}, v{ad}")
            A(f"ds_read_b32 v{RS[tl]}, v{ad} offset:512")
        A("s_waitcnt lgkmcnt(0)")
        for tl in range(2):
            A(f"v_mul_f32 v{MU[tl]}, {f2u(1.0/448):#x}, v{MU[tl]}")
            A(f"v_mul_f32 v{RS[tl]}, {f2u(1.0/448):#x}, v{RS[tl]}")
            A(f"v_fma_f32 v{RS[tl]}, -v{MU[tl]}, v{MU[tl]}, v{RS[tl]}")
            A(f"v_add_f32 v{RS[tl]}, {f2u(1e-5):#x}, v{RS[tl]}")
            A(f"v_rsq_f32 v{RS[tl]}, v{RS[tl]}")
        A("s_nop 0")
        A(f"s_lshl_b32 s{sTmp}, s{sRB}, 2")
        A(f"s_lshl_b32 s{sTmp3}, s{sTH}, 1")
        A(f"s_add_u32 s{sTmp}, s{sTmp}, s{sTmp3}")
        A(f"s_add_u32 s{sKx}, s{sTmp}, s{sCH}")
        A(f"s_xor_b32 s{sTmp3}, s{sCH}, 1")
        A(f"s_add_u32 s{sKq}, s{sTmp}, s{sTmp3}")
        sTT = [sKx, sKq]
        A(f"v_lshrrev_b32 v{t0}, 5, v{l}")
        A(f"v_lshlrev_b32 v{t0}, 4, v{t0}")
        A(f"v_add_u32 v{t4}, s{sTmp2}, v{t0}")
        CSA = ET+4; CSB = ET+20
        TM = [ET+36, ET+37, ET+38, ET+39]
        def load_cs(dst, t):
            for a_ in range(4):
                A(f"ds_read_b128 {v(dst+4*a_,4)}, v{t4} offset:{t*128+a_*32}")
        def store_frags(src8, soff):
            A(f"buffer_store_dwordx4 {v(src8,4)}, v{vL16}, s[{sWS}:{sWS+3}], s{soff} offen")
            A(f"buffer_store_dwordx4 {v(src8+4,4)}, v{vL16}, s[{sWS}:{sWS+3}], s{soff} offen offset:1024")
        if not isV:
            load_cs(CSA, 0); load_cs(CSB, 1)
            A("s_waitcnt lgkmcnt(0)")
            A(f"s_lshl_b32 s{sTmp}, s{sG}, 2")
            A(f"s_lshl_b32 s{sTmp3}, s{sCH}, 1")
            A(f"s_add_u32 s{sTmp}, s{sTmp}, s{sTmp3}")
            A(f"s_add_u32 s{sTmp}, s{sTmp}, {role}")
            A(f"s_lshl_b32 s{sKU}, s{sTmp}, 1")
            for tl in range(2):
                G = AC(0, tl); U = AC(1, tl)
                nmu = t0; k1 = t1; ir2 = t2
                A(f"v_mul_f32 v{k1}, {f2u(-LOG2E):#x}, v{RS[tl]}")
                A(f"v_mul_f32 v{ir2}, v{RS[tl]}, v{RS[tl]}")
                A(f"v_rcp_f32 v{ir2}, v{ir2}")
                A(f"v_sub_f32 v{nmu}, 0, v{MU[tl]}")
                A("s_nop 0")
                for i0 in range(0, 16, 4):
                    for i in range(i0, i0+4):
                        A(f"v_fmac_f32 v{G+i}, v{nmu}, v{CSA+i}")
                        A(f"v_fmac_f32 v{U+i}, v{nmu}, v{CSB+i}")
                    for i in range(4):
                        A(f"v_mul_f32 v{TM[i]}, v{k1}, v{G+i0+i}")
                    for i in range(4):
                        A(f"v_exp_f32 v{TM[i]}, v{TM[i]}")
                    for i in range(4):
                        A(f"v_mul_f32 v{G+i0+i}, v{G+i0+i}, v{U+i0+i}")
                    for i in range(4):
                        A(f"v_fma_f32 v{TM[i]}, v{TM[i]}, v{ir2}, v{ir2}")
                    for i in range(4):
                        A(f"v_rcp_f32 v{TM[i]}, v{TM[i]}")
                    A("s_nop 0")
                    for i in range(4):
                        A(f"v_mul_f32 v{G+i0+i}, v{G+i0+i}, v{TM[i]}")
                for r in range(8):
                    A(f"v_cvt_pk_bf16_f32 v{U+r}, v{G+2*r}, v{G+2*r+1}")
                A(f"s_mul_i32 s{sTmp}, s{sTT[tl]}, 144")
                A(f"s_add_u32 s{sTmp}, s{sTmp}, s{sKU}")
                A(f"s_lshl_b32 s{sTmp}, s{sTmp}, 10")
                A(f"s_add_u32 s{sTmp}, s{sTmp}, {HF}")
                store_frags(U, sTmp)
        else:
            A(f"v_and_b32 v{t0}, 31, v{l}")
            A(f"v_lshlrev_b32 v{t0}, 2, v{t0}")
            A(f"v_add_u32 v{t5}, s{sTmp2}, v{t0}")
            A(f"ds_read_b32 v{TM[0]}, v{t5}")
            A(f"ds_read_b32 v{TM[1]}, v{t5} offset:128")
            A(f"v_lshrrev_b32 v{t0}, 5, v{l}")
            A(f"v_lshlrev_b32 v{t0}, 4, v{t0}")
            A(f"s_lshl_b32 s{sTmp}, s{sTH}, 8")
            A(f"s_lshl_b32 s{sTmp3}, s{sCH}, 7")
            A(f"s_add_u32 s{sTmp}, s{sTmp}, s{sTmp3}")
            A(f"s_add_u32 s{sTmp}, s{sTmp}, {STATS}")
            A(f"v_add_u32 v{t1}, s{sTmp}, v{t0}")
            A(f"s_sub_u32 s{sTmp}, s{sG}, 14")
            A(f"s_lshl_b32 s{sTmp}, s{sTmp}, 3")
            A(f"s_lshl_b32 s{sTmp3}, s{sCH}, 2")
            A(f"s_add_u32 s{sTmp}, s{sTmp}, s{sTmp3}")
            A(f"s_add_u32 s{sKU}, s{sTmp}, {32+2*role}")
            A(f"v_cmp_eq_u32 vcc, 28, v{l}" )
            A(f"v_cmp_eq_u32 s[66:67], 60, v{l}")
            A("s_nop 3")
            A("s_or_b64 s[66:67], s[66:67], vcc")
            for tl in range(2):
                ad = t1
                if tl == 1:
                    A(f"v_xor_b32 v{t1}, 128, v{t1}")
                for a_ in range(4):
                    A(f"ds_read_b128 {v(CSA+4*a_,4)}, v{ad} offset:{a_*32}")
                    A(f"ds_read_b128 {v(CSB+4*a_,4)}, v{ad} offset:{512+a_*32}")
                A("s_waitcnt lgkmcnt(0)")
                for i in range(16):
                    A(f"v_mul_f32 v{CSA+i}, {f2u(1.0/448):#x}, v{CSA+i}")
                    A(f"v_mul_f32 v{CSB+i}, {f2u(1.0/448):#x}, v{CSB+i}")
                    A(f"v_fma_f32 v{CSB+i}, -v{CSA+i}, v{CSA+i}, v{CSB+i}")
                    A(f"v_add_f32 v{CSB+i}, {f2u(1e-5):#x}, v{CSB+i}")
                    A(f"v_rsq_f32 v{CSB+i}, v{CSB+i}")
                A("s_nop 0")
                for t in range(2):
                    acc = AC(t, tl)
                    for i in range(16):
                        A(f"v_fma_f32 v{acc+i}, -v{CSA+i}, v{TM[t]}, v{acc+i}")
                        A(f"v_mul_f32 v{acc+i}, v{acc+i}, v{CSB+i}")
                    for r in range(8):
                        A(f"v_cvt_pk_bf16_f32 v{acc+r}, v{acc+2*r}, v{acc+2*r+1}")
                    A(f"s_mov_b64 exec, s[66:67]")
                    for r in range(8):
                        A(f"v_mov_b32 v{acc+r}, 0x3f803f80")
                    A(f"s_mov_b64 exec, -1")
                    A(f"s_add_u32 s{sTmp}, s{sKU}, {t}")
                    A(f"s_lshl_b32 s{sTmp}, s{sTmp}, 6")
                    A(f"s_add_u32 s{sTmp}, s{sTmp}, s{sTT[tl]}")
                    A(f"s_lshl_b32 s{sTmp}, s{sTmp}, 11")
                    store_frags(acc, sTmp)
        if role == 1:
            load_cs(CSA, 2)
            A(f"s_lshl_b32 s{sE}, s{sG}, 1")
            A(f"s_add_u32 s{sE}, s{sE}, s{sCH}")
            A(f"s_cmp_lt_u32 s{sE}, 16")
            A(f"s_cselect_b32 s{sScale}, {f2u(CSCALE):#x}, 1.0")
            A(f"s_cselect_b32 s{sPad2}, 0, 0x3f803f80")
            A(f"s_cselect_b32 s{sPad3}, 0, 0x00003f80")
            A("s_waitcnt lgkmcnt(0)")
            for tl in range(2):
                C = AC(2, tl)
                A(f"v_sub_f32 v{t0}, 0, v{MU[tl]}")
                A(f"v_mul_f32 v{t1}, s{sScale}, v{RS[tl]}")
                for i in range(16):
                    A(f"v_fmac_f32 v{C+i}, v{t0}, v{CSA+i}")
                for i in range(16):
                    A(f"v_mul_f32 v{C+i}, v{C+i}, v{t1}")
                for r in range(8):
                    A(f"v_cvt_pk_bf16_f32 v{C+r}, v{C+2*r}, v{C+2*r+1}")
                A(f"s_mov_b64 exec, s[{sHi}:{sHi+1}]")
                A(f"v_mov_b32 v{C+6}, s{sPad2}")
                A(f"v_mov_b32 v{C+7}, s{sPad3}")
                A(f"s_mov_b64 exec, -1")
                A(f"s_lshl_b32 s{sTmp}, s{sE}, 6")
                A(f"s_add_u32 s{sTmp}, s{sTmp}, s{sTT[tl]}")
                A(f"s_lshl_b32 s{sTmp}, s{sTmp}, 11")
                store_frags(C, sTmp)

    def variant(role, isV, par):
        nd = 4 if role == 0 else 3
        tag = f"{name}_r{role}v{int(isV)}p{par}"
        for i in range(4): dma_issue(role)
        A(f"s_waitcnt vmcnt({3*nd}) lgkmcnt(0)")
        A("s_barrier")
        ST2 = ST
        A(f"s_mov_b32 s{sSlotR}, 0")
        for x_ in reads(role, 0, 0): A(x_)
        stage(role, isV, par, first=True)
        if A.trace:
            for it in range(12): stage(role, isV, par)
        else:
            A(f"s_mov_b32 s{sCnt}, 12")
            A.label(tag + "_loop")
            stage(role, isV, par)
            A(f"s_sub_u32 s{sCnt}, s{sCnt}, 1")
            A(f"s_cmp_lg_u32 s{sCnt}, 0")
            A(f"s_cbranch_scc1 {tag}_loop")
        stage(role, isV, par, last=True)
        A("s_waitcnt vmcnt(0)")
        A.nop(12)
        epilogue(role, isV)
        A("s_endpgm")

    if A.trace:
        return dict(variant=variant, NV=NV)
    labs = {}
    for role in (0, 1):
        for isV in (0, 1):
            for par in (0, 1):
                labs[(role, isV, par)] = f"{name}_V{role}{isV}{par}"
    A(f"s_lshr_b32 s{sTmp}, s{sWV}, 2")
    A(f"s_lshl_b32 s{sTmp}, s{sTmp}, 2")
    A(f"s_lshl_b32 s{sTmp2}, s{sIsV}, 1")
    A(f"s_add_u32 s{sTmp}, s{sTmp}, s{sTmp2}")
    A(f"s_add_u32 s{sTmp}, s{sTmp}, s{sTH}")
    keys = sorted(labs.keys())
    for k in keys[1:]:
        A(f"s_cmp_eq_u32 s{sTmp}, {k[0]*4+k[1]*2+k[2]}")
        A(f"s_cbranch_scc1 {labs[k]}")
    for k in keys:
        A.label(labs[k])
        variant(k[0], bool(k[1]), k[2])
    A.label(Ldone)
    A("s_endpgm")
    return NV
```

```python
from common import *

def gen_k2(A, name="k2_attn_kernel", force_fallback=False, stamps=False):
    kernel_header(A, name)
    ST = Stamps(A, 48, stamps)
    vL16 = 1
    vT = [2,3,4,5,6,7]
    Q = 8
    O = 40
    S = 104
    P = 136
    E = 144
    KV = 148
    NV = KV + 64
    vM = NV
    NVG = NV + 4
    def Qf(qt, s): return Q + 8*qt + 4*s
    def Of(qt): return O + 16*qt
    def Sf(b): return S + 16*b
    def Kf(b, s): return KV + 16*b + 4*s
    def Vf(b, s): return KV + 16*b + 8 + 4*s
    sK, sV = 8, 12
    sW = 4
    sH, sQB, sWV = 16, 17, 18
    sKoff, sVoff, sQoff = 19, 20, 21
    sCnt, sExact, sTmp, sTmp2 = 22, 23, 24, 25
    sK0 = 26
    sKbeg, sVbeg = 27, 28
    sHiMask = 30
    sSave = 32
    Ldone = name + "_done"
    A(f"s_cmp_ge_u32 s2, 256")
    A(f"s_cbranch_scc1 {Ldone}")
    ST.stamp(real=True); ST.stamp()
    A("s_load_dwordx2 s[34:35], s[0:1], 72")
    A(f"v_and_b32 v{vL16}, 63, v0")
    A(f"v_lshrrev_b32 v2, 6, v0")
    A(f"v_lshlrev_b32 v{vL16}, 4, v{vL16}")
    A(f"v_readfirstlane_b32 s{sWV}, v2")
    A(f"s_and_b32 s{sTmp}, s2, 7")
    A(f"s_lshr_b32 s{sTmp2}, s2, 3")
    A(f"s_and_b32 s{sH}, s{sTmp2}, 1")
    A(f"s_lshl_b32 s{sTmp}, s{sTmp}, 1")
    A(f"s_add_u32 s{sH}, s{sH}, s{sTmp}")
    A(f"s_lshr_b32 s{sQB}, s{sTmp2}, 1")
    A(f"s_mov_b32 s{sHiMask}, 0")
    A(f"s_mov_b32 s{sHiMask+1}, -1")
    A(f"s_lshl_b32 s{sTmp}, s{sH}, 6")
    A(f"s_lshl_b32 s{sTmp2}, s{sQB}, 2")
    A(f"s_add_u32 s{sQoff}, s{sTmp}, s{sTmp2}")
    A(f"s_lshl_b32 s{sQoff}, s{sQoff}, 11")
    A(f"s_lshl_b32 s{sK0}, s{sTmp}, 11")
    A(f"s_add_u32 s{sK0}, s{sK0}, {KF}")
    A(f"s_lshl_b32 s{sTmp2}, s{sWV}, 15")
    A(f"s_add_u32 s{sKbeg}, s{sK0}, s{sTmp2}")
    A(f"s_add_u32 s{sVbeg}, s{sKbeg}, {VF-KF}")
    A("s_waitcnt lgkmcnt(0)")
    make_srd(A, sW, 34, WS_USED)
    make_srd(A, sK, 34, 0)
    make_srd(A, sV, 34, 0)
    A(f"s_add_u32 s{sK+2}, s{sKbeg}, {16*2048}")
    A(f"s_add_u32 s{sV+2}, s{sVbeg}, {16*2048}")
    A(f"s_mov_b32 s{sExact}, 0")
    for qt in range(4):
        for s_ in range(2):
            off = qt*2048 + s_*1024
            if off < 4096:
                A(f"buffer_load_dwordx4 {v(Qf(qt,s_),4)}, v{vL16}, s[{sW}:{sW+3}], s{sQoff} offen offset:{off}")
            else:
                if off == 4096: A(f"s_add_u32 s{sTmp}, s{sQoff}, 4096")
                A(f"buffer_load_dwordx4 {v(Qf(qt,s_),4)}, v{vL16}, s[{sW}:{sW+3}], s{sTmp} offen offset:{off-4096}")
    A(f"buffer_load_dwordx4 {v(Kf(3,0),4)}, v{vL16}, s[{sW}:{sW+3}], s{sK0} offen")
    A(f"buffer_load_dwordx4 {v(Kf(3,1),4)}, v{vL16}, s[{sW}:{sW+3}], s{sK0} offen offset:1024")

    def load_tile(b):
        A(f"buffer_load_dwordx4 {v(Kf(b,0),4)}, v{vL16}, s[{sK}:{sK+3}], s{sKoff} offen")
        A(f"buffer_load_dwordx4 {v(Kf(b,1),4)}, v{vL16}, s[{sK}:{sK+3}], s{sKoff} offen offset:1024")
        A(f"buffer_load_dwordx4 {v(Vf(b,0),4)}, v{vL16}, s[{sV}:{sV+3}], s{sVoff} offen")
        A(f"buffer_load_dwordx4 {v(Vf(b,1),4)}, v{vL16}, s[{sV}:{sV+3}], s{sVoff} offen offset:1024")
        A(f"s_add_u32 s{sKoff}, s{sKoff}, 2048")
        A(f"s_add_u32 s{sVoff}, s{sVoff}, 2048")

    def set_m(qt, vm):
        t0, t1, t2, t3 = vT[0], vT[1], vT[2], vT[3]
        A(f"v_sub_f32 v{t0}, 0, v{vm}")
        A(f"v_cvt_pk_bf16_f32 v{t1}, v{t0}, v{t0}")
        A(f"v_and_b32 v{t2}, 0xffff0000, v{t1}")
        A(f"v_sub_f32 v{t0}, v{t0}, v{t2}")
        A(f"v_cvt_pk_bf16_f32 v{t2}, v{t0}, v{t0}")
        A(f"v_and_b32 v{t3}, 0xffff0000, v{t2}")
        A(f"v_sub_f32 v{t0}, v{t0}, v{t3}")
        A(f"v_cvt_pk_bf16_f32 v{t0}, v{t0}, 0")
        A(f"v_and_b32 v{t1}, 0xffff, v{t1}")
        A(f"v_or_b32 v{t1}, v{t1}, v{t3}")
        A(f"s_mov_b64 exec, s[{sHiMask}:{sHiMask+1}]")
        A(f"v_mov_b32 v{Qf(qt,1)+2}, v{t1}")
        A(f"v_mov_b32 v{Qf(qt,1)+3}, v{t0}")
        A(f"s_mov_b64 exec, -1")

    def qk(dst, b, qt):
        return [f"v_mfma_f32_32x32x16_bf16 {v(dst,16)}, {v(Kf(b,0),4)}, {v(Qf(qt,0),4)}, 0",
                f"v_mfma_f32_32x32x16_bf16 {v(dst,16)}, {v(Kf(b,1),4)}, {v(Qf(qt,1),4)}, {v(dst,16)}"]
    def maxtree(src, dst):
        A(f"v_max3_f32 v{dst}, v{src}, v{src+1}, v{src+2}")
        for i in range(3, 15, 2):
            A(f"v_max3_f32 v{dst}, v{dst}, v{src+i}, v{src+i+1}")
        A(f"v_max_f32 v{dst}, v{dst}, v{src+15}")
    def crosshalf_max(r):
        t = vT[4]
        A(f"v_mov_b32 v{t}, v{r}")
        A("s_nop 1")
        A(f"v_permlane32_swap_b32 v{r}, v{t}")
        A("s_nop 1")
        A(f"v_max_f32 v{r}, v{r}, v{t}")

    A("s_waitcnt vmcnt(0)")
    ST.stamp()
    for qt in range(4):
        for m in qk(Sf(qt & 1), 3, qt): A(m)
        if qt >= 1:
            pq = qt-1
            A.nop(10)
            maxtree(Sf(pq & 1), vM+pq)
    A.nop(12)
    maxtree(Sf(1), vM+3)
    for qt in range(4):
        crosshalf_max(vM+qt)
        A(f"v_add_f32 v{vM+qt}, 0x42c00000, v{vM+qt}")
        set_m(qt, vM+qt)

    Lmain = name + "_main"
    A.label(Lmain)
    A(f"s_mov_b32 s{sKoff}, s{sKbeg}")
    A(f"s_mov_b32 s{sVoff}, s{sVbeg}")
    for b in range(3): load_tile(b)
    for r in range(64): A(f"v_mov_b32 v{O+r}, 0")
    for r in range(4):
        A(f"v_mov_b32 v{Vf(3,1)+r}, 0")
        A(f"v_mov_b32 v{P+4+r}, 0")
    A("s_waitcnt vmcnt(8)")
    for m in qk(Sf(0), 0, 0): A(m)
    A.nop(12)
    ST.stamp()

    def slot(j, qt, issue_next_loads):
        b = j & 3
        sb = qt & 1
        cur = Sf(sb); nxt = Sf(sb ^ 1)
        if qt < 3: nb, nq = b, qt+1
        else: nb, nq = (j+1) & 3, 0
        if qt > 0: pb, pq = b, qt-1
        else: pb, pq = (j-1) & 3, 3
        m = qk(nxt, nb, nq)
        def grp(g):
            for i in range(4): A(f"v_exp_f32 v{E+i}, v{cur+4*g+i}")
            A(f"v_cvt_pk_bf16_f32 v{P+2*g}, v{E}, v{E+1}")
            A(f"v_cvt_pk_bf16_f32 v{P+2*g+1}, v{E+2}, v{E+3}")
        if qt == 3:
            A("s_waitcnt vmcnt(8)")
        A(m[0])
        grp(0)
        A(f"v_mfma_f32_32x32x16_bf16 {v(Of(pq),16)}, {v(Vf(pb,1),4)}, {v(P+4,4)}, {v(Of(pq),16)}")
        if qt == 0:
            load_tile((j+3) & 3)
        grp(1)
        A(m[1])
        grp(2)
        A(f"v_mfma_f32_32x32x16_bf16 {v(Of(qt),16)}, {v(Vf(b,0),4)}, {v(P,4)}, {v(Of(qt),16)}")
        grp(3)

    def body():
        for j in range(4):
            for qt in range(4):
                slot(j, qt, True)
    if A.trace:
        for it in range(4): body()
    else:
        A(f"s_mov_b32 s{sCnt}, 4")
        Ll = name + "_loop"
        A.label(Ll)
        body()
        A(f"s_sub_u32 s{sCnt}, s{sCnt}, 1")
        A(f"s_cmp_lg_u32 s{sCnt}, 0")
        A(f"s_cbranch_scc1 {Ll}")
    ST.stamp()
    A("s_nop 1")
    A(f"v_mfma_f32_32x32x16_bf16 {v(Of(3),16)}, {v(Vf(3,1),4)}, {v(P+4,4)}, {v(Of(3),16)}")
    A("s_waitcnt vmcnt(0)")
    A.nop(12)
    t0, t1 = vT[0], vT[1]
    A(f"v_max3_f32 v{t0}, v{Of(0)+12}, v{Of(1)+12}, v{Of(2)+12}")
    A(f"v_max_f32 v{t0}, v{t0}, v{Of(3)+12}")
    A(f"v_add_f32 v{t1}, v{Of(0)+12}, v{Of(1)+12}")
    A(f"v_add_f32 v{t1}, v{t1}, v{Of(2)+12}")
    A(f"v_add_f32 v{t1}, v{t1}, v{Of(3)+12}")
    A(f"s_mov_b32 s{sTmp}, {f2u(2.0**60):#x}")
    A(f"v_cmp_nlt_f32 vcc, v{t1}, s{sTmp}" .replace(f"v{t1}, s{sTmp}", f"s{sTmp}, v{t1}").replace("v_cmp_nlt_f32", "v_cmp_ngt_f32"))
    A(f"s_nop 3")
    A(f"s_and_b64 s[{sSave}:{sSave+1}], vcc, s[{sHiMask}:{sHiMask+1}]")
    A(f"v_min3_f32 v{t0}, v{Of(0)+12}, v{Of(1)+12}, v{Of(2)+12}")
    A(f"v_min_f32 v{t0}, v{t0}, v{Of(3)+12}")
    A(f"s_mov_b32 s{sTmp}, {f2u(2.0**-110):#x}")
    A(f"v_cmp_gt_f32 vcc, s{sTmp}, v{t0}")
    A(f"s_nop 3")
    A(f"s_and_b64 vcc, vcc, s[{sHiMask}:{sHiMask+1}]")
    A(f"s_cmp_eq_u32 s{sWV}, 0")
    A(f"s_cselect_b64 vcc, vcc, 0")
    A(f"s_or_b64 s[{sSave}:{sSave+1}], s[{sSave}:{sSave+1}], vcc")
    A(f"s_cmp_lg_u64 s[{sSave}:{sSave+1}], 0")
    A(f"s_cselect_b32 s{sTmp}, 1, 0")
    if force_fallback:
        A(f"s_mov_b32 s{sTmp}, 1")
    A(f"s_cmp_eq_u32 s{sExact}, 1")
    A(f"s_cselect_b32 s{sTmp}, 0, s{sTmp}")
    A(f"s_lshl_b32 s{sTmp2}, s{sWV}, 14")
    A(f"v_add_u32 v{t0}, s{sTmp2}, v{vL16}")
    for qt in range(4):
        for a_ in range(4):
            A(f"ds_write_b128 v{t0}, {v(Of(qt)+4*a_,4)} offset:{(qt*4+a_)*1024}")
    A(f"s_lshl_b32 s{sTmp2}, s{sWV}, 2")
    A(f"s_add_u32 s{sTmp2}, s{sTmp2}, 65536")
    A(f"v_mov_b32 v{t0}, s{sTmp2}")
    A(f"v_mov_b32 v{t1}, s{sTmp}")
    A(f"ds_write_b32 v{t0}, v{t1}")
    A("s_waitcnt lgkmcnt(0)")
    A("s_barrier")
    A(f"v_mov_b32 v{t0}, 0x10000")
    A(f"ds_read_b128 {v(E,4)}, v{t0}")
    A(f"s_lshl_b32 s{sTmp2}, s{sWV}, 12")
    A(f"v_add_u32 v{t1}, s{sTmp2}, v{vL16}")
    for ww in range(4):
        for a_ in range(4):
            A(f"ds_read_b128 {v(O+16*ww+4*a_,4)}, v{t1} offset:{ww*16384+a_*1024}")
    A("s_waitcnt lgkmcnt(0)")
    A(f"v_or_b32 v{E}, v{E}, v{E+1}")
    A(f"v_or_b32 v{E+2}, v{E+2}, v{E+3}")
    A(f"v_or_b32 v{E}, v{E}, v{E+2}")
    A("s_nop 1")
    A(f"v_readfirstlane_b32 s{sTmp}, v{E}")
    A("s_nop 3")
    A(f"s_cmp_lg_u32 s{sTmp}, 0")
    Lfb = name + "_fallback"
    A(f"s_cbranch_scc1 {Lfb}")
    for r in range(16):
        A(f"v_add_f32 v{O+r}, v{O+r}, v{O+16+r}")
        A(f"v_add_f32 v{O+32+r}, v{O+32+r}, v{O+48+r}")
    for r in range(16):
        A(f"v_add_f32 v{O+r}, v{O+r}, v{O+32+r}")
    A(f"v_mov_b32 v{t0}, v{O+12}")
    A(f"v_mov_b32 v{t1}, v{O+12}")
    A("s_nop 1")
    A(f"v_permlane32_swap_b32 v{t0}, v{t1}")
    A("s_nop 1")
    A(f"v_rcp_f32 v{t1}, v{t1}")
    A("s_nop 0")
    for r in range(16):
        A(f"v_mul_f32 v{O+r}, v{O+r}, v{t1}")
    for r in range(8):
        A(f"v_cvt_pk_bf16_f32 v{P+r}, v{O+2*r}, v{O+2*r+1}")
    A(f"s_mov_b64 exec, s[{sHiMask}:{sHiMask+1}]")
    A(f"v_mov_b32 v{P+6}, 0")
    A(f"v_mov_b32 v{P+7}, 0")
    A(f"s_mov_b64 exec, -1")
    A(f"s_lshl_b32 s{sTmp}, s{sQB}, 2")
    A(f"s_add_u32 s{sTmp}, s{sTmp}, s{sWV}")
    A(f"s_mul_i32 s{sTmp}, s{sTmp}, 144")
    A(f"s_lshl_b32 s{sTmp2}, s{sH}, 1")
    A(f"s_add_u32 s{sTmp}, s{sTmp}, s{sTmp2}")
    A(f"s_add_u32 s{sTmp}, s{sTmp}, 112")
    A(f"s_lshl_b32 s{sTmp}, s{sTmp}, 10")
    A(f"s_add_u32 s{sTmp}, s{sTmp}, {HF}")
    A(f"buffer_store_dwordx4 {v(P,4)}, v{vL16}, s[{sW}:{sW+3}], s{sTmp} offen")
    A(f"buffer_store_dwordx4 {v(P+4,4)}, v{vL16}, s[{sW}:{sW+3}], s{sTmp} offen offset:1024")
    if stamps:
        A("s_waitcnt vmcnt(0)")
        ST.stamp(); ST.stamp(real=True)
        ST.flush(2, sWV, 34, t0, t1, sTmp, 36)
    A("s_endpgm")
    A.label(Lfb)
    A("s_barrier")
    A(f"s_mov_b32 s{sExact}, 1")
    A(f"s_mov_b64 exec, s[{sHiMask}:{sHiMask+1}]")
    for qt in range(4):
        A(f"v_mov_b32 v{Qf(qt,1)+2}, 0")
        A(f"v_mov_b32 v{Qf(qt,1)+3}, 0")
    A(f"s_mov_b64 exec, -1")
    for qt in range(4): A(f"v_mov_b32 v{vM+qt}, 0xff800000")
    A(f"s_mov_b32 s{sKoff}, s{sKbeg}")
    A(f"s_mov_b32 s{sCnt}, 16")
    Lf = name + "_fbloop"
    if not A.trace: A.label(Lf)
    A(f"buffer_load_dwordx4 {v(Kf(0,0),4)}, v{vL16}, s[{sK}:{sK+3}], s{sKoff} offen")
    A(f"buffer_load_dwordx4 {v(Kf(0,1),4)}, v{vL16}, s[{sK}:{sK+3}], s{sKoff} offen offset:1024")
    A(f"s_add_u32 s{sKoff}, s{sKoff}, 2048")
    A("s_waitcnt vmcnt(0)")
    for qt in range(4):
        for m in qk(Sf(0), 0, qt): A(m)
        A.nop(12)
        maxtree(Sf(0), vT[5])
        A(f"v_max_f32 v{vM+qt}, v{vM+qt}, v{vT[5]}")
        A.nop(8)
    if not A.trace:
        A(f"s_sub_u32 s{sCnt}, s{sCnt}, 1")
        A(f"s_cmp_lg_u32 s{sCnt}, 0")
        A(f"s_cbranch_scc1 {Lf}")
    for qt in range(4): crosshalf_max(vM+qt)
    A(f"s_lshl_b32 s{sTmp2}, s{sWV}, 10")
    A(f"v_lshrrev_b32 v{t0}, 2, v{vL16}")
    A(f"v_add_u32 v{t1}, s{sTmp2}, v{t0}")
    for qt in range(4):
        A(f"ds_write_b32 v{t1}, v{vM+qt} offset:{qt*256}")
    A("s_waitcnt lgkmcnt(0)")
    A("s_barrier")
    for qt in range(4):
        for ww in range(4):
            A(f"ds_read_b32 v{E+ww}, v{t0} offset:{ww*1024+qt*256}")
        A("s_waitcnt lgkmcnt(0)")
        A(f"v_max3_f32 v{vM+qt}, v{E}, v{E+1}, v{E+2}")
        A(f"v_max_f32 v{vM+qt}, v{vM+qt}, v{E+3}")
    A("s_barrier")
    for qt in range(4): set_m(qt, vM+qt)
    if not A.trace: A(f"s_branch {Lmain}")
    A.label(Ldone)
    A("s_endpgm")
    return NVG
```

```python
from common import *

def gen_k3(A, name="k3_out_kernel", stamps=False, NW=8, c_begin=0, c_end=72):
    kernel_header(A, name)
    ST = Stamps(A, 64, stamps)
    NCH = (c_end - c_begin)//NW
    NS = 4
    vL16 = 1
    vWd = 2
    vA0, vA1 = 3, 4
    vX = 5
    vT = [6,7,8,9]
    XR = 10
    ACC = 16
    AF = 80
    BF = 112
    NV = BF + 16*NS
    sWS, sWD, sWO, sX, sOUT = 4, 8, 12, 16, 20
    sCUR = 24
    sTB, sCB, sWV, sC, sB, sWoff, sTmp, sTmp2, sLds = 28, 29, 30, 31, 32, 33, 34, 35, 36
    Ldone = name + "_done"
    A("s_cmp_ge_u32 s2, 224")
    A(f"s_cbranch_scc1 {Ldone}")
    ST.stamp(real=True); ST.stamp()
    A("s_load_dwordx2 s[40:41], s[0:1], 72")
    A("s_load_dwordx2 s[42:43], s[0:1], 48")
    A("s_load_dwordx2 s[44:45], s[0:1], 16")
    A("s_load_dwordx2 s[46:47], s[0:1], 0")
    A("s_load_dwordx2 s[48:49], s[0:1], 56")
    A(f"v_and_b32 v{vL16}, 63, v0")
    A(f"v_lshrrev_b32 v{vT[0]}, 6, v0")
    A(f"s_and_b32 s{sTmp}, s2, 7")
    A(f"v_readfirstlane_b32 s{sWV}, v{vT[0]}")
    A(f"s_lshr_b32 s{sTmp2}, s2, 3")
    A(f"s_and_b32 s{sTB}, s{sTmp2}, 3")
    A(f"s_lshl_b32 s{sTmp}, s{sTmp}, 2")
    A(f"s_add_u32 s{sTB}, s{sTB}, s{sTmp}")
    A(f"s_lshr_b32 s{sCB}, s{sTmp2}, 2")
    l = vL16
    t0, t1, t2, t3 = vT
    A(f"v_lshrrev_b32 v{t0}, 3, v{l}")
    A(f"v_and_b32 v{t1}, 7, v{l}")
    A(f"v_lshrrev_b32 v{t2}, 4, v{l}")
    A(f"v_and_b32 v{t2}, 1, v{t2}")
    A(f"v_lshlrev_b32 v{t2}, 2, v{t2}")
    A(f"v_xor_b32 v{t1}, v{t1}, v{t2}")
    A(f"v_lshlrev_b32 v{t1}, 4, v{t1}")
    A(f"v_mul_u32_u24 v{t0}, 896, v{t0}")
    A(f"s_lshl_b32 s{sTmp}, s{sCB}, 7")
    A(f"v_add3_u32 v{vWd}, v{t0}, v{t1}, s{sTmp}")
    A(f"v_lshrrev_b32 v{t0}, 5, v{l}")
    A(f"v_bfe_u32 v{t1}, v{l}, 2, 2")
    A(f"v_lshl_add_u32 v{t0}, v{t0}, 2, v{t1}")
    A(f"v_lshlrev_b32 v{t0}, 7, v{t0}")
    A(f"v_bfe_u32 v{t2}, v{l}, 4, 1")
    A(f"v_bfe_u32 v{t3}, v{l}, 1, 1")
    A(f"v_lshl_add_u32 v{t2}, v{t2}, 1, v{t3}")
    A(f"v_bfe_u32 v{t3}, v{l}, 3, 1")
    A(f"v_lshlrev_b32 v{t3}, 2, v{t3}")
    A(f"v_xor_b32 v{t2}, v{t2}, v{t3}")
    A(f"v_lshl_add_u32 v{t0}, v{t2}, 4, v{t0}")
    A(f"v_and_b32 v{t3}, 1, v{l}")
    A(f"v_lshl_add_u32 v{t0}, v{t3}, 3, v{t0}")
    A(f"s_mul_i32 s{sLds}, s{sWV}, {NS*4096}")
    A(f"v_add_u32 v{vA0}, s{sLds}, v{t0}")
    A(f"v_xor_b32 v{vA1}, 64, v{vA0}")
    A(f"s_lshr_b32 s{sTmp}, s{sWV}, 1")
    A(f"s_and_b32 s{sTmp2}, s{sTmp}, 1")
    A(f"s_lshl_b32 s{sTmp2}, s{sTmp2}, 5")
    A(f"s_lshl_b32 s{sC}, s{sTB}, 6")
    A(f"s_add_u32 s{sTmp2}, s{sTmp2}, s{sC}")
    A(f"v_and_b32 v{t0}, 31, v{l}")
    A(f"v_add_u32 v{t0}, s{sTmp2}, v{t0}")
    A(f"v_mul_u32_u24 v{t0}, 896, v{t0}")
    A(f"s_lshr_b32 s{sTmp}, s{sTmp}, 1")
    A(f"s_lshl_b32 s{sTmp}, s{sTmp}, 6")
    A(f"s_and_b32 s{sTmp2}, s{sWV}, 1")
    A(f"s_lshl_b32 s{sTmp2}, s{sTmp2}, 5")
    A(f"s_add_u32 s{sTmp}, s{sTmp}, s{sTmp2}")
    A(f"s_lshl_b32 s{sTmp2}, s{sCB}, 7")
    A(f"s_add_u32 s{sTmp}, s{sTmp}, s{sTmp2}")
    A(f"v_lshrrev_b32 v{t1}, 5, v{l}")
    A(f"v_lshlrev_b32 v{t1}, 4, v{t1}")
    A(f"v_add3_u32 v{vX}, v{t0}, v{t1}, s{sTmp}")
    A(f"v_lshlrev_b32 v{vL16}, 4, v{l}")
    A("s_waitcnt lgkmcnt(0)")
    make_srd(A, sWS, 40, WS_USED)
    make_srd(A, sWD, 42, SZ_WD)
    make_srd(A, sWO, 44, SZ_WO)
    make_srd(A, sX, 46, SZ_X)
    make_srd(A, sOUT, 48, SZ_OUT)
    A(f"s_mov_b32 s{sCUR+3}, 0x20000")
    A(f"buffer_load_dwordx4 {v(XR,4)}, v{vX}, s[{sX}:{sX+3}], 0 offen")
    A(f"s_mul_i32 s{sC}, s{sWV}, {NCH}")
    if c_begin: A(f"s_add_u32 s{sC}, s{sC}, {c_begin}")
    A(f"s_mul_i32 s{sB}, s{sTB}, {2*144}")
    A(f"s_lshl_b32 s{sTmp}, s{sC}, 1")
    A(f"s_add_u32 s{sB}, s{sB}, s{sTmp}")
    A(f"s_lshl_b32 s{sB}, s{sB}, 10")
    A(f"s_add_u32 s{sB}, s{sB}, {HF}")

    def issue(i):
        sl = i % NS
        A(f"s_cmp_lt_u32 s{sC}, 56")
        A(f"s_cselect_b32 s{sCUR}, s{sWD}, s{sWO}")
        A(f"s_cselect_b32 s{sCUR+1}, s{sWD+1}, s{sWO+1}")
        A(f"s_cselect_b32 s{sCUR+2}, s{sWD+2}, s{sWO+2}")
        A(f"s_mul_i32 s{sTmp}, s{sC}, {32*896}")
        A(f"s_sub_u32 s{sTmp2}, s{sC}, 56")
        A(f"s_mul_i32 s{sTmp2}, s{sTmp2}, {28*896}")
        A(f"s_cmp_lt_u32 s{sC}, 56")
        A(f"s_cselect_b32 s{sWoff}, s{sTmp}, s{sTmp2}")
        for rg in range(4):
            A(f"s_add_u32 m0, s{sLds}, {sl*4096 + rg*1024}")
            if rg: A(f"s_add_u32 s{sWoff}, s{sWoff}, {8*896}")
            else: A("s_nop 0")
            A(f"buffer_load_dwordx4 v{vWd}, s[{sCUR}:{sCUR+3}], s{sWoff} offen lds")
        A(f"s_add_u32 s{sTmp}, s{sB}, {144*1024}")
        for kb in range(2):
            A(f"buffer_load_dwordx4 {v(BF+16*sl+4*kb,4)}, v{vL16}, s[{sWS}:{sWS+3}], s{sB} offen offset:{kb*1024}")
        for kb in range(2):
            A(f"buffer_load_dwordx4 {v(BF+16*sl+8+4*kb,4)}, v{vL16}, s[{sWS}:{sWS+3}], s{sTmp} offen offset:{kb*1024}")
        A(f"s_add_u32 s{sC}, s{sC}, 1")
        A(f"s_add_u32 s{sB}, s{sB}, 2048")
    def trreads(i):
        sl = i % NS; b = i & 1
        for ct in range(2):
            for kb in range(2):
                for q in range(2):
                    A(f"ds_read_b64_tr_b16 {v(AF+16*b+8*ct+4*kb+2*q,2)}, v{vA0 if ct==0 else vA1} offset:{sl*4096+(2*kb+q)*1024}")
    def mfmas(i):
        sl = i % NS; b = i & 1
        for kb in range(2):
            for ct in range(2):
                for tl in range(2):
                    acc = ACC + 16*(ct*2+tl)
                    c = "0" if (i == 0 and kb == 0) else v(acc,16)
                    A(f"v_mfma_f32_32x32x16_bf16 {v(acc,16)}, {v(AF+16*b+8*ct+4*kb,4)}, {v(BF+16*sl+8*tl+4*kb,4)}, {c}")
    PER = 8
    pre = min(3, NCH)
    for i in range(pre): issue(i)
    A(f"s_waitcnt vmcnt({PER*(pre-1)})")
    ST.stamp()
    trreads(0)
    for i in range(NCH):
        if i+1 < NCH:
            issued = min(NCH, i+3)
            A(f"s_waitcnt vmcnt({PER*(issued-(i+2))})")
            trreads(i+1)
            if i+3 < NCH: issue(i+3)
            A(f"s_waitcnt lgkmcnt(8)")
        else:
            A(f"s_waitcnt lgkmcnt(0)")
        mfmas(i)
    ST.stamp()
    A.nop(12)
    assert NS*4096 >= 16384
    A(f"v_add_u32 v{t0}, s{sLds}, v{vL16}")
    for tile in range(4):
        for a_ in range(4):
            A(f"ds_write_b128 v{t0}, {v(ACC+16*tile+4*a_,4)} offset:{(tile*4+a_)*1024}")
    A("s_waitcnt lgkmcnt(0)")
    A("s_barrier")
    assert NW == 8
    A(f"s_lshl_b32 s{sTmp}, s{sWV}, 11")
    A(f"v_add_u32 v{t0}, s{sTmp}, v{vL16}")
    R = AF
    half = v
    A(f"v_add_u32 v{t1}, 0x10000, v{t0}")
    for ww in range(8):
        for a_ in range(2):
            base = t0 if ww < 4 else t1
            A(f"ds_read_b128 {v(R+8*ww+4*a_,4)}, v{base} offset:{(ww&3)*16384+a_*1024}")
    A("s_waitcnt lgkmcnt(0)")
    for st in (4, 2, 1):
        for ww in range(st):
            for r in range(8):
                A(f"v_add_f32 v{R+8*ww+r}, v{R+8*ww+r}, v{R+8*(ww+st)+r}")
    A("s_nop 1")
    for r in range(4):
        A(f"v_permlane32_swap_b32 v{R+r}, v{R+4+r}")
    for r in range(4):
        A(f"v_lshlrev_b32 v{t0}, 16, v{XR+r}")
        A(f"v_and_b32 v{t1}, 0xffff0000, v{XR+r}")
        A(f"v_add_f32 v{R+2*r}, v{R+2*r}, v{t0}")
        A(f"v_add_f32 v{R+2*r+1}, v{R+2*r+1}, v{t1}")
    for r in range(4):
        A(f"v_cvt_pk_bf16_f32 v{XR+r}, v{R+2*r}, v{R+2*r+1}")
    A(f"buffer_store_dwordx4 {v(XR,4)}, v{vX}, s[{sOUT}:{sOUT+3}], 0 offen")
    if stamps:
        A("s_waitcnt vmcnt(0)")
        ST.stamp(); ST.stamp(real=True)
        ST.flush(2, sWV, 40, t0, t1, sTmp, 52)
    A.label(Ldone)
    A("s_endpgm")
    return NV
```

```python
import sys
from common import *
import k1, k2, k3
def build(path, stamps=False, rot=False, extra_hdr=True):
    A = Asm()
    hdr = open("parallel_sum__softmax_full_mha__swiglu_ffn__prompt.s.ref").read().split("\n")
    for ln in hdr:
        if ln.startswith(";") and "@launch" not in ln and "Override launch" not in ln and "grid=ceil" not in ln:
            A.lines.append(ln)
        if not ln.startswith(";"): break
    A.lines.append(f"; @launch kernel=k1_proj_kernel grid=(256,1,1) block=(512,1,1) lds={k1.LDS_K1}")
    A.lines.append("; @launch kernel=k2_attn_kernel grid=(256,1,1) block=(256,1,1) lds=66560")
    A.lines.append("; @launch kernel=k3_out_kernel grid=(224,1,1) block=(512,1,1) lds=131072")
    A('.amdgcn_target "amdgcn-amd-amdhsa--gfx950"')
    n1 = k1.gen_k1(A, stamps=stamps, rot=rot)
    n2 = k2.gen_k2(A, stamps=stamps)
    n3 = k3.gen_k3(A, stamps=stamps)
    kernel_desc(A, "k1_proj_kernel", n1, 96)
    kernel_desc(A, "k2_attn_kernel", n2, 96)
    kernel_desc(A, "k3_out_kernel", n3, 96)
    open(path, "w").write(A.text())
if __name__ == "__main__":
    build("parallel_sum__softmax_full_mha__swiglu_ffn__prompt.s")
    build("all_rot.s", rot=True)
```

```python
from asmlib import *
import math
QF = 0
KF = 2*1024*1024
VF = 4*1024*1024
HF = 6*1024*1024
HF_BYTES = 64*144*1024
WS_USED = HF + HF_BYTES
SZ_X = 2048*448*2
SZ_WQKV = 448*1344*2
SZ_WO = 448*448*2
SZ_WG = 448*1792*2
SZ_WD = 1792*448*2
SZ_OUT = 2048*448*2
SRD3 = 0x00020000
CSCALE = math.log2(math.e)/math.sqrt(28.0)
LOG2E = math.log2(math.e)
import struct
def f2u(x): return struct.unpack("<I", struct.pack("<f", x))[0]

def kernel_header(A, name, first=False):
    A(".text")
    A(f".globl {name}")
    A(".p2align 8")
    A(f".type {name},@function")
    A.label(name)

def kernel_desc(A, name, vgprs, sgprs=96, accum=None):
    if accum is None: accum = (vgprs+3)//4*4
    A('.section .rodata,"a"')
    A(".p2align 6")
    A(f".amdhsa_kernel {name}")
    A(f".amdhsa_next_free_vgpr {vgprs}")
    A(f".amdhsa_next_free_sgpr {sgprs}")
    A(f".amdhsa_accum_offset {accum}")
    A(".amdhsa_group_segment_fixed_size 0")
    A(".amdhsa_kernarg_size 80")
    A(".amdhsa_user_sgpr_count 2")
    A(".amdhsa_user_sgpr_kernarg_segment_ptr 1")
    A(".amdhsa_system_sgpr_workgroup_id_x 1")
    A(".amdhsa_float_denorm_mode_32 3")
    A(".amdhsa_float_denorm_mode_16_64 3")
    A(".end_amdhsa_kernel")

def make_srd(A, d, ptr, size):
    A(f"s_mov_b32 s{d}, s{ptr}")
    A(f"s_and_b32 s{d+1}, s{ptr+1}, 0xffff")
    A(f"s_mov_b32 s{d+2}, {size}")
    A(f"s_mov_b32 s{d+3}, 0x20000")

def interleave(A, mf, others):
    n = len(mf)
    k = len(others)
    idx = 0
    for i, m in enumerate(mf):
        A(m)
        tgt = (k*(i+1) + n - 1)//n if i < n-1 else k
        tgt = min(tgt, k)
        while idx < tgt:
            A(others[idx]); idx += 1
    while idx < k:
        A(others[idx]); idx += 1


STAMP_OFF = 32*1024*1024
ALLREAL = False
class Stamps:
    def __init__(self, A, base, enabled, region=0):
        self.A=A; self.base=base; self.n=0; self.en=enabled; self.region=region
    def stamp(self, real=False):
        if not self.en: return
        r = self.base + 2*self.n; self.n += 1
        self.A(f"s_memrealtime s[{r}:{r+1}]" if (real or globals()['ALLREAL']) else f"s_memtime s[{r}:{r+1}]")
    def flush(self, sWG, sWave, srd_ptr_pair, vt0, vt1, stmp, srd):
        if not self.en: return
        A=self.A
        A("s_waitcnt lgkmcnt(0)")
        A(f"s_mov_b32 s{srd}, s{srd_ptr_pair}")
        A(f"s_and_b32 s{srd+1}, s{srd_ptr_pair+1}, 0xffff")
        A(f"s_mov_b32 s{srd+2}, 0x10000000")
        A(f"s_mov_b32 s{srd+3}, 0x20000")
        A(f"s_lshl_b32 s{stmp}, s{sWG}, 4")
        A(f"s_add_u32 s{stmp}, s{stmp}, s{sWave}")
        A(f"s_lshl_b32 s{stmp}, s{stmp}, 7")
        A(f"s_add_u32 s{stmp}, s{stmp}, {STAMP_OFF + self.region*1024*1024}")
        A(f"v_mov_b32 v{vt0}, 0")
        A(f"s_mov_b64 exec, 1")
        for i in range(self.n):
            r = self.base+2*i
            A(f"v_mov_b32 v{vt1}, s{r}")
            A(f"buffer_store_dword v{vt1}, v{vt0}, s[{srd}:{srd+3}], s{stmp} offen offset:{8*i}")
            A(f"v_mov_b32 v{vt1}, s{r+1}")
            A(f"buffer_store_dword v{vt1}, v{vt0}, s[{srd}:{srd+3}], s{stmp} offen offset:{8*i+4}")
        A(f"s_mov_b64 exec, -1")
```

```python
from common import *
XB = 14*8192
WSLOT = 10*1024
STATS = XB + 4*WSLOT

def phaseA(c, only=None):
    A, ST, name, exp, STF = c.A, c.ST, c.name, c.exp, c.STF
    sWV = c.sWV
    vLane, vL16 = 1, 2
    vXe, vXo, vW = 3, 4, 5
    vD = [6, 7, 8]
    vT = [9, 10, 11, 12, 13]
    vR, vNMR = 14, 15
    F = 16
    ACC = 56
    vDA, vDQ, vPA, vPQ = 152, 153, 154, 155
    PF = 160
    def FX(b, tl): return F + 20*b + 4*tl
    def FW(b, t): return F + 20*b + 8 + 4*t
    def AC(t, tl): return ACC + 32*t + 16*tl
    sX, sA, sQK, sWS, sWM = 4, 8, 16, 20, 12
    sRB, sG, sTH, sCH = 24, 25, 27, 28
    sStr, sKA, sKQ, sMA, sMQ = 29, 30, 31, 32, 33
    sCnt, sTmp, sTmp2, sTmp3 = 34, 35, 36, 37
    sIsV, sE, sScale, sPad2, sPad3 = 38, 39, 40, 41, 42
    sTT0, sTT1, sFB = 43, 44, 45
    sHi = 46
    sWR, sStep, sPFA = 48, 49, 50
    l = vLane
    t0, t1, t2, t3, t4 = vT

    def setup():
        A(f"s_and_b32 s{sTmp}, s2, 7")
        A(f"s_lshr_b32 s{sTmp2}, s2, 3")
        A(f"s_and_b32 s{sRB}, s{sTmp}, 1")
        A(f"s_lshl_b32 s{sRB}, s{sRB}, 3")
        A(f"s_and_b32 s{sTmp3}, s{sTmp2}, 7")
        A(f"s_add_u32 s{sRB}, s{sRB}, s{sTmp3}")
        A(f"s_lshr_b32 s{sG}, s{sTmp}, 1")
        A(f"s_lshl_b32 s{sG}, s{sG}, 2")
        A(f"s_lshr_b32 s{sTmp3}, s{sTmp2}, 3")
        A(f"s_add_u32 s{sG}, s{sG}, s{sTmp3}")
        A(f"s_cmp_ge_u32 s{sG}, 14")
        A(f"s_cselect_b32 s{sIsV}, 1, 0")
        A(f"v_lshrrev_b32 v{t0}, 2, v{l}")
        A(f"v_and_b32 v{t1}, 3, v{l}")
        A(f"s_and_b32 s{sTH}, s{sWV}, 1")
        A(f"s_bfe_u32 s{sCH}, s{sWV}, 0x10001")
        A(f"v_bfe_u32 v{t2}, v{l}, 4, 2")
        A(f"v_xor_b32 v{t2}, v{t2}, v{t1}")
        A(f"s_lshl_b32 s{sTmp}, s{sRB}, 7")
        A(f"s_lshl_b32 s{sTmp2}, s{sWV}, 4")
        A(f"s_add_u32 s{sTmp}, s{sTmp}, s{sTmp2}")
        A(f"v_add_u32 v{t3}, s{sTmp}, v{t0}")
        A(f"v_mul_u32_u24 v{t3}, 896, v{t3}")
        A(f"v_lshl_add_u32 v{vD[0]}, v{t2}, 4, v{t3}")
        A(f"s_lshl_b32 s{sTmp3}, s{sWV}, 10")
        A("s_waitcnt lgkmcnt(0)")
        make_srd(A, sX, 56, SZ_X)
        for i in range(14):
            A(f"s_add_u32 m0, s{sTmp3}, {i*8192}")
            A(f"s_movk_i32 s{sTmp}, {64*i}")
            A(f"buffer_load_dwordx4 v{vD[0]}, s[{sX}:{sX+3}], s{sTmp} offen lds")
        if not A.trace:
            Lt = name + "_notag"
            A(f"s_or_b32 s{sTmp}, s2, s{sWV}")
            A(f"s_cmp_lg_u32 s{sTmp}, 0")
            A(f"s_cbranch_scc1 {Lt}")
            A(f"s_memrealtime s[52:53]")
            A(f"s_mov_b32 s12, s{c.sDBG}"); A(f"s_and_b32 s13, s{c.sDBG+1}, 0xffff"); A("s_mov_b32 s14, 256"); A("s_mov_b32 s15, 0x20000")
            A("s_waitcnt lgkmcnt(0)")
            A(f"s_lshl_b32 s52, s52, 2")
            A(f"s_or_b32 s52, s52, 0x80000000")
            A(f"v_mov_b32 v{t3}, s52")
            A(f"v_mov_b32 v{t4}, 0")
            A("s_mov_b64 exec, 1")
            A(f"buffer_store_dword v{t3}, v{t4}, s[12:15], 0 offen sc0 sc1")
            A("s_mov_b64 exec, -1")
            A.label(Lt)
        make_srd(A, sWS, c.sWSp, WS_USED)
        A(f"v_add_u32 v{vD[1]}, s{sTmp3}, v{vL16}")
        make_srd(A, sQK, 58, SZ_WQKV)
        A(f"s_cmp_eq_u32 s{sTH}, 0")
        A(f"s_cselect_b32 s{sA}, s60, s62")
        A(f"s_cselect_b32 s{sA+1}, s61, s63")
        A(f"s_cmp_eq_u32 s{sIsV}, 1")
        A(f"s_cselect_b32 s{sA}, s58, s{sA}")
        A(f"s_cselect_b32 s{sA+1}, s59, s{sA+1}")
        A(f"s_mov_b32 s{sA+2}, {SZ_WG}")
        A(f"s_cselect_b32 s{sA+2}, {SZ_WQKV}, s{sA+2}")
        A(f"s_movk_i32 s{sStr}, 3584")
        A(f"s_cselect_b32 s{sStr}, 2688, s{sStr}")
        A(f"s_and_b32 s{sA+1}, s{sA+1}, 0xffff")
        A(f"s_mov_b32 s{sA+3}, 0x20000")
        A(f"s_lshl_b32 s{sStep}, s{sStr}, 4")
        A(f"s_lshr_b32 s{sTmp3}, s{sWV}, 2")
        A(f"s_lshl_b32 s{sTmp}, s{sCH}, 1")
        A(f"s_add_u32 s{sTmp}, s{sTmp}, s{sTmp3}")
        A(f"s_lshl_b32 s{sTmp2}, s{sTmp}, 6")
        A(f"s_lshl_b32 s{sE}, s{sG}, 8")
        A(f"s_add_u32 s{sTmp2}, s{sTmp2}, s{sE}")
        A(f"s_lshl_b32 s{sTmp}, s{sTmp}, 1")
        A(f"s_add_u32 s{sTmp}, s{sTmp}, s{sTH}")
        A(f"s_mul_i32 s{sTmp}, s{sTmp}, 56")
        A(f"s_mul_i32 s{sE}, s{sG}, 448")
        A(f"s_add_u32 s{sTmp}, s{sTmp}, s{sE}")
        A(f"s_sub_u32 s{sTmp}, s{sTmp}, {448*14-1792}")
        A(f"s_cmp_eq_u32 s{sIsV}, 1")
        A(f"s_cselect_b32 s{sE}, s{sTmp}, s{sTmp2}")
        A(f"v_mul_lo_u32 v{t2}, v{t0}, s{sStr}")
        A(f"v_lshl_add_u32 v{t2}, v{t1}, 4, v{t2}")
        A(f"v_add_u32 v{vDA}, s{sE}, v{t2}")
        A(f"v_mul_u32_u24 v{t2}, 2688, v{t0}")
        A(f"v_lshl_add_u32 v{t2}, v{t1}, 4, v{t2}")
        A(f"s_mul_i32 s{sTmp}, s{sG}, 112")
        A(f"s_mul_i32 s{sTmp2}, s{sCH}, 56")
        A(f"s_add_u32 s{sTmp}, s{sTmp}, s{sTmp2}")
        A(f"v_add_u32 v{vDQ}, s{sTmp}, v{t2}")
        A(f"s_mul_i32 s{sTmp}, s{sCH}, 5")
        A(f"s_lshl_b32 s{sTmp2}, s{sTmp3}, 1")
        A(f"s_add_u32 s{sTmp2}, s{sTmp2}, s{sTmp}")
        A(f"s_add_u32 s{sTmp2}, s{sTmp2}, s{sTH}")
        A(f"s_lshl_b32 s{sMA}, s{sTmp2}, 10")
        A(f"s_add_u32 s{sMA}, s{sMA}, {XB}")
        A(f"s_add_u32 s{sTmp2}, s{sTmp}, 4")
        A(f"s_lshl_b32 s{sMQ}, s{sTmp2}, 10")
        A(f"s_add_u32 s{sMQ}, s{sMQ}, {XB}")
        A(f"s_mov_b32 s{sKA}, 0"); A(f"s_mov_b32 s{sKQ}, 0")
        A(f"s_mov_b32 s{sHi}, 0"); A(f"s_mov_b32 s{sHi+1}, -1")
        A(f"s_lshl_b32 s{sTmp2}, s{sTmp3}, 1")
        A(f"s_add_u32 s{sTmp}, s{sTmp}, s{sTmp2}")
        A(f"s_lshl_b32 s{sTmp}, s{sTmp}, 10")
        A(f"s_add_u32 s{sTmp}, s{sTmp}, {XB}")
        A(f"v_lshrrev_b32 v{t2}, 5, v{l}")
        A(f"v_lshlrev_b32 v{t2}, 9, v{t2}")
        A(f"v_bfe_u32 v{t3}, v{l}, 2, 2")
        A(f"v_lshl_add_u32 v{t2}, v{t3}, 6, v{t2}")
        A(f"v_bfe_u32 v{t3}, v{l}, 4, 1")
        A(f"v_lshl_add_u32 v{t2}, v{t3}, 5, v{t2}")
        A(f"v_lshl_add_u32 v{t2}, v{t1}, 3, v{t2}")
        A(f"v_add_u32 v{vW}, s{sTmp}, v{t2}")
        A(f"v_and_b32 v{t2}, 31, v{l}")
        A(f"v_lshrrev_b32 v{t3}, 5, v{l}")
        A(f"v_bfe_u32 v{t4}, v{l}, 2, 2")
        A(f"v_xor_b32 v{t3}, v{t3}, v{t4}")
        A(f"v_lshlrev_b32 v{t3}, 4, v{t3}")
        A(f"v_lshl_add_u32 v{t2}, v{t2}, 6, v{t3}")
        A(f"s_lshl_b32 s{sTmp}, s{sTH}, 12")
        A(f"v_add_u32 v{vXe}, s{sTmp}, v{t2}")
        A(f"v_xor_b32 v{vXo}, 32, v{vXe}")
        A(f"s_lshl_b32 s{sTT0}, s{sRB}, 2")
        A(f"s_lshl_b32 s{sTmp}, s{sTH}, 1")
        A(f"s_add_u32 s{sTT0}, s{sTT0}, s{sTmp}")
        A(f"s_add_u32 s{sTT1}, s{sTT0}, 1")
        A(f"v_lshrrev_b32 v{t2}, 3, v{l}")
        A(f"v_and_b32 v{t3}, 7, v{l}")
        A(f"v_lshlrev_b32 v{t3}, 4, v{t3}")
        A(f"v_mul_lo_u32 v{vPA}, v{t2}, s{sStr}")
        A(f"v_add_u32 v{vPA}, v{vPA}, v{t3}")
        A(f"v_mul_u32_u24 v{vPQ}, 2688, v{t2}")
        A(f"v_add_u32 v{vPQ}, v{vPQ}, v{t3}")
        A(f"s_lshl_b32 s{sTmp}, s{sG}, 8")
        A(f"s_mul_i32 s{sTmp2}, s{sG}, 448")
        A(f"s_sub_u32 s{sTmp2}, s{sTmp2}, {448*14-1792}")
        A(f"s_lshl_b32 s{sTmp3}, s{sTH}, 8")
        A(f"s_add_u32 s{sTmp2}, s{sTmp2}, s{sTmp3}")
        A(f"s_cmp_eq_u32 s{sIsV}, 1")
        A(f"s_cselect_b32 s{sPFA}, s{sTmp2}, s{sTmp}")

    def prefetch():
        A(f"s_and_b32 s{sTmp}, s{sRB}, 7")
        A(f"s_mul_i32 s{sTmp}, s{sTmp}, 56")
        A(f"s_lshr_b32 s{sTmp2}, s{sWV}, 1")
        A(f"s_mul_i32 s{sTmp2}, s{sTmp2}, 14")
        A(f"s_add_u32 s{sTmp2}, s{sTmp2}, s{sTmp}")
        A(f"s_mul_i32 s{sTmp2}, s{sTmp2}, s{sStr}")
        A(f"s_add_u32 s{sTmp2}, s{sTmp2}, s{sPFA}")
        A(f"s_lshl_b32 s{sTmp3}, s{sStr}, 3")
        A(f"buffer_load_dwordx4 {v(PF,4)}, v{vPA}, s[{sA}:{sA+3}], s{sTmp2} offen")
        A(f"buffer_load_dwordx4 {v(PF+4,4)}, v{vPA}, s[{sA}:{sA+3}], s{sTmp2} offen offset:128")
        A(f"s_add_u32 s{sTmp2}, s{sTmp2}, s{sTmp3}")
        A(f"buffer_load_dwordx4 {v(PF+8,4)}, v{vPA}, s[{sA}:{sA+3}], s{sTmp2} offen")
        A(f"buffer_load_dwordx4 {v(PF+12,4)}, v{vPA}, s[{sA}:{sA+3}], s{sTmp2} offen offset:128")
        A(f"s_mul_i32 s{sTmp2}, s{sWV}, 7")
        A(f"s_add_u32 s{sTmp2}, s{sTmp2}, s{sTmp}")
        A(f"s_mul_i32 s{sTmp2}, s{sTmp2}, 2688")
        A(f"s_mul_i32 s{sTmp}, s{sG}, 112")
        A(f"s_add_u32 s{sTmp2}, s{sTmp2}, s{sTmp}")
        A(f"buffer_load_dwordx4 {v(PF+16,4)}, v{vPQ}, s[{sQK}:{sQK+3}], s{sTmp2} offen")
        A(f"s_lshl_b32 s{sTmp}, s2, 3")
        A(f"s_add_u32 s{sTmp}, s{sTmp}, s{sWV}")
        A(f"s_lshl_b32 s{sTmp}, s{sTmp}, 10")
        make_srd(A, sWM, 64, SZ_WD)
        A(f"s_cmp_lt_u32 s{sTmp}, {SZ_WD}")
        A(f"s_cselect_b32 s{sWM}, s{sWM}, s66")
        A(f"s_cselect_b32 s{sWM+1}, s{sWM+1}, s67")
        A(f"s_cselect_b32 s{sWM+2}, s{sWM+2}, {SZ_WO}")
        A(f"s_cselect_b32 s{sTmp2}, 0, {SZ_WD}")
        A(f"s_and_b32 s{sWM+1}, s{sWM+1}, 0xffff")
        A(f"s_sub_u32 s{sTmp}, s{sTmp}, s{sTmp2}")
        A(f"buffer_load_dwordx4 {v(PF+20,4)}, v{vL16}, s[{sWM}:{sWM+3}], s{sTmp} offen")
        return 6

    def cdma(var, slot):
        role, th = var
        L = [f"s_add_u32 m0, s{sMA}, {slot*WSLOT}", f"s_nop 0",
             f"buffer_load_dwordx4 v{vDA}, s[{sA}:{sA+3}], s{sKA} offen lds",
             f"s_add_u32 s{sKA}, s{sKA}, s{sStep}"]
        if role == 1 and th == 0:
            L += [f"s_add_u32 m0, s{sMQ}, {slot*WSLOT}", f"s_nop 0",
                  f"buffer_load_dwordx4 v{vDQ}, s[{sQK}:{sQK+3}], s{sKQ} offen lds",
                  f"s_add_u32 s{sKQ}, s{sKQ}, {16*2688}"]
        return L
    def ndma(var): return 2 if var == (1, 0) else 1

    def ln(var):
        nd = ndma(var)
        A("s_barrier")
        for sl in range(2):
            for x_ in cdma(var, sl): A(x_)
        npf = prefetch()
        RB = [F, F+4]
        A(f"v_mov_b32 v{t4}, 0x3f803f80")
        for r in (t0, t1, t2, t3): A(f"v_mov_b32 v{r}, 0")
        A(f"v_add_u32 v{vD[0]}, 0x10000, v{vD[1]}")
        def rd(i, dst):
            if i*8192 < 65536: A(f"ds_read_b128 {v(dst,4)}, v{vD[1]} offset:{i*8192}")
            else: A(f"ds_read_b128 {v(dst,4)}, v{vD[0]} offset:{i*8192-65536}")
        ex = 2*nd + npf
        A(f"s_waitcnt vmcnt({13+ex})")
        rd(0, RB[0])
        for i in range(14):
            if i+1 < 14:
                A(f"s_waitcnt vmcnt({12-i+ex})")
                rd(i+1, RB[(i+1) & 1])
                A("s_waitcnt lgkmcnt(1)")
            else:
                A("s_waitcnt lgkmcnt(0)")
            for k in range(4):
                R = RB[i & 1]+k
                A(f"v_dot2c_f32_bf16 v{t0 if k%2==0 else t1}, v{R}, v{t4}")
                A(f"v_dot2c_f32_bf16 v{t2 if k%2==0 else t3}, v{R}, v{R}")
        ST.stamp()
        for sl in range(2, 4):
            for x_ in cdma(var, sl): A(x_)
        RA = [F+8, F+12]; T = [F+16+k for k in range(8)]
        A(f"ds_read_b128 {v(RA[0],4)}, v{vD[1]}")
        A(f"v_add_f32 v{t0}, v{t0}, v{t1}")
        A(f"v_add_f32 v{t2}, v{t2}, v{t3}")
        for qp in ("[1,0,3,2]", "[2,3,0,1]"):
            A("s_nop 1")
            A(f"v_add_f32_dpp v{t0}, v{t0}, v{t0} quad_perm:{qp} row_mask:0xf bank_mask:0xf")
            A(f"v_add_f32_dpp v{t2}, v{t2}, v{t2} quad_perm:{qp} row_mask:0xf bank_mask:0xf")
        A(f"v_mul_f32 v{t0}, {f2u(1.0/448):#x}, v{t0}")
        A(f"v_mul_f32 v{t2}, {f2u(1.0/448):#x}, v{t2}")
        A(f"v_fma_f32 v{t2}, -v{t0}, v{t0}, v{t2}")
        A(f"v_max_f32 v{t2}, 0, v{t2}")
        A(f"v_add_f32 v{t2}, {f2u(1e-5):#x}, v{t2}")
        A(f"v_rsq_f32 v{vR}, v{t2}")
        A("s_nop 0")
        A(f"v_mul_f32 v{t0}, v{t0}, v{vR}")
        A(f"v_sub_f32 v{vNMR}, 0, v{t0}")
        def norm(R0):
            R = [R0+k for k in range(4)]
            for k in range(4):
                A(f"v_lshlrev_b32 v{T[2*k]}, 16, v{R[k]}")
                A(f"v_and_b32 v{T[2*k+1]}, 0xffff0000, v{R[k]}")
            for k in range(8):
                A(f"v_fma_f32 v{T[k]}, v{T[k]}, v{vR}, v{vNMR}")
            for k in range(4):
                A(f"v_cvt_pk_bf16_f32 v{R[k]}, v{T[2*k]}, v{T[2*k+1]}")
        def nbody(last):
            A(f"ds_read_b128 {v(RA[1],4)}, v{vD[1]} offset:8192")
            A("s_waitcnt lgkmcnt(1)")
            norm(RA[0])
            A(f"ds_write_b128 v{vD[1]}, {v(RA[0],4)}")
            A("s_waitcnt lgkmcnt(1)")
            if not last:
                A(f"ds_read_b128 {v(RA[0],4)}, v{vD[1]} offset:16384")
            norm(RA[1])
            A(f"ds_write_b128 v{vD[1]}, {v(RA[1],4)} offset:8192")
            if not last:
                A(f"v_add_u32 v{vD[1]}, 16384, v{vD[1]}")
        if A.trace:
            for it in range(6): nbody(False)
        else:
            Ln = A.newlabel(name + "_ln")
            A(f"s_mov_b32 s{sCnt}, 6")
            A.label(Ln)
            nbody(False)
            A(f"s_sub_u32 s{sCnt}, s{sCnt}, 1")
            A(f"s_cmp_lg_u32 s{sCnt}, 0")
            A(f"s_cbranch_scc1 {Ln}")
        nbody(True)
        return npf

    def reads_x(b, k4):
        ad = vXe if k4 % 2 == 0 else vXo
        return [f"ds_read_b128 {v(FX(b,tl),4)}, v{ad} offset:{(k4//2)*8192 + tl*2048}" for tl in range(2)]
    def reads_w(role, b, slot):
        nt = 2 if role == 0 else 3
        L = []
        for t in range(nt):
            j = t if t < 2 else (4 - 2*role)
            for q in range(2):
                L.append(f"ds_read_b64_tr_b16 {v(FW(b,t)+2*q,2)}, v{vW} offset:{slot*WSLOT + j*1024 + q*256}")
        return L
    def mf(role, isV, b, first):
        nt = 2 if role == 0 else 3
        L = []
        for t in range(nt):
            for tl in range(2):
                acc = AC(t, tl)
                cc = "0" if first else v(acc,16)
                if isV and t < 2:
                    L.append(f"v_mfma_f32_32x32x16_bf16 {v(acc,16)}, {v(FX(b,tl),4)}, {v(FW(b,t),4)}, {cc}")
                else:
                    L.append(f"v_mfma_f32_32x32x16_bf16 {v(acc,16)}, {v(FW(b,t),4)}, {v(FX(b,tl),4)}, {cc}")
        return L
    def interleave_post(mfl, others):
        n = len(mfl); k = len(others); idx = 0
        per = (k + n - 1)//n
        for i in range(n):
            A(mfl[i])
            for _ in range(per):
                if idx < k: A(others[idx]); idx += 1
        while idx < k: A(others[idx]); idx += 1
    def kstep(var, isV, k4, first=False, last=False, do_dma=True, vm=None):
        role, th = var
        b = k4 & 1
        M = mf(role, isV, b, first)
        A("s_waitcnt lgkmcnt(0)")
        A(M[0]); A(M[1])
        if last:
            for m in M[2:]: A(m)
            return
        A(f"s_waitcnt vmcnt({vm})")
        A("s_barrier")
        nxt = (k4+1) % 4
        oth = []
        if k4 == 3:
            oth += [f"v_add_u32 v{vXe}, 16384, v{vXe}", f"v_add_u32 v{vXo}, 16384, v{vXo}"]
        oth += reads_w(role, b ^ 1, nxt) + reads_x(b ^ 1, nxt)
        if do_dma: oth += cdma(var, k4)
        interleave_post(M[2:], oth)

    def epilogue(role, isV):
        TM = [F, F+1, F+2, F+3]
        def store_frags(src8, soff):
            A(f"buffer_store_dwordx4 {v(src8,4)}, v{vL16}, s[{sWS}:{sWS+3}], s{soff} offen{STF}")
            A(f"buffer_store_dwordx4 {v(src8+4,4)}, v{vL16}, s[{sWS}:{sWS+3}], s{soff} offen offset:1024{STF}")
        sTT = [sTT0, sTT1]
        if role == 1:
            A(f"s_lshl_b32 s{sE}, s{sG}, 1")
            A(f"s_add_u32 s{sE}, s{sE}, s{sCH}")
            A(f"s_cmp_lt_u32 s{sE}, 16")
            A(f"s_cselect_b32 s{sScale}, {f2u(CSCALE):#x}, 1.0")
            A(f"s_cselect_b32 s{sPad2}, 0, 0x3f803f80")
            A(f"s_cselect_b32 s{sPad3}, 0, 0x00003f80")
            for tl in range(2):
                C = AC(2, tl)
                for i in range(16):
                    A(f"v_mul_f32 v{C+i}, s{sScale}, v{C+i}")
                for r in range(8):
                    A(f"v_cvt_pk_bf16_f32 v{C+r}, v{C+2*r}, v{C+2*r+1}")
                A(f"s_mov_b64 exec, s[{sHi}:{sHi+1}]")
                A(f"v_mov_b32 v{C+6}, s{sPad2}")
                A(f"v_mov_b32 v{C+7}, s{sPad3}")
                A(f"s_mov_b64 exec, -1")
                A(f"s_lshl_b32 s{sTmp}, s{sE}, 6")
                A(f"s_add_u32 s{sTmp}, s{sTmp}, s{sTT[tl]}")
                A(f"s_lshl_b32 s{sTmp}, s{sTmp}, 11")
                store_frags(C, sTmp)
        if not isV:
            A(f"s_lshl_b32 s{sTmp}, s{sG}, 2")
            A(f"s_lshl_b32 s{sTmp3}, s{sCH}, 1")
            A(f"s_add_u32 s{sTmp}, s{sTmp}, s{sTmp3}")
            A(f"s_add_u32 s{sTmp}, s{sTmp}, {role}")
            A(f"s_lshl_b32 s{sFB}, s{sTmp}, 1")
            A(f"s_mov_b32 s{sTmp2}, {f2u(-LOG2E):#x}")
            for tl in range(2):
                G = AC(0, tl); U = AC(1, tl)
                for i0 in range(0, 16, 4):
                    for i in range(4): A(f"v_mul_f32 v{TM[i]}, s{sTmp2}, v{G+i0+i}")
                    for i in range(4): A(f"v_exp_f32 v{TM[i]}, v{TM[i]}")
                    for i in range(4): A(f"v_mul_f32 v{G+i0+i}, v{G+i0+i}, v{U+i0+i}")
                    for i in range(4): A(f"v_add_f32 v{TM[i]}, 1.0, v{TM[i]}")
                    for i in range(4): A(f"v_rcp_f32 v{TM[i]}, v{TM[i]}")
                    A("s_nop 0")
                    for i in range(4): A(f"v_mul_f32 v{G+i0+i}, v{G+i0+i}, v{TM[i]}")
                for r in range(8):
                    A(f"v_cvt_pk_bf16_f32 v{U+r}, v{G+2*r}, v{G+2*r+1}")
                A(f"s_mul_i32 s{sTmp}, s{sTT[tl]}, 144")
                A(f"s_add_u32 s{sTmp}, s{sTmp}, s{sFB}")
                A(f"s_lshl_b32 s{sTmp}, s{sTmp}, 10")
                A(f"s_add_u32 s{sTmp}, s{sTmp}, {HF}")
                store_frags(U, sTmp)
        else:
            A(f"s_sub_u32 s{sTmp}, s{sG}, 14")
            A(f"s_lshl_b32 s{sTmp}, s{sTmp}, 3")
            A(f"s_lshl_b32 s{sTmp3}, s{sCH}, 2")
            A(f"s_add_u32 s{sTmp}, s{sTmp}, s{sTmp3}")
            A(f"s_add_u32 s{sFB}, s{sTmp}, {32+2*role}")
            A(f"v_cmp_eq_u32 vcc, 28, v{l}" )
            A(f"v_cmp_eq_u32 s[50:51], 60, v{l}")
            A("s_nop 3")
            A("s_or_b64 s[50:51], s[50:51], vcc")
            for tl in range(2):
                for t in range(2):
                    acc = AC(t, tl)
                    for r in range(8):
                        A(f"v_cvt_pk_bf16_f32 v{acc+r}, v{acc+2*r}, v{acc+2*r+1}")
                    A(f"s_mov_b64 exec, s[50:51]")
                    for r in range(8):
                        A(f"v_mov_b32 v{acc+r}, 0x3f803f80")
                    A(f"s_mov_b64 exec, -1")
                    A(f"s_add_u32 s{sTmp}, s{sFB}, {t}")
                    A(f"s_lshl_b32 s{sTmp}, s{sTmp}, 6")
                    A(f"s_add_u32 s{sTmp}, s{sTmp}, s{sTT[tl]}")
                    A(f"s_lshl_b32 s{sTmp}, s{sTmp}, 11")
                    store_frags(acc, sTmp)

    def variant(role, isV, th):
        var = (role, th if role == 1 else 0)
        nd = ndma(var)
        tag = f"{name}_r{role}v{int(isV)}t{th}"
        npf = ln(var)
        A(f"s_waitcnt vmcnt({3*nd+npf}) lgkmcnt(0)")
        A("s_barrier")
        ST.stamp()
        for x_ in reads_w(role, 0, 0) + reads_x(0, 0): A(x_)
        def body(first, final):
            for k in range(4):
                if final: kstep(var, isV, k, last=(k == 3), do_dma=False, vm=(2-k)*nd if k < 3 else None)
                else: kstep(var, isV, k, first=(first and k == 0), vm=2*nd + (npf if (first and k == 0) else 0))
        body(True, False)
        if A.trace:
            for it in range(5): body(False, False)
        else:
            A(f"s_mov_b32 s{sCnt}, 5")
            A.label(tag + "_loop")
            body(False, False)
            A(f"s_sub_u32 s{sCnt}, s{sCnt}, 1")
            A(f"s_cmp_lg_u32 s{sCnt}, 0")
            A(f"s_cbranch_scc1 {tag}_loop")
        body(False, True)
        ST.stamp()
        A.nop(12)
        epilogue(role, isV)
        c.nstamp_after_A = ST.n
        if not A.trace: A(f"s_branch {c.LB}")

    setup()
    if only is not None:
        variant(*only)
        return
    nsave = ST.n
    keys = [(0,0,0),(0,1,0),(1,0,0),(1,0,1),(1,1,0),(1,1,1)]
    labs = {k: f"{name}_V{k[0]}{k[1]}{k[2]}" for k in keys}
    A(f"s_lshr_b32 s{sTmp}, s{sWV}, 2")
    A(f"s_and_b32 s{sTmp3}, s{sTmp}, s{sTH}")
    A(f"s_lshl_b32 s{sTmp}, s{sTmp}, 2")
    A(f"s_lshl_b32 s{sTmp2}, s{sIsV}, 1")
    A(f"s_add_u32 s{sTmp}, s{sTmp}, s{sTmp2}")
    A(f"s_add_u32 s{sTmp}, s{sTmp}, s{sTmp3}")
    for k in keys[1:]:
        A(f"s_cmp_eq_u32 s{sTmp}, {k[0]*4+k[1]*2+k[2]}")
        A(f"s_cbranch_scc1 {labs[k]}")
    for k in keys:
        A.label(labs[k])
        ST.n = nsave
        variant(k[0], bool(k[1]), k[2])
```

```python
from common import *
FLAGA = 24*1024*1024
FLAGO = FLAGA + 65536
G_LDS = 66560

def wg_of(A, rb_expr_v, g_expr_v, dst, t):
    A(f"v_lshrrev_b32 v{dst}, 3, v{rb_expr_v}")
    A(f"v_lshrrev_b32 v{t}, 2, v{g_expr_v}")
    A(f"v_lshl_add_u32 v{dst}, v{t}, 1, v{dst}")
    A(f"v_and_b32 v{t}, 7, v{rb_expr_v}")
    A(f"v_lshl_add_u32 v{dst}, v{t}, 3, v{dst}")
    A(f"v_and_b32 v{t}, 3, v{g_expr_v}")
    A(f"v_lshl_add_u32 v{dst}, v{t}, 6, v{dst}")

def publish(c, vt, flagbase, add):
    A = c.A
    c.flag_srd(60)
    A(f"s_lshl_b32 s35, s2, 6")
    A(f"s_add_u32 s35, s35, {flagbase}")
    A(f"s_add_u32 s36, s{c.sTAG}, {add}")
    A(f"v_mov_b32 v{vt}, s36")
    A(f"v_mov_b32 v{vt+1}, 0")
    A("s_mov_b64 exec, 1")
    A(f"buffer_store_dword v{vt}, v{vt+1}, s[60:63], s35 offen sc0 sc1")
    A("s_mov_b64 exec, -1")

def attention(c):
    A, ST, name, STF, LDF = c.A, c.ST, c.name, c.STF, c.LDF
    sWV = c.sWV
    vL16 = 2; vLane = 1
    vT = [3,4,5,6,7,9]
    Q = 10; Q = 12
    O = 44
    S = 108
    P = 140
    E = 148
    KV = 152
    vM = 216
    def Qf(qt, s): return Q + 8*qt + 4*s
    def Of(qt): return O + 16*qt
    def Sf(b): return S + 16*b
    def Kf(b, s): return KV + 16*b + 4*s
    def Vf(b, s): return KV + 16*b + 8 + 4*s
    sK, sV, sW = 8, 12, 4
    sH, sQB = 16, 17
    sKoff, sVoff, sQoff = 19, 20, 21
    sCnt, sExact, sTmp, sTmp2 = 22, 23, 24, 25
    sK0, sKbeg, sVbeg = 26, 27, 28
    sHiMask, sSave = 30, 32
    t0, t1 = vT[0], vT[1]
    c.get_tag(t0, 60)
    if not A.trace:
        Lp = A.newlabel(name + "_nopub")
        A(f"s_cmp_lg_u32 s{sWV}, 0")
        A(f"s_cbranch_scc1 {Lp}")
    publish(c, t0, FLAGA, 0)
    A(f"v_lshlrev_b32 v{t0}, 2, v{vLane}")
    A(f"v_add_u32 v{t0}, {65536+16}, v{t0}")
    A(f"v_mov_b32 v{t0+1}, 0")
    A(f"ds_write_b32 v{t0}, v{t0+1}")
    if not A.trace: A.label(Lp)
    A(f"s_and_b32 s{sTmp}, s2, 7")
    A(f"s_lshr_b32 s{sTmp2}, s2, 3")
    A(f"s_and_b32 s{sH}, s{sTmp2}, 1")
    A(f"s_lshl_b32 s{sTmp}, s{sTmp}, 1")
    A(f"s_add_u32 s{sH}, s{sH}, s{sTmp}")
    A(f"s_lshr_b32 s{sQB}, s{sTmp2}, 1")
    A(f"s_mov_b32 s{sHiMask}, 0")
    A(f"s_mov_b32 s{sHiMask+1}, -1")
    A(f"s_lshl_b32 s{sTmp}, s{sH}, 6")
    A(f"s_lshl_b32 s{sTmp2}, s{sQB}, 2")
    A(f"s_add_u32 s{sQoff}, s{sTmp}, s{sTmp2}")
    A(f"s_lshl_b32 s{sQoff}, s{sQoff}, 11")
    A(f"s_lshl_b32 s{sK0}, s{sTmp}, 11")
    A(f"s_add_u32 s{sK0}, s{sK0}, {KF}")
    A(f"s_lshl_b32 s{sTmp2}, s{sWV}, 15")
    A(f"s_add_u32 s{sKbeg}, s{sK0}, s{sTmp2}")
    A(f"s_add_u32 s{sVbeg}, s{sKbeg}, {VF-KF}")
    make_srd(A, sW, c.sWSp, 0x2000000)
    make_srd(A, sK, c.sWSp, 0)
    make_srd(A, sV, c.sWSp, 0)
    A(f"s_add_u32 s{sK+2}, s{sKbeg}, {16*2048}")
    A(f"s_add_u32 s{sV+2}, s{sVbeg}, {16*2048}")
    A(f"s_mov_b32 s{sExact}, 0")
    a0, a1, a2 = vT[2], vT[3], vT[4]
    A(f"v_and_b32 v{a0}, 15, v{vLane}")
    A(f"s_add_u32 s{sTmp}, s{sH}, 16")
    A(f"s_lshr_b32 s{sTmp}, s{sTmp}, 1")
    A(f"s_lshr_b32 s{sTmp2}, s{sH}, 3")
    A(f"s_add_u32 s{sTmp2}, s{sTmp2}, 14")
    A(f"v_mov_b32 v{a1}, s{sTmp}")
    A(f"v_mov_b32 v{a2}, s{sTmp2}")
    A(f"v_cmp_gt_u32 vcc, 16, v{vLane}")
    A("s_nop 1")
    A(f"v_cndmask_b32 v{a1}, v{a2}, v{a1}, vcc")
    A(f"s_lshr_b32 s{sTmp}, s{sH}, 1")
    A(f"v_mov_b32 v{a2}, s{sTmp}")
    A(f"v_cmp_gt_u32 vcc, 32, v{vLane}")
    A("s_nop 1")
    A(f"v_cndmask_b32 v{a1}, v{a2}, v{a1}, vcc")
    A(f"v_mov_b32 v{a2}, s{sQB}")
    A(f"v_cndmask_b32 v{a0}, v{a2}, v{a0}, vcc")
    wg_of(A, a0, a1, a2, vT[5])
    A(f"v_lshlrev_b32 v{a2}, 6, v{a2}")
    A(f"v_add_u32 v{a2}, {FLAGA}, v{a2}")
    c.poll(a2, a0, sW, 0, 0xffffffff, 0xffffffff)
    ST.stamp()

    def load_tile(b):
        A(f"buffer_load_dwordx4 {v(Kf(b,0),4)}, v{vL16}, s[{sK}:{sK+3}], s{sKoff} offen{LDF}")
        A(f"buffer_load_dwordx4 {v(Kf(b,1),4)}, v{vL16}, s[{sK}:{sK+3}], s{sKoff} offen offset:1024{LDF}")
        A(f"buffer_load_dwordx4 {v(Vf(b,0),4)}, v{vL16}, s[{sV}:{sV+3}], s{sVoff} offen{LDF}")
        A(f"buffer_load_dwordx4 {v(Vf(b,1),4)}, v{vL16}, s[{sV}:{sV+3}], s{sVoff} offen offset:1024{LDF}")
        A(f"s_add_u32 s{sKoff}, s{sKoff}, 2048")
        A(f"s_add_u32 s{sVoff}, s{sVoff}, 2048")
    for qt in range(4):
        for s_ in range(2):
            off = qt*2048 + s_*1024
            if off < 4096:
                A(f"buffer_load_dwordx4 {v(Qf(qt,s_),4)}, v{vL16}, s[{sW}:{sW+3}], s{sQoff} offen offset:{off}{LDF}")
            else:
                if off == 4096: A(f"s_add_u32 s{sTmp}, s{sQoff}, 4096")
                A(f"buffer_load_dwordx4 {v(Qf(qt,s_),4)}, v{vL16}, s[{sW}:{sW+3}], s{sTmp} offen offset:{off-4096}{LDF}")
    A(f"buffer_load_dwordx4 {v(Kf(3,0),4)}, v{vL16}, s[{sW}:{sW+3}], s{sK0} offen{LDF}")
    A(f"buffer_load_dwordx4 {v(Kf(3,1),4)}, v{vL16}, s[{sW}:{sW+3}], s{sK0} offen offset:1024{LDF}")
    A(f"s_mov_b32 s{sKoff}, s{sKbeg}")
    A(f"s_mov_b32 s{sVoff}, s{sVbeg}")
    for b in range(3): load_tile(b)

    def set_m(qt, vm):
        x0, x1, x2, x3 = vT[0], vT[1], vT[2], vT[3]
        A(f"v_sub_f32 v{x0}, 0, v{vm}")
        A(f"v_cvt_pk_bf16_f32 v{x1}, v{x0}, v{x0}")
        A(f"v_and_b32 v{x2}, 0xffff0000, v{x1}")
        A(f"v_sub_f32 v{x0}, v{x0}, v{x2}")
        A(f"v_cvt_pk_bf16_f32 v{x2}, v{x0}, v{x0}")
        A(f"v_and_b32 v{x3}, 0xffff0000, v{x2}")
        A(f"v_sub_f32 v{x0}, v{x0}, v{x3}")
        A(f"v_cvt_pk_bf16_f32 v{x0}, v{x0}, 0")
        A(f"v_and_b32 v{x1}, 0xffff, v{x1}")
        A(f"v_or_b32 v{x1}, v{x1}, v{x3}")
        A(f"s_mov_b64 exec, s[{sHiMask}:{sHiMask+1}]")
        A(f"v_mov_b32 v{Qf(qt,1)+2}, v{x1}")
        A(f"v_mov_b32 v{Qf(qt,1)+3}, v{x0}")
        A(f"s_mov_b64 exec, -1")
    def qk(dst, b, qt):
        return [f"v_mfma_f32_32x32x16_bf16 {v(dst,16)}, {v(Kf(b,0),4)}, {v(Qf(qt,0),4)}, 0",
                f"v_mfma_f32_32x32x16_bf16 {v(dst,16)}, {v(Kf(b,1),4)}, {v(Qf(qt,1),4)}, {v(dst,16)}"]
    def maxtree(src, dst):
        A(f"v_max3_f32 v{dst}, v{src}, v{src+1}, v{src+2}")
        for i in range(3, 15, 2):
            A(f"v_max3_f32 v{dst}, v{dst}, v{src+i}, v{src+i+1}")
        A(f"v_max_f32 v{dst}, v{dst}, v{src+15}")
    def crosshalf_max(r):
        t = vT[4]
        A(f"v_mov_b32 v{t}, v{r}")
        A("s_nop 1")
        A(f"v_permlane32_swap_b32 v{r}, v{t}")
        A("s_nop 1")
        A(f"v_max_f32 v{r}, v{r}, v{t}")
    def zero_state():
        for r in range(64): A(f"v_mov_b32 v{O+r}, 0")
        for r in range(4):
            A(f"v_mov_b32 v{P+4+r}, 0")
    zero_state()
    A("s_waitcnt vmcnt(12)")
    for qt in range(4):
        for m in qk(Sf(qt & 1), 3, qt): A(m)
        if qt >= 1:
            A.nop(10)
            maxtree(Sf((qt-1) & 1), vM+qt-1)
    A.nop(12)
    maxtree(Sf(1), vM+3)
    for qt in range(4):
        crosshalf_max(vM+qt)
        A(f"v_add_f32 v{vM+qt}, 0x42c00000, v{vM+qt}")
        set_m(qt, vM+qt)
    Lmain = name + "_amain"
    Lm2 = name + "_amain2"
    if not A.trace:
        A(f"s_branch {Lm2}")
        A.label(Lmain)
        A(f"s_mov_b32 s{sKoff}, s{sKbeg}")
        A(f"s_mov_b32 s{sVoff}, s{sVbeg}")
        for b in range(3): load_tile(b)
        zero_state()
        A.label(Lm2)
    for r in range(4): A(f"v_mov_b32 v{Vf(3,1)+r}, 0")
    A("s_waitcnt vmcnt(8)")
    for m in qk(Sf(0), 0, 0): A(m)
    A.nop(12)
    ST.stamp()

    def slot(j, qt):
        b = j & 3
        sb = qt & 1
        cur = Sf(sb); nxt = Sf(sb ^ 1)
        if qt < 3: nb, nq = b, qt+1
        else: nb, nq = (j+1) & 3, 0
        if qt > 0: pb, pq = b, qt-1
        else: pb, pq = (j-1) & 3, 3
        m = qk(nxt, nb, nq)
        def grp(g):
            for i in range(4): A(f"v_exp_f32 v{E+i}, v{cur+4*g+i}")
            A(f"v_cvt_pk_bf16_f32 v{P+2*g}, v{E}, v{E+1}")
            A(f"v_cvt_pk_bf16_f32 v{P+2*g+1}, v{E+2}, v{E+3}")
        if qt == 3: A("s_waitcnt vmcnt(8)")
        A(m[0])
        grp(0)
        A(f"v_mfma_f32_32x32x16_bf16 {v(Of(pq),16)}, {v(Vf(pb,1),4)}, {v(P+4,4)}, {v(Of(pq),16)}")
        if qt == 0: load_tile((j+3) & 3)
        grp(1)
        A(m[1])
        grp(2)
        A(f"v_mfma_f32_32x32x16_bf16 {v(Of(qt),16)}, {v(Vf(b,0),4)}, {v(P,4)}, {v(Of(qt),16)}")
        grp(3)
    def body():
        for j in range(4):
            for qt in range(4): slot(j, qt)
    if A.trace:
        for it in range(4): body()
    else:
        A(f"s_mov_b32 s{sCnt}, 4")
        Ll = name + "_aloop"
        A.label(Ll)
        body()
        A(f"s_sub_u32 s{sCnt}, s{sCnt}, 1")
        A(f"s_cmp_lg_u32 s{sCnt}, 0")
        A(f"s_cbranch_scc1 {Ll}")
    ST.stamp()
    A("s_nop 1")
    A(f"v_mfma_f32_32x32x16_bf16 {v(Of(3),16)}, {v(Vf(3,1),4)}, {v(P+4,4)}, {v(Of(3),16)}")
    A("s_waitcnt vmcnt(0)")
    A.nop(12)
    A(f"v_add_f32 v{t1}, v{Of(0)+12}, v{Of(1)+12}")
    A(f"v_add_f32 v{t1}, v{t1}, v{Of(2)+12}")
    A(f"v_add_f32 v{t1}, v{t1}, v{Of(3)+12}")
    A(f"s_mov_b32 s{sTmp}, {f2u(2.0**60):#x}")
    A(f"v_cmp_ngt_f32 vcc, s{sTmp}, v{t1}")
    A(f"s_nop 3")
    A(f"s_and_b64 s[{sSave}:{sSave+1}], vcc, s[{sHiMask}:{sHiMask+1}]")
    A(f"v_min3_f32 v{t0}, v{Of(0)+12}, v{Of(1)+12}, v{Of(2)+12}")
    A(f"v_min_f32 v{t0}, v{t0}, v{Of(3)+12}")
    A(f"s_mov_b32 s{sTmp}, {f2u(2.0**-110):#x}")
    A(f"v_cmp_gt_f32 vcc, s{sTmp}, v{t0}")
    A(f"s_nop 3")
    A(f"s_and_b64 vcc, vcc, s[{sHiMask}:{sHiMask+1}]")
    A(f"s_cmp_eq_u32 s{sWV}, 0")
    A(f"s_cselect_b64 vcc, vcc, 0")
    A(f"s_or_b64 s[{sSave}:{sSave+1}], s[{sSave}:{sSave+1}], vcc")
    A(f"s_cmp_lg_u64 s[{sSave}:{sSave+1}], 0")
    A(f"s_cselect_b32 s{sTmp}, 1, 0")
    if c.force_fallback: A(f"s_mov_b32 s{sTmp}, 1")
    A(f"s_cmp_eq_u32 s{sExact}, 1")
    A(f"s_cselect_b32 s{sTmp}, 0, s{sTmp}")
    A(f"s_lshl_b32 s{sTmp2}, s{sWV}, 14")
    A(f"v_add_u32 v{t0}, s{sTmp2}, v{vL16}")
    for qt in range(4):
        for a_ in range(4):
            A(f"ds_write_b128 v{t0}, {v(Of(qt)+4*a_,4)} offset:{(qt*4+a_)*1024}")
    A(f"s_lshl_b32 s{sTmp2}, s{sWV}, 2")
    A(f"s_add_u32 s{sTmp2}, s{sTmp2}, 65536")
    A(f"v_mov_b32 v{t0}, s{sTmp2}")
    A(f"v_mov_b32 v{t1}, s{sTmp}")
    A(f"ds_write_b32 v{t0}, v{t1}")
    A("s_waitcnt lgkmcnt(0)")
    if not A.trace:
        Lx = A.newlabel(name + "_r1x"); Ly = A.newlabel(name + "_r1y")
        A(f"s_cmp_eq_u32 s{sExact}, 1")
        A(f"s_cbranch_scc1 {Lx}")
        A("s_barrier")
        A(f"s_branch {Ly}")
        A.label(Lx)
        fb_sync(c, sTmp, sTmp2, vT[2], vT[3], 4)
        A.label(Ly)
    else:
        A("s_barrier")
    A(f"v_mov_b32 v{t0}, 0x10000")
    A(f"ds_read_b128 {v(E,4)}, v{t0}")
    A(f"s_lshl_b32 s{sTmp2}, s{sWV}, 12")
    A(f"v_add_u32 v{t1}, s{sTmp2}, v{vL16}")
    for ww in range(4):
        for a_ in range(4):
            A(f"ds_read_b128 {v(O+16*ww+4*a_,4)}, v{t1} offset:{ww*16384+a_*1024}")
    A("s_waitcnt lgkmcnt(0)")
    A(f"v_or_b32 v{E}, v{E}, v{E+1}")
    A(f"v_or_b32 v{E+2}, v{E+2}, v{E+3}")
    A(f"v_or_b32 v{E}, v{E}, v{E+2}")
    A("s_nop 1")
    A(f"v_readfirstlane_b32 s{sTmp}, v{E}")
    A("s_nop 3")
    A(f"s_cmp_lg_u32 s{sTmp}, 0")
    Lfb = name + "_fallback"
    if not A.trace: A(f"s_cbranch_scc1 {Lfb}")
    for r in range(16):
        A(f"v_add_f32 v{O+r}, v{O+r}, v{O+16+r}")
        A(f"v_add_f32 v{O+32+r}, v{O+32+r}, v{O+48+r}")
    for r in range(16):
        A(f"v_add_f32 v{O+r}, v{O+r}, v{O+32+r}")
    A(f"v_mov_b32 v{t0}, v{O+12}")
    A(f"v_mov_b32 v{t1}, v{O+12}")
    A("s_nop 1")
    A(f"v_permlane32_swap_b32 v{t0}, v{t1}")
    A("s_nop 1")
    A(f"v_rcp_f32 v{t1}, v{t1}")
    A("s_nop 0")
    for r in range(16): A(f"v_mul_f32 v{O+r}, v{O+r}, v{t1}")
    for r in range(8): A(f"v_cvt_pk_bf16_f32 v{P+r}, v{O+2*r}, v{O+2*r+1}")
    A(f"s_mov_b64 exec, s[{sHiMask}:{sHiMask+1}]")
    A(f"v_mov_b32 v{P+6}, 0")
    A(f"v_mov_b32 v{P+7}, 0")
    A(f"s_mov_b64 exec, -1")
    A(f"s_lshl_b32 s{sTmp}, s{sQB}, 2")
    A(f"s_add_u32 s{sTmp}, s{sTmp}, s{sWV}")
    A(f"s_mul_i32 s{sTmp}, s{sTmp}, 144")
    A(f"s_lshl_b32 s{sTmp2}, s{sH}, 1")
    A(f"s_add_u32 s{sTmp}, s{sTmp}, s{sTmp2}")
    A(f"s_add_u32 s{sTmp}, s{sTmp}, 112")
    A(f"s_lshl_b32 s{sTmp}, s{sTmp}, 10")
    A(f"s_add_u32 s{sTmp}, s{sTmp}, {HF}")
    A(f"buffer_store_dwordx4 {v(P,4)}, v{vL16}, s[{sW}:{sW+3}], s{sTmp} offen{STF}")
    A(f"buffer_store_dwordx4 {v(P+4,4)}, v{vL16}, s[{sW}:{sW+3}], s{sTmp} offen offset:1024{STF}")
    A("s_waitcnt vmcnt(0)")
    A(f"v_mov_b32 v{t0}, {65536+16}")
    A(f"v_mov_b32 v{t1}, 1")
    A("s_mov_b64 exec, 1")
    A(f"ds_add_rtn_u32 v{t1}, v{t0}, v{t1}")
    A("s_waitcnt lgkmcnt(0)")
    A("s_mov_b64 exec, -1")
    A(f"v_readfirstlane_b32 s{sTmp}, v{t1}")
    A("s_nop 3")
    A(f"s_cmp_lg_u32 s{sTmp}, 3")
    Lnp = A.newlabel(name + "_nopubO")
    if not A.trace: A(f"s_cbranch_scc1 {Lnp}")
    publish(c, t0, FLAGO, 1)
    A.label(Lnp)
    if c.stamps:
        A("s_waitcnt vmcnt(0)")
        ST.stamp(); ST.stamp(real=True)
        ST.flush(2, sWV, c.sWSp, t0, t1, sTmp, 60)
    A("s_endpgm")
    if A.trace: return
    A.label(Lfb)
    A(f"s_mov_b32 s{sExact}, 1")
    fb_sync(c, sTmp, sTmp2, t0, t1, 1)
    A(f"s_mov_b64 exec, s[{sHiMask}:{sHiMask+1}]")
    for qt in range(4):
        A(f"v_mov_b32 v{Qf(qt,1)+2}, 0")
        A(f"v_mov_b32 v{Qf(qt,1)+3}, 0")
    A(f"s_mov_b64 exec, -1")
    for qt in range(4): A(f"v_mov_b32 v{vM+qt}, 0xff800000")
    A(f"s_mov_b32 s{sKoff}, s{sKbeg}")
    A(f"s_mov_b32 s{sCnt}, 16")
    Lf = name + "_fbloop"
    A.label(Lf)
    A(f"buffer_load_dwordx4 {v(Kf(0,0),4)}, v{vL16}, s[{sK}:{sK+3}], s{sKoff} offen{LDF}")
    A(f"buffer_load_dwordx4 {v(Kf(0,1),4)}, v{vL16}, s[{sK}:{sK+3}], s{sKoff} offen offset:1024{LDF}")
    A(f"s_add_u32 s{sKoff}, s{sKoff}, 2048")
    A("s_waitcnt vmcnt(0)")
    for qt in range(4):
        for m in qk(Sf(0), 0, qt): A(m)
        A.nop(12)
        maxtree(Sf(0), vT[5])
        A(f"v_max_f32 v{vM+qt}, v{vM+qt}, v{vT[5]}")
        A.nop(8)
    A(f"s_sub_u32 s{sCnt}, s{sCnt}, 1")
    A(f"s_cmp_lg_u32 s{sCnt}, 0")
    A(f"s_cbranch_scc1 {Lf}")
    for qt in range(4): crosshalf_max(vM+qt)
    A(f"s_lshl_b32 s{sTmp2}, s{sWV}, 10")
    A(f"v_lshrrev_b32 v{t0}, 2, v{vL16}")
    A(f"v_add_u32 v{t1}, s{sTmp2}, v{t0}")
    for qt in range(4):
        A(f"ds_write_b32 v{t1}, v{vM+qt} offset:{qt*256}")
    A("s_waitcnt lgkmcnt(0)")
    fb_sync(c, sTmp, sTmp2, vT[2], vT[3], 2)
    A(f"v_lshrrev_b32 v{t0}, 2, v{vL16}")
    for qt in range(4):
        for ww in range(4):
            A(f"ds_read_b32 v{E+ww}, v{t0} offset:{ww*1024+qt*256}")
        A("s_waitcnt lgkmcnt(0)")
        A(f"v_max3_f32 v{vM+qt}, v{E}, v{E+1}, v{E+2}")
        A(f"v_max_f32 v{vM+qt}, v{vM+qt}, v{E+3}")
    fb_sync(c, sTmp, sTmp2, vT[2], vT[3], 3)
    for qt in range(4): set_m(qt, vM+qt)
    A(f"s_branch {Lmain}")

def fb_sync(c, sTmp, sTmp2, va, vb, k):
    A = c.A
    L = A.newlabel(c.name + "_fbs"); L2 = A.newlabel(c.name + "_fbsx")
    A("s_waitcnt lgkmcnt(0)")
    A(f"v_mov_b32 v{va}, {65536+16+4*k}")
    A(f"v_mov_b32 v{vb}, 1")
    A("s_mov_b64 exec, 1")
    A(f"ds_add_u32 v{va}, v{vb}")
    A("s_mov_b64 exec, -1")
    A(f"s_mov_b32 s{sTmp2}, {1<<20}")
    A.label(L)
    A(f"ds_read_b32 v{vb}, v{va}")
    A("s_waitcnt lgkmcnt(0)")
    A(f"v_readfirstlane_b32 s{sTmp}, v{vb}")
    A(f"s_sub_u32 s{sTmp2}, s{sTmp2}, 1")
    A(f"s_cmp_eq_u32 s{sTmp2}, 0")
    A(f"s_cbranch_scc1 {L2}")
    A(f"s_cmp_lt_u32 s{sTmp}, 4")
    A(f"s_cbranch_scc1 {L}")
    A.label(L2)

def gemm(c):
    A, ST, name, STF, LDF = c.A, c.ST, c.name, c.STF, c.LDF
    NS = 4
    vLane, vL16 = 1, 2
    vWd, vA0, vA1, vX = 3, 4, 5, 6
    vT = [7, 8, 9, 10]
    XR = 12
    ACC = 20
    AF = 84
    BF = 116
    sWS, sWD, sWO, sX, sOUT = 4, 8, 12, 16, 20
    sTB, sCB, sB, sWoff, sTmp, sTmp2, sLds, sW4 = 28, 29, 31, 32, 33, 34, 38, 39
    l = vLane
    t0, t1, t2, t3 = vT
    Lskip = name + "_gskip"
    c.get_tag(t0, 60)
    if not A.trace:
        A("s_cmp_ge_u32 s2, 224")
        A(f"s_cbranch_scc1 {Lskip}")
    A(f"s_load_dwordx2 s[40:41], s[0:1], 48")
    A(f"s_load_dwordx2 s[42:43], s[0:1], 16")
    A(f"s_load_dwordx2 s[44:45], s[0:1], 0")
    A(f"s_load_dwordx2 s[46:47], s[0:1], 56")
    A(f"s_sub_u32 s{sW4}, s{c.sWV}, 4")
    A(f"s_and_b32 s{sTmp}, s2, 7")
    A(f"s_lshr_b32 s{sTmp2}, s2, 3")
    A(f"s_and_b32 s{sTB}, s{sTmp2}, 3")
    A(f"s_lshl_b32 s{sTmp}, s{sTmp}, 2")
    A(f"s_add_u32 s{sTB}, s{sTB}, s{sTmp}")
    A(f"s_lshr_b32 s{sCB}, s{sTmp2}, 2")
    A(f"v_lshrrev_b32 v{t0}, 3, v{l}")
    A(f"v_and_b32 v{t1}, 7, v{l}")
    A(f"v_bfe_u32 v{t2}, v{l}, 4, 1")
    A(f"v_lshlrev_b32 v{t2}, 2, v{t2}")
    A(f"v_xor_b32 v{t1}, v{t1}, v{t2}")
    A(f"v_lshlrev_b32 v{t1}, 4, v{t1}")
    A(f"v_mul_u32_u24 v{t0}, 896, v{t0}")
    A(f"s_lshl_b32 s{sTmp}, s{sCB}, 7")
    A(f"v_add3_u32 v{vWd}, v{t0}, v{t1}, s{sTmp}")
    A(f"v_lshrrev_b32 v{t0}, 5, v{l}")
    A(f"v_bfe_u32 v{t1}, v{l}, 2, 2")
    A(f"v_lshl_add_u32 v{t0}, v{t0}, 2, v{t1}")
    A(f"v_lshlrev_b32 v{t0}, 7, v{t0}")
    A(f"v_bfe_u32 v{t2}, v{l}, 4, 1")
    A(f"v_bfe_u32 v{t3}, v{l}, 1, 1")
    A(f"v_lshl_add_u32 v{t2}, v{t2}, 1, v{t3}")
    A(f"v_bfe_u32 v{t3}, v{l}, 3, 1")
    A(f"v_lshlrev_b32 v{t3}, 2, v{t3}")
    A(f"v_xor_b32 v{t2}, v{t2}, v{t3}")
    A(f"v_lshl_add_u32 v{t0}, v{t2}, 4, v{t0}")
    A(f"v_and_b32 v{t3}, 1, v{l}")
    A(f"v_lshl_add_u32 v{t0}, v{t3}, 3, v{t0}")
    A(f"s_mul_i32 s{sLds}, s{sW4}, {NS*4096}")
    A(f"s_add_u32 s{sLds}, s{sLds}, {G_LDS}")
    A(f"v_add_u32 v{vA0}, s{sLds}, v{t0}")
    A(f"v_xor_b32 v{vA1}, 64, v{vA0}")
    A(f"s_and_b32 s{sTmp2}, s{sW4}, 1")
    A(f"s_lshl_b32 s{sTmp2}, s{sTmp2}, 5")
    A(f"s_lshl_b32 s{sTmp}, s{sTB}, 6")
    A(f"s_add_u32 s{sTmp2}, s{sTmp2}, s{sTmp}")
    A(f"v_and_b32 v{t0}, 31, v{l}")
    A(f"v_add_u32 v{t0}, s{sTmp2}, v{t0}")
    A(f"v_mul_u32_u24 v{t0}, 896, v{t0}")
    A(f"s_lshr_b32 s{sTmp}, s{sW4}, 1")
    A(f"s_lshl_b32 s{sTmp}, s{sTmp}, 6")
    A(f"s_lshl_b32 s{sTmp2}, s{sCB}, 7")
    A(f"s_add_u32 s{sTmp}, s{sTmp}, s{sTmp2}")
    A(f"v_lshrrev_b32 v{t1}, 5, v{l}")
    A(f"v_lshlrev_b32 v{t1}, 4, v{t1}")
    A(f"v_add3_u32 v{vX}, v{t0}, v{t1}, s{sTmp}")
    A("s_waitcnt lgkmcnt(0)")
    make_srd(A, sWS, c.sWSp, 0x2000000)
    make_srd(A, sWD, 40, SZ_WD)
    make_srd(A, sWO, 42, SZ_WO)
    make_srd(A, sX, 44, SZ_X)
    make_srd(A, sOUT, 46, SZ_OUT)
    NCH = 14
    A(f"s_mul_i32 s{sTmp2}, s{sW4}, {NCH}")
    A(f"s_mul_i32 s{sB}, s{sTB}, {2*144}")
    A(f"s_lshl_b32 s{sTmp}, s{sTmp2}, 1")
    A(f"s_add_u32 s{sB}, s{sB}, s{sTmp}")
    A(f"s_lshl_b32 s{sB}, s{sB}, 10")
    A(f"s_add_u32 s{sB}, s{sB}, {HF}")
    A(f"s_mul_i32 s{sWoff}, s{sTmp2}, {32*896}")

    def issue_w(sl, srd, rowstep_tail):
        for rg in range(4):
            A(f"s_add_u32 m0, s{sLds}, {sl*4096 + rg*1024}")
            if rg: A(f"s_add_u32 s{sWoff}, s{sWoff}, {8*896}")
            else: A("s_nop 0")
            A(f"buffer_load_dwordx4 v{vWd}, s[{srd}:{srd+3}], s{sWoff} offen lds")
        A(f"s_add_u32 s{sWoff}, s{sWoff}, {rowstep_tail}")
    def issue_b(sl):
        A(f"s_add_u32 s{sTmp}, s{sB}, {144*1024}")
        for kb in range(2):
            A(f"buffer_load_dwordx4 {v(BF+16*sl+4*kb,4)}, v{vL16}, s[{sWS}:{sWS+3}], s{sB} offen offset:{kb*1024}{LDF}")
        for kb in range(2):
            A(f"buffer_load_dwordx4 {v(BF+16*sl+8+4*kb,4)}, v{vL16}, s[{sWS}:{sWS+3}], s{sTmp} offen offset:{kb*1024}{LDF}")
        A(f"s_add_u32 s{sB}, s{sB}, 2048")
    def trreads(sl, bb):
        for ct in range(2):
            for kb in range(2):
                for q in range(2):
                    A(f"ds_read_b64_tr_b16 {v(AF+16*bb+8*ct+4*kb+2*q,2)}, v{vA0 if ct==0 else vA1} offset:{sl*4096+(2*kb+q)*1024}")
    def mfmas(sl, bb, first):
        for kb in range(2):
            for ct in range(2):
                for tl in range(2):
                    acc = ACC + 16*(ct*2+tl)
                    cc = "0" if (first and kb == 0) else v(acc,16)
                    A(f"v_mfma_f32_32x32x16_bf16 {v(acc,16)}, {v(AF+16*bb+8*ct+4*kb,4)}, {v(BF+16*sl+8*tl+4*kb,4)}, {cc}")
    for i in range(3): issue_w(i, sWD, 8*896)
    A(f"buffer_load_dwordx4 {v(XR,4)}, v{vX}, s[{sX}:{sX+3}], 0 offen")
    A(f"buffer_load_dwordx4 {v(XR+4,4)}, v{vX}, s[{sX}:{sX+3}], 0 offen offset:32")
    A(f"s_lshr_b32 s{sTmp}, s{sTB}, 1")
    A(f"v_mov_b32 v{t0}, s{sTmp}")
    A(f"v_min_u32 v{t1}, 13, v{l}")
    wg_of(A, t0, t1, t2, t3)
    A(f"v_lshlrev_b32 v{t2}, 6, v{t2}")
    A(f"v_add_u32 v{t2}, {FLAGA}, v{t2}")
    c.poll(t2, t0, sWS, 0, 0xffffffff, 0xffffffff)
    ST.stamp()
    for i in range(3): issue_b(i)
    A("s_waitcnt vmcnt(8)")
    trreads(0, 0)
    def step(i, issue, vm, last=False):
        sl = i % NS; bb = i & 1
        if not last:
            A(f"s_waitcnt vmcnt({vm})")
            trreads((i+1) % NS, bb ^ 1)
            if issue:
                issue_w((i+3) % NS, sWD, 8*896); issue_b((i+3) % NS)
            A("s_waitcnt lgkmcnt(8)")
        else:
            A("s_waitcnt lgkmcnt(0)")
        mfmas(sl, bb, i == 0)
    step(0, True, 4)
    step(1, True, 8)
    step(2, True, 8)
    step(3, True, 8)
    def quad(i0, n_issue):
        for k in range(4):
            step(i0+k, k < n_issue, 8)
    if A.trace:
        quad(4, 4)
    else:
        quad(4, 4)
    step(8, True, 8); step(9, True, 8); step(10, True, 8)
    step(11, False, 8)
    step(12, False, 0)
    step(13, False, 0, last=True)
    ST.stamp()
    A(f"s_mul_i32 s{sWoff}, s{sW4}, {4*28*896}")
    for k in range(4): issue_w(k, sWO, (28-24)*896)
    A(f"s_mul_i32 s{sB}, s{sTB}, {2*144}")
    A(f"s_lshl_b32 s{sTmp}, s{sW4}, 3")
    A(f"s_add_u32 s{sB}, s{sB}, s{sTmp}")
    A(f"s_add_u32 s{sB}, s{sB}, 112")
    A(f"s_lshl_b32 s{sB}, s{sB}, 10")
    A(f"s_add_u32 s{sB}, s{sB}, {HF}")
    A("s_barrier")
    A(f"v_and_b32 v{t0}, 15, v{l}")
    A(f"v_lshrrev_b32 v{t1}, 1, v{t0}")
    A(f"v_and_b32 v{t0}, 1, v{t0}")
    A(f"s_lshr_b32 s{sTmp}, s{sTB}, 1")
    A(f"s_lshl_b32 s{sTmp}, s{sTmp}, 1")
    A(f"v_add_u32 v{t0}, s{sTmp}, v{t0}")
    A(f"v_lshl_add_u32 v{t2}, v{t0}, 3, v{t1}")
    A(f"v_lshlrev_b32 v{t2}, 6, v{t2}")
    A(f"v_add_u32 v{t2}, {FLAGO}, v{t2}")
    c.poll(t2, t0, sWS, 1, 0xffffffff, 0xffffffff)
    ST.stamp()
    for k in range(4): issue_b(k)
    for k in range(4):
        A(f"s_waitcnt vmcnt({12-4*k})")
        trreads(k, k & 1)
        A("s_waitcnt lgkmcnt(0)")
        mfmas(k, k & 1, False)
    A.nop(12)
    A(f"v_add_u32 v{t0}, s{sLds}, v{vL16}")
    for tile in range(4):
        for a_ in range(4):
            A(f"ds_write_b128 v{t0}, {v(ACC+16*tile+4*a_,4)} offset:{(tile*4+a_)*1024}")
    A("s_waitcnt lgkmcnt(0)")
    A("s_barrier")
    R = AF
    A(f"s_lshl_b32 s{sTmp}, s{sW4}, 12")
    A(f"s_add_u32 s{sTmp}, s{sTmp}, {G_LDS}")
    A(f"v_add_u32 v{t0}, s{sTmp}, v{vL16}")
    for ww in range(4):
        for a_ in range(4):
            A(f"ds_read_b128 {v(R+16*ww+4*a_,4)}, v{t0} offset:{ww*16384+a_*1024}")
    A("s_waitcnt lgkmcnt(0)")
    for r in range(16):
        A(f"v_add_f32 v{R+r}, v{R+r}, v{R+16+r}")
        A(f"v_add_f32 v{R+32+r}, v{R+32+r}, v{R+48+r}")
    for r in range(16):
        A(f"v_add_f32 v{R+r}, v{R+r}, v{R+32+r}")
    A("s_nop 1")
    for x in range(2):
        for r in range(4):
            A(f"v_permlane32_swap_b32 v{R+8*x+r}, v{R+8*x+4+r}")
    for x in range(2):
        for r in range(4):
            A(f"v_lshlrev_b32 v{t0}, 16, v{XR+4*x+r}")
            A(f"v_and_b32 v{t1}, 0xffff0000, v{XR+4*x+r}")
            A(f"v_add_f32 v{R+8*x+2*r}, v{R+8*x+2*r}, v{t0}")
            A(f"v_add_f32 v{R+8*x+2*r+1}, v{R+8*x+2*r+1}, v{t1}")
        for r in range(4):
            A(f"v_cvt_pk_bf16_f32 v{XR+4*x+r}, v{R+8*x+2*r}, v{R+8*x+2*r+1}")
    A(f"buffer_store_dwordx4 {v(XR,4)}, v{vX}, s[{sOUT}:{sOUT+3}], 0 offen")
    A(f"buffer_store_dwordx4 {v(XR+4,4)}, v{vX}, s[{sOUT}:{sOUT+3}], 0 offen offset:32")
    if c.stamps:
        A("s_waitcnt vmcnt(0)")
        ST.stamp(real=True)
        ST.flush(2, c.sWV, c.sWSp, t0, t1, sTmp, 60)
    A("s_endpgm")
    if not A.trace:
        A.label(Lskip)
        A("s_barrier")
        A("s_endpgm")
```

```python
from common import *

NAME = "parallel_sum__softmax_full_mha__swiglu_ffn__prompt_kernel"
XB = 14*8192
WSLOT = 10*1024
STATS = XB + 4*WSLOT
LDS_BYTES = STATS + 1024
FLAGA = 24*1024*1024
FLAGO = FLAGA + 65536
FLAGQ = FLAGA + 2*65536
G_LDS = 66560
SPIN_MAX = 1 << 17

class Ctx: pass

def gen(A, stamps=False, exp=(), force_fallback=False, trace=None, stflag="sc0 sc1"):
    name = NAME
    if trace is None: kernel_header(A, name)
    ST = Stamps(A, 76, stamps, 0)
    STF = (" " + stflag) if stflag else ""
    LDF = " sc1"
    sWV = 3
    sWSp = 70
    sDBG = 72
    sTAG = 74
    sTmp, sTmp2, sTmp3 = 35, 36, 37
    Ldone = name + "_done"
    vLane, vL16 = 1, 2

    def flag_srd(d):
        make_srd(A, d, sWSp, 0x2000000)
    def get_tag(vt, srd):
        A(f"s_mov_b32 s{srd}, s{sDBG}"); A(f"s_and_b32 s{srd+1}, s{sDBG+1}, 0xffff"); A(f"s_mov_b32 s{srd+2}, 256"); A(f"s_mov_b32 s{srd+3}, 0x20000")
        L = A.newlabel(name + "_tag")
        A(f"s_mov_b32 s{sTmp2}, {SPIN_MAX}")
        A(f"v_mov_b32 v{vt+1}, 0")
        A.label(L)
        A(f"buffer_load_dword v{vt}, v{vt+1}, s[{srd}:{srd+3}], 0 offen sc0 sc1")
        A("s_waitcnt vmcnt(0)")
        A(f"v_readfirstlane_b32 s{sTAG}, v{vt}")
        A("s_nop 1")
        A(f"s_sub_u32 s{sTmp2}, s{sTmp2}, 1")
        A(f"s_cmp_eq_u32 s{sTmp2}, 0")
        L2 = A.newlabel(name + "_tagx")
        if not A.trace: A(f"s_cbranch_scc1 {L2}")
        A(f"s_cmp_eq_u32 s{sTAG}, 0")
        if not A.trace: A(f"s_cbranch_scc1 {L}")
        A.label(L2)
    def poll(vaddr, vt, srd, add, nlanes_mask_lo, nlanes_mask_hi):
        L = A.newlabel(name + "_poll"); L2 = A.newlabel(name + "_pollx")
        A(f"s_add_u32 s{sTmp3}, s{sTAG}, {add}")
        A(f"s_mov_b32 s{sTmp2}, {SPIN_MAX}")
        A(f"s_mov_b32 s68, {nlanes_mask_lo:#x}"); A(f"s_mov_b32 s69, {nlanes_mask_hi:#x}")
        A.label(L)
        A(f"buffer_load_dword v{vt}, v{vaddr}, s[{srd}:{srd+3}], 0 offen sc0 sc1")
        A("s_waitcnt vmcnt(0)")
        A(f"v_cmp_ne_u32 vcc, s{sTmp3}, v{vt}")
        A("s_nop 3")
        A(f"s_and_b64 vcc, vcc, s[68:69]")
        A(f"s_sub_u32 s{sTmp2}, s{sTmp2}, 1")
        A(f"s_cmp_eq_u32 s{sTmp2}, 0")
        if not A.trace: A(f"s_cbranch_scc1 {L2}")
        A(f"s_cmp_lg_u64 vcc, 0")
        if not A.trace:
            A(f"s_cbranch_scc0 {L2}")
            A("s_sleep 1")
            A(f"s_branch {L}")
        A.label(L2)

    A("s_cmp_ge_u32 s2, 256")
    if not A.trace: A(f"s_cbranch_scc1 {Ldone}")
    ST.stamp(real=True); ST.stamp()
    A("s_load_dwordx2 s[56:57], s[0:1], 0")
    A("s_load_dwordx2 s[58:59], s[0:1], 8")
    A("s_load_dwordx4 s[60:63], s[0:1], 32")
    A(f"s_load_dwordx2 s[{sWSp}:{sWSp+1}], s[0:1], 72")
    A(f"s_load_dwordx2 s[{sDBG}:{sDBG+1}], s[0:1], 64")
    A("s_load_dwordx2 s[66:67], s[0:1], 16")
    A("s_load_dwordx2 s[64:65], s[0:1], 48")
    l = vLane
    A(f"v_and_b32 v{l}, 63, v0")
    A(f"v_lshrrev_b32 v9, 6, v0")
    A(f"v_lshlrev_b32 v{vL16}, 4, v{l}")
    A(f"v_readfirstlane_b32 s{sWV}, v9")

    c = Ctx()
    c.A, c.ST, c.name, c.exp, c.STF, c.LDF = A, ST, name, exp, STF, LDF
    c.sWV, c.sWSp, c.sDBG, c.sTAG = sWV, sWSp, sDBG, sTAG
    c.get_tag, c.poll, c.flag_srd = get_tag, poll, flag_srd
    c.force_fallback = force_fallback
    c.stamps = stamps
    import fa, fb
    if trace is not None:
        kind = trace[0]
        if kind == "A":
            fa.phaseA(c, only=trace[1:])
        elif kind == "attn":
            A("s_waitcnt lgkmcnt(0)")
            fb.attention(c)
        elif kind == "gemm":
            A("s_waitcnt lgkmcnt(0)")
            fb.gemm(c)
        return 256
    LB = name + "_phaseB"
    c.LB = LB
    fa.phaseA(c)
    A.label(LB)
    ST.n = c.nstamp_after_A
    ST.stamp()
    Lg = name + "_gemm"
    A(f"s_cmp_ge_u32 s{sWV}, 4")
    A(f"s_cbranch_scc1 {Lg}")
    n0 = ST.n
    fb.attention(c)
    A.label(Lg)
    ST.n = n0
    fb.gemm(c)
    A.label(Ldone)
    A("s_endpgm")
    return 256
```

```python
import sys
from common import *
import common, fused
def build(path, stamps=False, **kw):
    A = Asm()
    hdr = open("parallel_sum__softmax_full_mha__swiglu_ffn__prompt.s.ref").read().split("\n")
    for ln in hdr:
        if ln.startswith(";") and "@launch" not in ln and "Override launch" not in ln and "grid=ceil" not in ln:
            A.lines.append(ln)
        if not ln.startswith(";"): break
    A.lines.append(f"; @launch grid=(256,1,1) block=(512,1,1) lds={fused.LDS_BYTES}")
    A('.amdgcn_target "amdgcn-amd-amdhsa--gfx950"')
    nv = fused.gen(A, stamps=stamps, **kw)
    kernel_desc(A, fused.NAME, nv, 100)
    open(path, "w").write(A.text())
def check():
    e = []
    for role in (0,1):
        for isV in (False,True):
            for th in ((0,1) if role else (0,)):
                T = Asm(trace=True); fused.gen(T, trace=("A",role,isV,th)); e += check_trace(T.lines, f"A r{role} v{isV} t{th}")
    T = Asm(trace=True); fused.gen(T, trace=("attn",)); e += check_trace(T.lines, "attn")
    T = Asm(trace=True); fused.gen(T, trace=("gemm",)); e += check_trace(T.lines, "gemm")
    for x in e[:30]: print(x)
    print("hazard errors:", len(e))
if __name__ == "__main__":
    check()
    build("fused.s")
    build("fused_s.s", stamps=True)
    build("fused_fb.s", force_fallback=True)
    common.ALLREAL = True
    build("fused_rt_s.s", stamps=True)
```

```python
from common import *
XB = 14*8192
WSLOT = 8192
NSL = 4
CNT = XB + 5*WSLOT
FLAGA = 24*1024*1024
FLAGQ = FLAGA + 2*65536

def phaseA(c, only=None):
    A, ST, name, exp, STF = c.A, c.ST, c.name, c.exp, c.STF
    sWV = c.sWV
    vLane, vL16 = 1, 2
    vXe, vXo, vW = 3, 4, 5
    vD = [6, 7, 8]
    vT = [9, 10, 11, 12, 13]
    vR, vNMR = 14, 15
    F = 16
    ACC = 56
    vD1, vD2, vW1, vX1e, vX1o = 152, 153, 154, 155, 157
    vTAG, vZ = 156, 158
    vPA, vPQ = 160, 161
    PF = 164
    def FX(b, tl): return F + 16*b + 4*tl
    def FW(b, t): return F + 16*b + 8 + 4*t
    def AC(t, tl): return ACC + 32*t + 16*tl
    sX, sA, sQK, sWS, sWM, sU = 4, 8, 16, 20, 12, 52
    sRB, sG, sTH, sCH = 24, 25, 27, 28
    sStep2, sK1, sK2, sM1, sM2 = 29, 30, 31, 32, 33
    sCnt, sTmp, sTmp2, sTmp3 = 34, 35, 36, 37
    sTyA, sE, sScale, sPad2, sPad3 = 38, 39, 40, 41, 42
    sTT0, sTT1, sFB = 43, 44, 45
    sHi = 46
    sRole, sAi, sSlot, sDel, sNoD = 48, 49, 50, 51, 56+0
    sNoD = 26
    l = vLane
    t0, t1, t2, t3, t4 = vT

    def setup():
        A(f"s_and_b32 s{sTmp}, s2, 7")
        A(f"s_lshr_b32 s{sTmp2}, s2, 3")
        A(f"s_and_b32 s{sRB}, s{sTmp}, 1")
        A(f"s_lshl_b32 s{sRB}, s{sRB}, 3")
        A(f"s_and_b32 s{sTmp3}, s{sTmp2}, 7")
        A(f"s_add_u32 s{sRB}, s{sRB}, s{sTmp3}")
        A(f"s_lshr_b32 s{sG}, s{sTmp}, 1")
        A(f"s_lshl_b32 s{sG}, s{sG}, 2")
        A(f"s_lshr_b32 s{sTmp3}, s{sTmp2}, 3")
        A(f"s_add_u32 s{sG}, s{sG}, s{sTmp3}")
        A(f"v_lshrrev_b32 v{t0}, 2, v{l}")
        A(f"v_and_b32 v{t1}, 3, v{l}")
        A(f"v_bfe_u32 v{t2}, v{l}, 4, 2")
        A(f"v_xor_b32 v{t2}, v{t2}, v{t1}")
        A(f"s_lshl_b32 s{sTmp}, s{sRB}, 7")
        A(f"s_lshl_b32 s{sTmp2}, s{sWV}, 4")
        A(f"s_add_u32 s{sTmp}, s{sTmp}, s{sTmp2}")
        A(f"v_add_u32 v{t3}, s{sTmp}, v{t0}")
        A(f"v_mul_u32_u24 v{t3}, 896, v{t3}")
        A(f"v_lshl_add_u32 v{vD[0]}, v{t2}, 4, v{t3}")
        A(f"s_lshl_b32 s{sTmp3}, s{sWV}, 10")
        A("s_waitcnt lgkmcnt(0)")
        make_srd(A, sX, 56, SZ_X)
        A(f"v_mov_b32 v{vZ}, 0"); A(f"v_mov_b32 v{vZ+1}, 0")
        for i in range(14):
            A(f"s_add_u32 m0, s{sTmp3}, {i*8192}")
            A(f"s_movk_i32 s{sTmp}, {64*i}")
            A(f"buffer_load_dwordx4 v{vD[0]}, s[{sX}:{sX+3}], s{sTmp} offen lds")
        if not A.trace:
            Lt = name + "_notag"
            A(f"s_or_b32 s{sTmp}, s2, s{sWV}")
            A(f"s_cmp_lg_u32 s{sTmp}, 0")
            A(f"s_cbranch_scc1 {Lt}")
            A(f"s_memrealtime s[52:53]")
            A(f"s_mov_b32 s12, s{c.sDBG}"); A(f"s_and_b32 s13, s{c.sDBG+1}, 0xffff"); A("s_mov_b32 s14, 256"); A("s_mov_b32 s15, 0x20000")
            A("s_waitcnt lgkmcnt(0)")
            A(f"s_lshl_b32 s{sTmp}, s52, 2")
            A(f"s_or_b32 s{sTmp}, s{sTmp}, 0x80000000")
            A(f"v_mov_b32 v{t3}, s{sTmp}")
            A(f"v_mov_b32 v{t4}, 0")
            A("s_mov_b64 exec, 1")
            A(f"buffer_store_dword v{t3}, v{t4}, s[12:15], 0 offen sc0 sc1")
            A("s_mov_b64 exec, -1")
            A.label(Lt)
        A(f"s_mov_b32 s12, s{c.sDBG}"); A(f"s_and_b32 s13, s{c.sDBG+1}, 0xffff"); A("s_mov_b32 s14, 256"); A("s_mov_b32 s15, 0x20000")
        A(f"v_mov_b32 v{t4}, 0")
        A(f"buffer_load_dword v{vTAG}, v{t4}, s[12:15], 0 offen sc0 sc1")
        A(f"v_mov_b32 v{t3}, {CNT}")
        A(f"ds_write_b64 v{t3}, v[{vZ}:{vZ+1}]")
        make_srd(A, sWS, c.sWSp, 0x2000000)
        make_srd(A, sQK, 58, SZ_WQKV)
        A(f"v_add_u32 v{vD[1]}, s{sTmp3}, v{vL16}")
        A(f"s_and_b32 s{sTH}, s{sWV}, 1")
        A(f"s_bfe_u32 s{sCH}, s{sWV}, 0x10001")
        A(f"s_lshr_b32 s{sRole}, s{sWV}, 2")
        A(f"s_lshr_b32 s{sAi}, s{sG}, 1")
        A(f"s_and_b32 s{sTyA}, s{sG}, 1")
        A(f"s_xor_b32 s{sTyA}, s{sTyA}, 1")
        A(f"s_cmp_eq_u32 s{sTH}, 0")
        A(f"s_cselect_b32 s{sA}, s60, s62"); A(f"s_cselect_b32 s{sA+1}, s61, s63")
        for r in (sA,):
            A(f"s_and_b32 s{r+1}, s{r+1}, 0xffff"); A(f"s_mov_b32 s{r+2}, {SZ_WG}"); A(f"s_mov_b32 s{r+3}, 0x20000")
        A(f"s_lshl_b32 s{sTmp}, s{sAi}, 1")
        A(f"s_add_u32 s{sTmp}, s{sTmp}, s{sCH}")
        A(f"s_mul_i32 s{sTmp2}, s{sTmp}, 56")
        A(f"s_cmp_eq_u32 s{sRole}, 0")
        A(f"s_cselect_b32 s{sTmp3}, 1792, 0")
        A(f"s_cselect_b32 s{sE}, 32, 0")
        A(f"s_cmp_eq_u32 s{sTyA}, 1")
        A(f"s_cselect_b32 s{sTmp3}, s{sTmp3}, 896")
        A(f"s_cselect_b32 s{sE}, s{sE}, 16")
        A(f"s_add_u32 s{sTmp2}, s{sTmp2}, s{sTmp3}")
        A(f"s_add_u32 s{sE}, s{sE}, s{sTmp}")
        A(f"v_mul_u32_u24 v{t2}, 2688, v{t0}")
        A(f"v_lshl_add_u32 v{t2}, v{t1}, 4, v{t2}")
        A(f"v_add_u32 v{vD1}, s{sTmp2}, v{t2}")
        A(f"s_lshl_b32 s{sTmp}, s{sRole}, 1")
        A(f"s_add_u32 s{sTmp}, s{sTmp}, s{sCH}")
        A(f"s_lshl_b32 s{sTmp2}, s{sTH}, 2")
        A(f"s_add_u32 s{sTmp2}, s{sTmp2}, s{sTmp}")
        A(f"s_lshl_b32 s{sTmp3}, s{sTH}, 1")
        A(f"s_add_u32 s{sTmp3}, s{sTmp3}, s{sRole}")
        A(f"s_lshl_b32 s{sM1}, s{sTmp3}, 1")
        A(f"s_add_u32 s{sM1}, s{sM1}, s{sCH}")
        A(f"s_cmp_eq_u32 s{sTyA}, 1")
        A(f"s_cselect_b32 s{sM1}, s{sTmp2}, s{sM1}")
        A(f"s_cselect_b32 s{sTmp3}, s{sTH}, s{sTmp3}")
        A(f"s_cselect_b32 s{sTmp}, s{sTmp}, s{sCH}")
        A(f"s_lshl_b32 s{sM1}, s{sM1}, 10")
        A(f"s_add_u32 s{sM1}, s{sM1}, {XB}")
        A(f"s_mul_i32 s{sK1}, s{sTmp3}, {16*2688}")
        A(f"v_lshrrev_b32 v{t2}, 5, v{l}")
        A(f"v_lshlrev_b32 v{t2}, 9, v{t2}")
        A(f"v_bfe_u32 v{t3}, v{l}, 2, 2")
        A(f"v_lshl_add_u32 v{t2}, v{t3}, 6, v{t2}")
        A(f"v_bfe_u32 v{t3}, v{l}, 4, 1")
        A(f"v_lshl_add_u32 v{t2}, v{t3}, 5, v{t2}")
        A(f"v_lshl_add_u32 v{t2}, v{t1}, 3, v{t2}")
        A(f"s_lshl_b32 s{sTmp}, s{sTmp}, 10")
        A(f"s_add_u32 s{sTmp}, s{sTmp}, {XB}")
        A(f"v_add_u32 v{vW1}, s{sTmp}, v{t2}")
        A(f"s_mul_i32 s{sTmp}, s{sAi}, 3")
        A(f"s_lshl_b32 s{sTmp2}, s{sCH}, 1")
        A(f"s_cmp_eq_u32 s{sRole}, 0")
        A(f"s_cselect_b32 s{sTmp3}, s{sTmp2}, 1")
        A(f"s_add_u32 s{sTmp}, s{sTmp}, s{sTmp3}")
        A(f"s_add_u32 s{sTmp2}, s{sTmp2}, s{sRole}")
        A(f"s_lshl_b32 s{sFB}, s{sAi}, 2")
        A(f"s_add_u32 s{sFB}, s{sFB}, 24")
        A(f"s_add_u32 s{sFB}, s{sFB}, s{sTmp2}")
        A(f"s_cmp_eq_u32 s{sTyA}, 1")
        A(f"s_cselect_b32 s{sFB}, s{sTmp}, s{sFB}")
        A(f"s_cselect_b32 s{sTmp3}, s{sTmp3}, s{sTmp2}")
        A(f"s_lshl_b32 s{sTmp}, s{sFB}, 6")
        A(f"v_mul_u32_u24 v{t3}, 3584, v{t0}")
        A(f"v_lshl_add_u32 v{t3}, v{t1}, 4, v{t3}")
        A(f"v_add_u32 v{vD2}, s{sTmp}, v{t3}")
        A(f"s_lshl_b32 s{sTmp3}, s{sTmp3}, 11")
        A(f"s_add_u32 s{sTmp3}, s{sTmp3}, {XB}")
        A(f"v_add_u32 v{vW}, s{sTmp3}, v{t2}")
        A(f"s_lshl_b32 s{sM2}, s{sTH}, 10")
        A(f"s_add_u32 s{sM2}, s{sM2}, s{sTmp3}")
        A(f"s_lshl_b32 s{sFB}, s{sFB}, 1")
        A(f"s_mov_b32 s{sK2}, 0")
        A(f"s_and_b32 s{sNoD}, s{sTyA}, s{sRole}")
        A(f"s_and_b32 s{sNoD}, s{sNoD}, s{sCH}")
        A(f"s_mov_b32 s{sHi}, 0"); A(f"s_mov_b32 s{sHi+1}, -1")
        A(f"v_and_b32 v{t2}, 31, v{l}")
        A(f"v_lshrrev_b32 v{t3}, 5, v{l}")
        A(f"v_bfe_u32 v{t4}, v{l}, 2, 2")
        A(f"v_xor_b32 v{t3}, v{t3}, v{t4}")
        A(f"v_lshlrev_b32 v{t3}, 4, v{t3}")
        A(f"v_lshl_add_u32 v{t2}, v{t2}, 6, v{t3}")
        A(f"s_lshl_b32 s{sTmp}, s{sTH}, 12")
        A(f"v_add_u32 v{vXe}, s{sTmp}, v{t2}")
        A(f"v_xor_b32 v{vXo}, 32, v{vXe}")
        A(f"s_lshl_b32 s{sTmp}, s{sRole}, 11")
        A(f"v_add_u32 v{vX1e}, s{sTmp}, v{vXe}")
        A(f"v_xor_b32 v{vX1o}, 32, v{vX1e}")
        A(f"s_lshl_b32 s{sTT0}, s{sRB}, 2")
        A(f"s_lshl_b32 s{sTmp}, s{sTH}, 1")
        A(f"s_add_u32 s{sTT0}, s{sTT0}, s{sTmp}")
        A(f"s_add_u32 s{sTT1}, s{sTT0}, 1")

    def prefetch():
        A(f"v_lshrrev_b32 v{t2}, 4, v{l}")
        A(f"v_lshlrev_b32 v{t2}, 4, v{t2}")
        A(f"v_bfe_u32 v{t3}, v{l}, 3, 1")
        A(f"v_add_u32 v{t2}, v{t2}, v{t3}")
        A(f"v_and_b32 v{t3}, 7, v{l}")
        A(f"v_lshlrev_b32 v{t3}, 4, v{t3}")
        A(f"v_mul_u32_u24 v{vPA}, 3584, v{t2}")
        A(f"v_add_u32 v{vPA}, v{vPA}, v{t3}")
        A(f"v_mul_u32_u24 v{vPQ}, 2688, v{t2}")
        A(f"v_add_u32 v{vPQ}, v{vPQ}, v{t3}")
        A(f"s_and_b32 s{sTmp}, s{sRB}, 7")
        A(f"s_lshl_b32 s{sTmp}, s{sTmp}, 1")
        A(f"s_mul_i32 s{sTmp2}, s{sAi}, 112")
        A(f"s_cmp_eq_u32 s{sTH}, 0")
        A(f"s_cselect_b32 s{sTmp3}, 1792, 0")
        A(f"s_cmp_eq_u32 s{sTyA}, 1")
        A(f"s_cselect_b32 s{sTmp3}, s{sTmp3}, 896")
        A(f"s_add_u32 s{sTmp2}, s{sTmp2}, s{sTmp3}")
        A(f"s_lshl_b32 s{sTmp3}, s{sCH}, 6")
        A(f"s_add_u32 s{sTmp3}, s{sTmp3}, s{sTmp}")
        A(f"s_mul_i32 s{sTmp3}, s{sTmp3}, 2688")
        A(f"s_add_u32 s{sScale}, s{sTmp3}, s{sTmp2}")
        A(f"s_mul_i32 s{sTmp2}, s{sAi}, 192")
        A(f"s_lshl_b32 s{sTmp3}, s{sAi}, 8")
        A(f"s_add_u32 s{sTmp3}, s{sTmp3}, {24*64}")
        A(f"s_cmp_eq_u32 s{sTyA}, 1")
        A(f"s_cselect_b32 s{sTmp2}, s{sTmp2}, s{sTmp3}")
        A(f"s_lshl_b32 s{sTmp3}, s{sCH}, 7")
        A(f"s_add_u32 s{sTmp2}, s{sTmp2}, s{sTmp3}")
        A(f"s_mul_i32 s{sTmp3}, s{sTmp}, 3584")
        A(f"s_add_u32 s{sPad2}, s{sTmp2}, s{sTmp3}")
        n = [0]
        def ld(vrow, srd, soff, off=0):
            t_ = f"buffer_load_dwordx4 {v(PF+4*n[0],4)}, v{vrow}, s[{srd}:{srd+3}], s{soff} offen" + (f" offset:{off}" if off else "")
            n[0] += 1
            return t_
        gq, ga, gb = [], [], []
        for m in range(4):
            gq += [ld(vPQ, sQK, sScale), f"s_add_u32 s{sScale}, s{sScale}, {128*2688}"]
        for m in range(7):
            (ga if m < 4 else gb).extend([ld(vPA, sA, sPad2), f"s_add_u32 s{sPad2}, s{sPad2}, {64*3584}"])
        gb += [f"s_lshl_b32 s{sTmp}, s2, 2", f"s_add_u32 s{sTmp}, s{sTmp}, s{sWV}", f"s_lshl_b32 s{sTmp}, s{sTmp}, 11",
               f"s_mov_b32 s{sWM}, s64", f"s_and_b32 s{sWM+1}, s65, 0xffff", f"s_mov_b32 s{sWM+2}, {SZ_WD}", f"s_mov_b32 s{sWM+3}, 0x20000",
               f"s_cmp_lt_u32 s{sTmp}, {SZ_WD}", f"s_cselect_b32 s{sWM}, s{sWM}, s66", f"s_cselect_b32 s{sWM+1}, s{sWM+1}, s67",
               f"s_cselect_b32 s{sWM+2}, s{sWM+2}, {SZ_WO}", f"s_cselect_b32 s{sTmp2}, 0, {SZ_WD}",
               f"s_and_b32 s{sWM+1}, s{sWM+1}, 0xffff", f"s_sub_u32 s{sPad3}, s{sTmp}, s{sTmp2}",
               ld(vL16, sWM, sPad3), ld(vL16, sWM, sPad3, 1024)]
        return gq, ga, gb

    def dma1(slot_imm=None):
        L = []
        if slot_imm is None: L.append(f"s_add_u32 m0, s{sM1}, s{sSlot}")
        else: L.append(f"s_add_u32 m0, s{sM1}, {slot_imm*WSLOT}")
        L += ["s_nop 0", f"buffer_load_dwordx4 v{vD1}, s[{sQK}:{sQK+3}], s{sK1} offen lds", f"s_add_u32 s{sK1}, s{sK1}, s{sDel}"]
        return L

    def ln():
        RB = [F, F+4]
        A(f"v_mov_b32 v{t4}, 0x3f803f80")
        for r in (t0, t1, t2, t3): A(f"v_mov_b32 v{r}, 0")
        A(f"v_add_u32 v{vD[0]}, 0x10000, v{vD[1]}")
        A(f"s_cmp_eq_u32 s{sTyA}, 1")
        A(f"s_mov_b32 s{sDel}, {64*2688}")
        A(f"s_cselect_b32 s{sDel}, {32*2688}, s{sDel}")
        def rd(i, dst):
            if i*8192 < 65536: A(f"ds_read_b128 {v(dst,4)}, v{vD[1]} offset:{i*8192}")
            else: A(f"ds_read_b128 {v(dst,4)}, v{vD[0]} offset:{i*8192-65536}")
        A(f"s_waitcnt vmcnt(14)")
        rd(0, RB[0])
        for i in range(14):
            if i+1 < 14:
                A(f"s_waitcnt vmcnt({13-i})")
                rd(i+1, RB[(i+1) & 1])
                A("s_waitcnt lgkmcnt(1)")
            else:
                A("s_waitcnt lgkmcnt(0)")
            for k in range(4):
                R = RB[i & 1]+k
                A(f"v_dot2c_f32_bf16 v{t0 if k%2==0 else t1}, v{R}, v{t4}")
                A(f"v_dot2c_f32_bf16 v{t2 if k%2==0 else t3}, v{R}, v{R}")
        A("s_waitcnt vmcnt(0)")
        ST.stamp()
        RA = [F+8, F+12]; T = [F+16+k for k in range(8)]
        A(f"ds_read_b128 {v(RA[0],4)}, v{vD[1]}")
        A(f"v_readfirstlane_b32 s{c.sTAG}, v{vTAG}")
        for x_ in dma1(0) + dma1(1): A(x_)
        A(f"v_add_f32 v{t0}, v{t0}, v{t1}")
        A(f"v_add_f32 v{t2}, v{t2}, v{t3}")
        for qp in ("[1,0,3,2]", "[2,3,0,1]"):
            A("s_nop 1")
            A(f"v_add_f32_dpp v{t0}, v{t0}, v{t0} quad_perm:{qp} row_mask:0xf bank_mask:0xf")
            A(f"v_add_f32_dpp v{t2}, v{t2}, v{t2} quad_perm:{qp} row_mask:0xf bank_mask:0xf")
        A(f"v_mul_f32 v{t0}, {f2u(1.0/448):#x}, v{t0}")
        A(f"v_mul_f32 v{t2}, {f2u(1.0/448):#x}, v{t2}")
        A(f"v_fma_f32 v{t2}, -v{t0}, v{t0}, v{t2}")
        A(f"v_max_f32 v{t2}, 0, v{t2}")
        A(f"v_add_f32 v{t2}, {f2u(1e-5):#x}, v{t2}")
        A(f"v_rsq_f32 v{vR}, v{t2}")
        A("s_nop 0")
        A(f"v_mul_f32 v{t0}, v{t0}, v{vR}")
        A(f"v_sub_f32 v{vNMR}, 0, v{t0}")
        def norm(R0):
            R = [R0+k for k in range(4)]
            for k in range(4):
                A(f"v_lshlrev_b32 v{T[2*k]}, 16, v{R[k]}")
                A(f"v_and_b32 v{T[2*k+1]}, 0xffff0000, v{R[k]}")
            for k in range(8):
                A(f"v_fma_f32 v{T[k]}, v{T[k]}, v{vR}, v{vNMR}")
            for k in range(4):
                A(f"v_cvt_pk_bf16_f32 v{R[k]}, v{T[2*k]}, v{T[2*k+1]}")
        def nbody(last):
            A(f"ds_read_b128 {v(RA[1],4)}, v{vD[1]} offset:8192")
            A("s_waitcnt lgkmcnt(1)")
            norm(RA[0])
            A(f"ds_write_b128 v{vD[1]}, {v(RA[0],4)}")
            if not last:
                A(f"ds_read_b128 {v(RA[0],4)}, v{vD[1]} offset:16384")
            A(f"s_waitcnt lgkmcnt({2 if not last else 1})")
            norm(RA[1])
            A(f"ds_write_b128 v{vD[1]}, {v(RA[1],4)} offset:8192")
            if not last:
                A(f"v_add_u32 v{vD[1]}, 16384, v{vD[1]}")
        if A.trace:
            for it in range(6): nbody(False)
        else:
            Ln = A.newlabel(name + "_ln")
            A(f"s_mov_b32 s{sCnt}, 6")
            A.label(Ln)
            nbody(False)
            A(f"s_sub_u32 s{sCnt}, s{sCnt}, 1")
            A(f"s_cmp_lg_u32 s{sCnt}, 0")
            A(f"s_cbranch_scc1 {Ln}")
        nbody(True)
        for x_ in dma1(2): A(x_)
        if A.trace:
            if c.trace_role == 0:
                c.pf = prefetch()
                for x_ in c.pf[0]: A(x_)
        else:
            Lq = A.newlabel(name + "_qskip")
            A(f"s_cmp_ge_u32 s{sWV}, 4")
            A(f"s_cbranch_scc1 {Lq}")
            c.pf = prefetch()
            for x_ in c.pf[0]: A(x_)
            A.label(Lq)
            Lt = A.newlabel(name + "_havetag")
            A(f"s_cmp_lg_u32 s{c.sTAG}, 0")
            A(f"s_cbranch_scc1 {Lt}")
            c.get_tag(t0, 52)
            A.label(Lt)
        return 4

    def arrive(off, total_s, flagbase):
        A(f"v_mov_b32 v{t0}, {CNT+off}")
        A(f"v_mov_b32 v{t1}, 1")
        A("s_mov_b64 exec, 1")
        A(f"ds_add_rtn_u32 v{t1}, v{t0}, v{t1}")
        A("s_waitcnt lgkmcnt(0)")
        A("s_mov_b64 exec, -1")
        A(f"v_readfirstlane_b32 s{sTmp}, v{t1}")
        A("s_nop 3")
        A(f"s_cmp_lg_u32 s{sTmp}, {total_s-1}")
        L = A.newlabel(name + "_arr")
        if not A.trace: A(f"s_cbranch_scc1 {L}")
        A(f"s_lshl_b32 s{sTmp}, s2, 6")
        A(f"s_add_u32 s{sTmp}, s{sTmp}, {flagbase}")
        A(f"v_mov_b32 v{t0}, s{c.sTAG}")
        A(f"v_mov_b32 v{t1}, 0")
        A("s_mov_b64 exec, 1")
        A(f"buffer_store_dword v{t0}, v{t1}, s[{sWS}:{sWS+3}], s{sTmp} offen sc0 sc1")
        A("s_mov_b64 exec, -1")
        A.label(L)

    def store_frags(src8, soff):
        A(f"buffer_store_dwordx4 {v(src8,4)}, v{vL16}, s[{sWS}:{sWS+3}], s{soff} offen{STF}")
        A(f"buffer_store_dwordx4 {v(src8+4,4)}, v{vL16}, s[{sWS}:{sWS+3}], s{soff} offen offset:1024{STF}")

    def pass1(kind, npf_P):
        nks = 2 if kind != 'K' else 4
        ntl = 2 if kind != 'K' else 1
        nst = 28//nks
        blkstride = 4096 if kind != 'K' else 2048
        xe, xo = (vXe, vXo) if kind != 'K' else (vX1e, vX1o)
        FB = lambda b: F + 16*b
        def reads(b, ks, slot_off_v):
            L = []
            for q in range(2):
                L.append(f"ds_read_b64_tr_b16 {v(FB(b)+8+2*q,2)}, v{slot_off_v} offset:{ks*blkstride + q*256}")
            ad = xe if ks % 2 == 0 else xo
            for tl in range(ntl):
                L.append(f"ds_read_b128 {v(FB(b)+4*tl,4)}, v{ad} offset:{(ks//2)*8192 + tl*2048}")
            return L
        def mfm(b, first):
            L = []
            for tl in range(ntl):
                acc = ACC + 16*tl
                cc = "0" if first else v(acc,16)
                if kind == 'V': L.append(f"v_mfma_f32_32x32x16_bf16 {v(acc,16)}, {v(FB(b)+4*tl,4)}, {v(FB(b)+8,4)}, {cc}")
                else: L.append(f"v_mfma_f32_32x32x16_bf16 {v(acc,16)}, {v(FB(b)+8,4)}, {v(FB(b)+4*tl,4)}, {cc}")
            return L
        def stage(first, last, vm, do_dma, pre=()):
            for ks in range(nks):
                b = ks & 1
                A("s_waitcnt lgkmcnt(0)")
                M = mfm(b, first and ks == 0)
                if ks + 1 < nks:
                    A(M[0])
                    for x_ in reads(b ^ 1, ks+1, vW1): A(x_)
                    for m in M[1:]: A(m)
                    if ks == 0:
                        for x_ in pre: A(x_)
                else:
                    A(M[0])
                    if last:
                        for m in M[1:]: A(m)
                        return
                    A(f"s_waitcnt vmcnt({vm})")
                    A("s_barrier")
                    A(f"s_add_u32 s{sSlot}, s{sSlot}, {WSLOT}")
                    A(f"s_cmp_eq_u32 s{sSlot}, {NSL*WSLOT}")
                    A(f"s_movk_i32 s{sTmp}, {WSLOT}")
                    A(f"s_cselect_b32 s{sTmp}, {(-(NSL-1)*WSLOT) & 0xffffffff}, s{sTmp}")
                    A(f"s_cselect_b32 s{sSlot}, 0, s{sSlot}")
                    A(f"v_add_u32 v{vW1}, s{sTmp}, v{vW1}")
                    A(f"v_add_u32 v{xe}, {(nks//2)*8192}, v{xe}")
                    A(f"v_add_u32 v{xo}, {(nks//2)*8192}, v{xo}")
                    for x_ in reads(0, 0, vW1): A(x_)
                    for m in M[1:]: A(m)
                    if do_dma:
                        A(f"s_add_u32 s{sTmp}, s{sSlot}, {(NSL-1)*WSLOT}")
                        A(f"s_cmp_ge_u32 s{sTmp}, {NSL*WSLOT}")
                        A(f"s_cselect_b32 s{sTmp2}, {NSL*WSLOT}, 0")
                        A(f"s_sub_u32 s{sTmp}, s{sTmp}, s{sTmp2}")
                        A(f"s_add_u32 m0, s{sM1}, s{sTmp}")
                        A("s_nop 0")
                        A(f"buffer_load_dwordx4 v{vD1}, s[{sQK}:{sQK+3}], s{sK1} offen lds")
                        A(f"s_add_u32 s{sK1}, s{sK1}, s{sDel}")
        return stage, reads, nst

    def run_pass1(kind, role):
        stage, reads, nst = pass1(kind, c.npf)
        isP = role == 0
        fifo = ["st0", "st1", "st2"] + (["pf"]*4 if isP else []) + ["st3"]
        def need(tagname):
            i = len(fifo) - 1 - fifo[::-1].index(tagname)
            return len(fifo) - 1 - i
        for x_ in dma1(3): A(x_)
        A(f"s_mov_b32 s{sSlot}, 0")
        A(f"s_waitcnt vmcnt({need('st0')}) lgkmcnt(0)")
        A("s_barrier")
        ST.stamp()
        for x_ in reads(0, 0, vW1): A(x_)
        tag = f"{name}_p1{kind}{role}"
        def nloads(L): return sum(1 for x_ in L if x_.startswith("buffer_load"))
        def one(s_, pre=()):
            fifo.extend(["pf"]*nloads(pre))
            last = s_ == nst-1
            vm = None if last else need(f"st{s_+1}")
            dd = s_+4 <= nst-1
            stage(s_ == 0, last, vm, dd, pre)
            if dd: fifo.append(f"st{s_+4}")
        pres = {0: c.pf[1], 1: c.pf[2]} if isP else {}
        nexp = 5 if isP else 2
        s_ = 0
        while s_ < nst:
            if s_ >= nexp and s_+4 <= nst-1:
                cnt = (nst-5) - s_ + 1
                assert need(f"st{s_+1}") == 2, (kind, role, s_, fifo)
                if A.trace or cnt == 1:
                    for it in range(cnt): one(s_+it)
                else:
                    A(f"s_mov_b32 s{sCnt}, {cnt}")
                    A.label(tag + "_loop")
                    stage(False, False, 2, True)
                    A(f"s_sub_u32 s{sCnt}, s{sCnt}, 1")
                    A(f"s_cmp_lg_u32 s{sCnt}, 0")
                    A(f"s_cbranch_scc1 {tag}_loop")
                    for it in range(cnt): fifo.append(f"st{s_+it+4}")
                s_ += cnt
            else:
                one(s_, pres.get(s_, ()))
                s_ += 1
        A("s_barrier")
        ST.stamp()

    def epilogue1(kind):
        ntl = 2 if kind != 'K' else 1
        if kind == 'V':
            A(f"v_cmp_eq_u32 vcc, 28, v{l}" )
            A(f"v_cmp_eq_u32 s[4:5], 60, v{l}")
            A("s_nop 3")
            A("s_or_b64 s[4:5], s[4:5], vcc")
        for tl in range(ntl):
            C = ACC + 16*tl
            if kind == 'Q':
                A(f"s_mov_b32 s{sScale}, {f2u(CSCALE):#x}")
                for i in range(16): A(f"v_mul_f32 v{C+i}, s{sScale}, v{C+i}")
            for r in range(8):
                A(f"v_cvt_pk_bf16_f32 v{C+r}, v{C+2*r}, v{C+2*r+1}")
            if kind == 'V':
                A(f"s_mov_b64 exec, s[4:5]")
                for r in range(8): A(f"v_mov_b32 v{C+r}, 0x3f803f80")
            else:
                A(f"s_mov_b64 exec, s[{sHi}:{sHi+1}]")
                A(f"v_mov_b32 v{C+6}, {0 if kind == 'Q' else 0x3f803f80:#x}")
                A(f"v_mov_b32 v{C+7}, {0 if kind == 'Q' else 0x00003f80:#x}")
            A(f"s_mov_b64 exec, -1")
            A(f"s_lshl_b32 s{sTmp}, s{sE}, 6")
            if kind == 'K':
                A(f"s_add_u32 s{sTmp}, s{sTmp}, s{sTT0}")
                A(f"s_add_u32 s{sTmp}, s{sTmp}, s{sRole}")
            else:
                A(f"s_add_u32 s{sTmp}, s{sTmp}, s{[sTT0, sTT1][tl]}")
            A(f"s_lshl_b32 s{sTmp}, s{sTmp}, 11")
            store_frags(C, sTmp)
        return 2*ntl

    def dma2(slot, cond):
        L = [f"s_add_u32 m0, s{sM2}, {slot*WSLOT}", "s_nop 0",
             f"buffer_load_dwordx4 v{vD2}, s[{sA}:{sA+3}], s{sK2} offen lds",
             f"s_add_u32 s{sK2}, s{sK2}, {16*3584}"]
        return L
    def emit_dma2(slot, cond):
        if cond and not A.trace:
            Ls = A.newlabel(name + "_nod")
            A(f"s_cmp_eq_u32 s{sNoD}, 1")
            A(f"s_cbranch_scc1 {Ls}")
            for x_ in dma2(slot, cond): A(x_)
            A.label(Ls)
        else:
            for x_ in dma2(slot, cond): A(x_)

    def pass2(ntl, nst1):
        cond = (ntl == 1)
        xe, xo = (vXe, vXo) if ntl == 2 else (vX1e, vX1o)
        def reads(b, k4, slot):
            L = []
            for t in range(2):
                for q in range(2):
                    L.append(f"ds_read_b64_tr_b16 {v(FW(b,t)+2*q,2)}, v{vW} offset:{slot*WSLOT + t*1024 + q*256}")
            ad = xe if k4 % 2 == 0 else xo
            for tl in range(ntl):
                L.append(f"ds_read_b128 {v(FX(b,tl),4)}, v{ad} offset:{(k4//2)*8192 + tl*2048}")
            return L
        def mfm(b, first):
            L = []
            for t in range(2):
                for tl in range(ntl):
                    acc = AC(t, tl)
                    cc = "0" if first else v(acc,16)
                    L.append(f"v_mfma_f32_32x32x16_bf16 {v(acc,16)}, {v(FW(b,t),4)}, {v(FX(b,tl),4)}, {cc}")
            return L
        def kstep(k4, first=False, last=False, do_dma=True, vm=None, after=None):
            b = k4 & 1
            M = mfm(b, first)
            npre = 1 if ntl == 1 else 2
            A("s_waitcnt lgkmcnt(0)")
            for m in M[:npre]: A(m)
            if last:
                for m in M[npre:]: A(m)
                return
            A(f"s_waitcnt vmcnt({vm})")
            A("s_barrier")
            nxt = (k4+1) % 4
            oth = []
            if k4 == 3:
                oth += [f"v_add_u32 v{xe}, 16384, v{xe}", f"v_add_u32 v{xo}, 16384, v{xo}"]
            oth += reads(b ^ 1, nxt, nxt)
            rest = M[npre:]
            k = len(oth); per = (k + len(rest) - 1)//len(rest); idx = 0
            for m in rest:
                A(m)
                for _ in range(per):
                    if idx < k: A(oth[idx]); idx += 1
            if do_dma: emit_dma2(k4, cond)
            if after: after()
        return reads, kstep

    def run_pass2(ntl, nst1, tag):
        reads, kstep = pass2(ntl, nst1)
        A(f"s_waitcnt vmcnt({3+nst1}) lgkmcnt(0)")
        A("s_barrier")
        for x_ in reads(0, 0, 0): A(x_)
        def body(first, final):
            for k in range(4):
                if final: kstep(k, last=(k == 3), do_dma=False, vm=(2-k) if k < 3 else None)
                elif first:
                    vm = [2+nst1, 2+nst1, 2+nst1, 2][k]
                    def aft():
                        if ntl == 1 and not A.trace:
                            Ls = A.newlabel(name + "_ndw")
                            A(f"s_cmp_eq_u32 s{sNoD}, 0")
                            A(f"s_cbranch_scc1 {Ls}")
                            A("s_waitcnt vmcnt(0)")
                            A.label(Ls)
                        arrive(0, 8, FLAGQ)
                    kstep(k, first=(k == 0), vm=vm, after=(aft if k == 3 else None))
                else: kstep(k, vm=2)
        body(True, False)
        if A.trace:
            for it in range(5): body(False, False)
        else:
            A(f"s_mov_b32 s{sCnt}, 5")
            A.label(tag + "_loop")
            body(False, False)
            A(f"s_sub_u32 s{sCnt}, s{sCnt}, 1")
            A(f"s_cmp_lg_u32 s{sCnt}, 0")
            A(f"s_cbranch_scc1 {tag}_loop")
        body(False, True)
        A("s_barrier")
        ST.stamp()
        A.nop(11)

    def epilogue2(ntl):
        TM = [F, F+1, F+2, F+3]
        A(f"s_mov_b32 s{sTmp2}, {f2u(-LOG2E):#x}")
        for tl in range(ntl):
            G = AC(0, tl); U = AC(1, tl)
            for i0 in range(0, 16, 4):
                for i in range(4): A(f"v_mul_f32 v{TM[i]}, s{sTmp2}, v{G+i0+i}")
                for i in range(4): A(f"v_exp_f32 v{TM[i]}, v{TM[i]}")
                for i in range(4): A(f"v_mul_f32 v{G+i0+i}, v{G+i0+i}, v{U+i0+i}")
                for i in range(4): A(f"v_add_f32 v{TM[i]}, 1.0, v{TM[i]}")
                for i in range(4): A(f"v_rcp_f32 v{TM[i]}, v{TM[i]}")
                A("s_nop 0")
                for i in range(4): A(f"v_mul_f32 v{G+i0+i}, v{G+i0+i}, v{TM[i]}")
            for r in range(8):
                A(f"v_cvt_pk_bf16_f32 v{U+r}, v{G+2*r}, v{G+2*r+1}")
            if ntl == 2:
                A(f"s_mul_i32 s{sTmp}, s{[sTT0, sTT1][tl]}, 144")
            else:
                A(f"s_add_u32 s{sTmp}, s{sTT0}, s{sCH}")
                A(f"s_mul_i32 s{sTmp}, s{sTmp}, 144")
            A(f"s_add_u32 s{sTmp}, s{sTmp}, s{sFB}")
            A(f"s_lshl_b32 s{sTmp}, s{sTmp}, 10")
            A(f"s_add_u32 s{sTmp}, s{sTmp}, {HF}")
            store_frags(U, sTmp)
        A("s_waitcnt vmcnt(0)")
        arrive(4, 8, FLAGA)

    def variant(kind, role):
        tag = f"{name}_{kind}{role}"
        run_pass1(kind, role)
        ntl2 = 1 if kind == 'Q' else 2
        if kind == 'K':
            pass
        elif kind == 'V':
            A(f"v_subrev_u32 v{vXe}, {13*8192}, v{vXe}"); A(f"v_subrev_u32 v{vXo}, {13*8192}, v{vXo}")
        else:
            A(f"v_subrev_u32 v{vXe}, {13*8192}, v{vXe}")
            A(f"s_lshl_b32 s{sTmp}, s{sCH}, 11")
            A(f"v_add_u32 v{vX1e}, s{sTmp}, v{vXe}")
            A(f"v_xor_b32 v{vX1o}, 32, v{vX1e}")
        for sl in range(4): emit_dma2(sl, ntl2 == 1)
        A.nop(8)
        nst1 = epilogue1(kind)
        run_pass2(ntl2, nst1, tag + "_p2")
        epilogue2(ntl2)
        c.nstamp_after_A = ST.n
        if not A.trace: A(f"s_branch {c.LB}")

    setup()
    c.trace_role = only[1] if only is not None else None
    c.npf = ln()
    if only is not None:
        variant(*only)
        return
    nsave = ST.n
    keys = [('V',0), ('Q',1), ('K',0), ('K',1)]
    labs = {k: f"{name}_V{k[0]}{k[1]}" for k in keys}
    A(f"s_lshl_b32 s{sTmp}, s{sTyA}, 1")
    A(f"s_add_u32 s{sTmp}, s{sTmp}, s{sRole}")
    A(f"s_cmp_eq_u32 s{sTmp}, 3"); A(f"s_cbranch_scc1 {labs[('Q',1)]}")
    A(f"s_cmp_eq_u32 s{sTmp}, 0"); A(f"s_cbranch_scc1 {labs[('K',0)]}")
    A(f"s_cmp_eq_u32 s{sTmp}, 1"); A(f"s_cbranch_scc1 {labs[('K',1)]}")
    for k in keys:
        A.label(labs[k])
        ST.n = nsave
        variant(*k)
```

```python
from common import *
FLAGA = 24*1024*1024
FLAGO = FLAGA + 65536
FLAGQ = FLAGA + 2*65536
G_LDS = 66560

def wg_of(A, rb_expr_v, g_expr_v, dst, t):
    A(f"v_lshrrev_b32 v{dst}, 3, v{rb_expr_v}")
    A(f"v_lshrrev_b32 v{t}, 2, v{g_expr_v}")
    A(f"v_lshl_add_u32 v{dst}, v{t}, 1, v{dst}")
    A(f"v_and_b32 v{t}, 7, v{rb_expr_v}")
    A(f"v_lshl_add_u32 v{dst}, v{t}, 3, v{dst}")
    A(f"v_and_b32 v{t}, 3, v{g_expr_v}")
    A(f"v_lshl_add_u32 v{dst}, v{t}, 6, v{dst}")

def publish(c, vt, flagbase, add):
    A = c.A
    c.flag_srd(60)
    A(f"s_lshl_b32 s35, s2, 6")
    A(f"s_add_u32 s35, s35, {flagbase}")
    A(f"s_add_u32 s36, s{c.sTAG}, {add}")
    A(f"v_mov_b32 v{vt}, s36")
    A(f"v_mov_b32 v{vt+1}, 0")
    A("s_mov_b64 exec, 1")
    A(f"buffer_store_dword v{vt}, v{vt+1}, s[60:63], s35 offen sc0 sc1")
    A("s_mov_b64 exec, -1")

def attention(c):
    A, ST, name, STF, LDF = c.A, c.ST, c.name, c.STF, c.LDF
    sWV = c.sWV
    vL16 = 2; vLane = 1
    vT = [3,4,5,6,7,9]
    Q = 10; Q = 12
    O = 44
    S = 108
    P = 140
    E = 148
    KV = 152
    vM = 216
    def Qf(qt, s): return Q + 8*qt + 4*s
    def Of(qt): return O + 16*qt
    def Sf(b): return S + 16*b
    def Kf(b, s): return KV + 16*b + 4*s
    def Vf(b, s): return KV + 16*b + 8 + 4*s
    sK, sV, sW = 8, 12, 4
    sH, sQB = 16, 17
    sKoff, sVoff, sQoff = 19, 20, 21
    sCnt, sExact, sTmp, sTmp2 = 22, 23, 24, 25
    sK0, sKbeg, sVbeg = 26, 27, 28
    sHiMask, sSave = 30, 32
    t0, t1 = vT[0], vT[1]
    if not A.trace:
        Lp = A.newlabel(name + "_nozero")
        A(f"s_cmp_lg_u32 s{sWV}, 0")
        A(f"s_cbranch_scc1 {Lp}")
    A(f"v_lshlrev_b32 v{t0}, 2, v{vLane}")
    A(f"v_add_u32 v{t0}, {65536+16}, v{t0}")
    A(f"v_mov_b32 v{t0+1}, 0")
    A(f"ds_write_b32 v{t0}, v{t0+1}")
    if not A.trace: A.label(Lp)
    A(f"s_and_b32 s{sTmp}, s2, 7")
    A(f"s_lshr_b32 s{sTmp2}, s2, 3")
    A(f"s_and_b32 s{sH}, s{sTmp2}, 1")
    A(f"s_lshl_b32 s{sTmp}, s{sTmp}, 1")
    A(f"s_add_u32 s{sH}, s{sH}, s{sTmp}")
    A(f"s_lshr_b32 s{sQB}, s{sTmp2}, 1")
    A(f"s_mov_b32 s{sHiMask}, 0")
    A(f"s_mov_b32 s{sHiMask+1}, -1")
    A(f"s_lshl_b32 s{sTmp}, s{sH}, 6")
    A(f"s_lshl_b32 s{sTmp2}, s{sQB}, 2")
    A(f"s_add_u32 s{sQoff}, s{sTmp}, s{sTmp2}")
    A(f"s_lshl_b32 s{sQoff}, s{sQoff}, 11")
    A(f"s_lshl_b32 s{sK0}, s{sTmp}, 11")
    A(f"s_add_u32 s{sK0}, s{sK0}, {KF}")
    A(f"s_lshl_b32 s{sTmp2}, s{sWV}, 15")
    A(f"s_add_u32 s{sKbeg}, s{sK0}, s{sTmp2}")
    A(f"s_add_u32 s{sVbeg}, s{sKbeg}, {VF-KF}")
    make_srd(A, sW, c.sWSp, 0x2000000)
    make_srd(A, sK, c.sWSp, 0)
    make_srd(A, sV, c.sWSp, 0)
    A(f"s_add_u32 s{sK+2}, s{sKbeg}, {16*2048}")
    A(f"s_add_u32 s{sV+2}, s{sVbeg}, {16*2048}")
    A(f"s_mov_b32 s{sExact}, 0")
    a0, a1, a2 = vT[2], vT[3], vT[4]
    A(f"v_and_b32 v{a0}, 15, v{vLane}")
    A(f"s_and_b32 s{sTmp}, s{sH}, 0xfffe")
    A(f"v_bfe_u32 v{a1}, v{vLane}, 4, 1")
    A(f"v_add_u32 v{a1}, s{sTmp}, v{a1}")
    wg_of(A, a0, a1, a2, vT[5])
    A(f"v_lshlrev_b32 v{a2}, 6, v{a2}")
    A(f"v_add_u32 v{a2}, {FLAGQ}, v{a2}")
    c.poll(a2, a0, sW, 0, 0xffffffff, 0xffffffff)
    ST.stamp()

    def load_tile(b):
        A(f"buffer_load_dwordx4 {v(Kf(b,0),4)}, v{vL16}, s[{sK}:{sK+3}], s{sKoff} offen{LDF}")
        A(f"buffer_load_dwordx4 {v(Kf(b,1),4)}, v{vL16}, s[{sK}:{sK+3}], s{sKoff} offen offset:1024{LDF}")
        A(f"buffer_load_dwordx4 {v(Vf(b,0),4)}, v{vL16}, s[{sV}:{sV+3}], s{sVoff} offen{LDF}")
        A(f"buffer_load_dwordx4 {v(Vf(b,1),4)}, v{vL16}, s[{sV}:{sV+3}], s{sVoff} offen offset:1024{LDF}")
        A(f"s_add_u32 s{sKoff}, s{sKoff}, 2048")
        A(f"s_add_u32 s{sVoff}, s{sVoff}, 2048")
    for qt in range(4):
        for s_ in range(2):
            off = qt*2048 + s_*1024
            if off < 4096:
                A(f"buffer_load_dwordx4 {v(Qf(qt,s_),4)}, v{vL16}, s[{sW}:{sW+3}], s{sQoff} offen offset:{off}{LDF}")
            else:
                if off == 4096: A(f"s_add_u32 s{sTmp}, s{sQoff}, 4096")
                A(f"buffer_load_dwordx4 {v(Qf(qt,s_),4)}, v{vL16}, s[{sW}:{sW+3}], s{sTmp} offen offset:{off-4096}{LDF}")
    A(f"buffer_load_dwordx4 {v(Kf(3,0),4)}, v{vL16}, s[{sW}:{sW+3}], s{sK0} offen{LDF}")
    A(f"buffer_load_dwordx4 {v(Kf(3,1),4)}, v{vL16}, s[{sW}:{sW+3}], s{sK0} offen offset:1024{LDF}")
    A(f"s_mov_b32 s{sKoff}, s{sKbeg}")
    A(f"s_mov_b32 s{sVoff}, s{sVbeg}")
    for b in range(3): load_tile(b)

    def set_m(qt, vm):
        x0, x1, x2, x3 = vT[0], vT[1], vT[2], vT[3]
        A(f"v_sub_f32 v{x0}, 0, v{vm}")
        A(f"v_cvt_pk_bf16_f32 v{x1}, v{x0}, v{x0}")
        A(f"v_and_b32 v{x2}, 0xffff0000, v{x1}")
        A(f"v_sub_f32 v{x0}, v{x0}, v{x2}")
        A(f"v_cvt_pk_bf16_f32 v{x2}, v{x0}, v{x0}")
        A(f"v_and_b32 v{x3}, 0xffff0000, v{x2}")
        A(f"v_sub_f32 v{x0}, v{x0}, v{x3}")
        A(f"v_cvt_pk_bf16_f32 v{x0}, v{x0}, 0")
        A(f"v_and_b32 v{x1}, 0xffff, v{x1}")
        A(f"v_or_b32 v{x1}, v{x1}, v{x3}")
        A(f"s_mov_b64 exec, s[{sHiMask}:{sHiMask+1}]")
        A(f"v_mov_b32 v{Qf(qt,1)+2}, v{x1}")
        A(f"v_mov_b32 v{Qf(qt,1)+3}, v{x0}")
        A(f"s_mov_b64 exec, -1")
    def qk(dst, b, qt):
        return [f"v_mfma_f32_32x32x16_bf16 {v(dst,16)}, {v(Kf(b,0),4)}, {v(Qf(qt,0),4)}, 0",
                f"v_mfma_f32_32x32x16_bf16 {v(dst,16)}, {v(Kf(b,1),4)}, {v(Qf(qt,1),4)}, {v(dst,16)}"]
    def maxtree(src, dst):
        A(f"v_max3_f32 v{dst}, v{src}, v{src+1}, v{src+2}")
        for i in range(3, 15, 2):
            A(f"v_max3_f32 v{dst}, v{dst}, v{src+i}, v{src+i+1}")
        A(f"v_max_f32 v{dst}, v{dst}, v{src+15}")
    def crosshalf_max(r):
        t = vT[4]
        A(f"v_mov_b32 v{t}, v{r}")
        A("s_nop 1")
        A(f"v_permlane32_swap_b32 v{r}, v{t}")
        A("s_nop 1")
        A(f"v_max_f32 v{r}, v{r}, v{t}")
    def zero_state():
        for r in range(64): A(f"v_mov_b32 v{O+r}, 0")
        for r in range(4):
            A(f"v_mov_b32 v{P+4+r}, 0")
    zero_state()
    A("s_waitcnt vmcnt(12)")
    for qt in range(4):
        for m in qk(Sf(qt & 1), 3, qt): A(m)
        if qt >= 1:
            A.nop(10)
            maxtree(Sf((qt-1) & 1), vM+qt-1)
    A.nop(12)
    maxtree(Sf(1), vM+3)
    for qt in range(4):
        crosshalf_max(vM+qt)
        A(f"v_add_f32 v{vM+qt}, 0x42c00000, v{vM+qt}")
        set_m(qt, vM+qt)
    Lmain = name + "_amain"
    Lm2 = name + "_amain2"
    if not A.trace:
        A(f"s_branch {Lm2}")
        A.label(Lmain)
        A(f"s_mov_b32 s{sKoff}, s{sKbeg}")
        A(f"s_mov_b32 s{sVoff}, s{sVbeg}")
        for b in range(3): load_tile(b)
        zero_state()
        A.label(Lm2)
    for r in range(4): A(f"v_mov_b32 v{Vf(3,1)+r}, 0")
    A("s_waitcnt vmcnt(8)")
    for m in qk(Sf(0), 0, 0): A(m)
    A.nop(12)
    ST.stamp()

    def slot(j, qt):
        b = j & 3
        sb = qt & 1
        cur = Sf(sb); nxt = Sf(sb ^ 1)
        if qt < 3: nb, nq = b, qt+1
        else: nb, nq = (j+1) & 3, 0
        if qt > 0: pb, pq = b, qt-1
        else: pb, pq = (j-1) & 3, 3
        m = qk(nxt, nb, nq)
        def grp(g):
            for i in range(4): A(f"v_exp_f32 v{E+i}, v{cur+4*g+i}")
            A(f"v_cvt_pk_bf16_f32 v{P+2*g}, v{E}, v{E+1}")
            A(f"v_cvt_pk_bf16_f32 v{P+2*g+1}, v{E+2}, v{E+3}")
        if qt == 3: A("s_waitcnt vmcnt(8)")
        A(m[0])
        grp(0)
        A(f"v_mfma_f32_32x32x16_bf16 {v(Of(pq),16)}, {v(Vf(pb,1),4)}, {v(P+4,4)}, {v(Of(pq),16)}")
        if qt == 0: load_tile((j+3) & 3)
        grp(1)
        A(m[1])
        grp(2)
        A(f"v_mfma_f32_32x32x16_bf16 {v(Of(qt),16)}, {v(Vf(b,0),4)}, {v(P,4)}, {v(Of(qt),16)}")
        grp(3)
    def body():
        for j in range(4):
            for qt in range(4): slot(j, qt)
    if A.trace:
        for it in range(4): body()
    else:
        A(f"s_mov_b32 s{sCnt}, 4")
        Ll = name + "_aloop"
        A.label(Ll)
        body()
        A(f"s_sub_u32 s{sCnt}, s{sCnt}, 1")
        A(f"s_cmp_lg_u32 s{sCnt}, 0")
        A(f"s_cbranch_scc1 {Ll}")
    ST.stamp()
    A("s_nop 1")
    A(f"v_mfma_f32_32x32x16_bf16 {v(Of(3),16)}, {v(Vf(3,1),4)}, {v(P+4,4)}, {v(Of(3),16)}")
    A("s_waitcnt vmcnt(0)")
    A.nop(12)
    A(f"v_add_f32 v{t1}, v{Of(0)+12}, v{Of(1)+12}")
    A(f"v_add_f32 v{t1}, v{t1}, v{Of(2)+12}")
    A(f"v_add_f32 v{t1}, v{t1}, v{Of(3)+12}")
    A(f"s_mov_b32 s{sTmp}, {f2u(2.0**60):#x}")
    A(f"v_cmp_ngt_f32 vcc, s{sTmp}, v{t1}")
    A(f"s_nop 3")
    A(f"s_and_b64 s[{sSave}:{sSave+1}], vcc, s[{sHiMask}:{sHiMask+1}]")
    A(f"v_min3_f32 v{t0}, v{Of(0)+12}, v{Of(1)+12}, v{Of(2)+12}")
    A(f"v_min_f32 v{t0}, v{t0}, v{Of(3)+12}")
    A(f"s_mov_b32 s{sTmp}, {f2u(2.0**-110):#x}")
    A(f"v_cmp_gt_f32 vcc, s{sTmp}, v{t0}")
    A(f"s_nop 3")
    A(f"s_and_b64 vcc, vcc, s[{sHiMask}:{sHiMask+1}]")
    A(f"s_cmp_eq_u32 s{sWV}, 0")
    A(f"s_cselect_b64 vcc, vcc, 0")
    A(f"s_or_b64 s[{sSave}:{sSave+1}], s[{sSave}:{sSave+1}], vcc")
    A(f"s_cmp_lg_u64 s[{sSave}:{sSave+1}], 0")
    A(f"s_cselect_b32 s{sTmp}, 1, 0")
    if c.force_fallback: A(f"s_mov_b32 s{sTmp}, 1")
    A(f"s_cmp_eq_u32 s{sExact}, 1")
    A(f"s_cselect_b32 s{sTmp}, 0, s{sTmp}")
    A(f"s_lshl_b32 s{sTmp2}, s{sWV}, 14")
    A(f"v_add_u32 v{t0}, s{sTmp2}, v{vL16}")
    for qt in range(4):
        for a_ in range(4):
            A(f"ds_write_b128 v{t0}, {v(Of(qt)+4*a_,4)} offset:{(qt*4+a_)*1024}")
    A(f"s_lshl_b32 s{sTmp2}, s{sWV}, 2")
    A(f"s_add_u32 s{sTmp2}, s{sTmp2}, 65536")
    A(f"v_mov_b32 v{t0}, s{sTmp2}")
    A(f"v_mov_b32 v{t1}, s{sTmp}")
    A(f"ds_write_b32 v{t0}, v{t1}")
    A("s_waitcnt lgkmcnt(0)")
    if not A.trace:
        Lx = A.newlabel(name + "_r1x"); Ly = A.newlabel(name + "_r1y")
        A(f"s_cmp_eq_u32 s{sExact}, 1")
        A(f"s_cbranch_scc1 {Lx}")
        A("s_barrier")
        A(f"s_branch {Ly}")
        A.label(Lx)
        fb_sync(c, sTmp, sTmp2, vT[2], vT[3], 4)
        A.label(Ly)
    else:
        A("s_barrier")
    A(f"v_mov_b32 v{t0}, 0x10000")
    A(f"ds_read_b128 {v(E,4)}, v{t0}")
    A(f"s_lshl_b32 s{sTmp2}, s{sWV}, 12")
    A(f"v_add_u32 v{t1}, s{sTmp2}, v{vL16}")
    for ww in range(4):
        for a_ in range(4):
            A(f"ds_read_b128 {v(O+16*ww+4*a_,4)}, v{t1} offset:{ww*16384+a_*1024}")
    A("s_waitcnt lgkmcnt(0)")
    A(f"v_or_b32 v{E}, v{E}, v{E+1}")
    A(f"v_or_b32 v{E+2}, v{E+2}, v{E+3}")
    A(f"v_or_b32 v{E}, v{E}, v{E+2}")
    A("s_nop 1")
    A(f"v_readfirstlane_b32 s{sTmp}, v{E}")
    A("s_nop 3")
    A(f"s_cmp_lg_u32 s{sTmp}, 0")
    Lfb = name + "_fallback"
    if not A.trace: A(f"s_cbranch_scc1 {Lfb}")
    for r in range(16):
        A(f"v_add_f32 v{O+r}, v{O+r}, v{O+16+r}")
        A(f"v_add_f32 v{O+32+r}, v{O+32+r}, v{O+48+r}")
    for r in range(16):
        A(f"v_add_f32 v{O+r}, v{O+r}, v{O+32+r}")
    A(f"v_mov_b32 v{t0}, v{O+12}")
    A(f"v_mov_b32 v{t1}, v{O+12}")
    A("s_nop 1")
    A(f"v_permlane32_swap_b32 v{t0}, v{t1}")
    A("s_nop 1")
    A(f"v_rcp_f32 v{t1}, v{t1}")
    A("s_nop 0")
    for r in range(16): A(f"v_mul_f32 v{O+r}, v{O+r}, v{t1}")
    for r in range(8): A(f"v_cvt_pk_bf16_f32 v{P+r}, v{O+2*r}, v{O+2*r+1}")
    A(f"s_mov_b64 exec, s[{sHiMask}:{sHiMask+1}]")
    A(f"v_mov_b32 v{P+6}, 0")
    A(f"v_mov_b32 v{P+7}, 0")
    A(f"s_mov_b64 exec, -1")
    A(f"s_lshl_b32 s{sTmp}, s{sQB}, 2")
    A(f"s_add_u32 s{sTmp}, s{sTmp}, s{sWV}")
    A(f"s_mul_i32 s{sTmp}, s{sTmp}, 144")
    A(f"s_lshl_b32 s{sTmp2}, s{sH}, 1")
    A(f"s_add_u32 s{sTmp}, s{sTmp}, s{sTmp2}")
    A(f"s_add_u32 s{sTmp}, s{sTmp}, 112")
    A(f"s_lshl_b32 s{sTmp}, s{sTmp}, 10")
    A(f"s_add_u32 s{sTmp}, s{sTmp}, {HF}")
    A(f"buffer_store_dwordx4 {v(P,4)}, v{vL16}, s[{sW}:{sW+3}], s{sTmp} offen{STF}")
    A(f"buffer_store_dwordx4 {v(P+4,4)}, v{vL16}, s[{sW}:{sW+3}], s{sTmp} offen offset:1024{STF}")
    A("s_waitcnt vmcnt(0)")
    A(f"v_mov_b32 v{t0}, {65536+16}")
    A(f"v_mov_b32 v{t1}, 1")
    A("s_mov_b64 exec, 1")
    A(f"ds_add_rtn_u32 v{t1}, v{t0}, v{t1}")
    A("s_waitcnt lgkmcnt(0)")
    A("s_mov_b64 exec, -1")
    A(f"v_readfirstlane_b32 s{sTmp}, v{t1}")
    A("s_nop 3")
    A(f"s_cmp_lg_u32 s{sTmp}, 3")
    Lnp = A.newlabel(name + "_nopubO")
    if not A.trace: A(f"s_cbranch_scc1 {Lnp}")
    publish(c, t0, FLAGO, 1)
    A.label(Lnp)
    if c.stamps:
        A("s_waitcnt vmcnt(0)")
        ST.stamp(); ST.stamp(real=True)
        ST.flush(2, sWV, c.sWSp, t0, t1, sTmp, 60)
    A("s_endpgm")
    if A.trace: return
    A.label(Lfb)
    A(f"s_mov_b32 s{sExact}, 1")
    fb_sync(c, sTmp, sTmp2, t0, t1, 1)
    A(f"s_mov_b64 exec, s[{sHiMask}:{sHiMask+1}]")
    for qt in range(4):
        A(f"v_mov_b32 v{Qf(qt,1)+2}, 0")
        A(f"v_mov_b32 v{Qf(qt,1)+3}, 0")
    A(f"s_mov_b64 exec, -1")
    for qt in range(4): A(f"v_mov_b32 v{vM+qt}, 0xff800000")
    A(f"s_mov_b32 s{sKoff}, s{sKbeg}")
    A(f"s_mov_b32 s{sCnt}, 16")
    Lf = name + "_fbloop"
    A.label(Lf)
    A(f"buffer_load_dwordx4 {v(Kf(0,0),4)}, v{vL16}, s[{sK}:{sK+3}], s{sKoff} offen{LDF}")
    A(f"buffer_load_dwordx4 {v(Kf(0,1),4)}, v{vL16}, s[{sK}:{sK+3}], s{sKoff} offen offset:1024{LDF}")
    A(f"s_add_u32 s{sKoff}, s{sKoff}, 2048")
    A("s_waitcnt vmcnt(0)")
    for qt in range(4):
        for m in qk(Sf(0), 0, qt): A(m)
        A.nop(12)
        maxtree(Sf(0), vT[5])
        A(f"v_max_f32 v{vM+qt}, v{vM+qt}, v{vT[5]}")
        A.nop(8)
    A(f"s_sub_u32 s{sCnt}, s{sCnt}, 1")
    A(f"s_cmp_lg_u32 s{sCnt}, 0")
    A(f"s_cbranch_scc1 {Lf}")
    for qt in range(4): crosshalf_max(vM+qt)
    A(f"s_lshl_b32 s{sTmp2}, s{sWV}, 10")
    A(f"v_lshrrev_b32 v{t0}, 2, v{vL16}")
    A(f"v_add_u32 v{t1}, s{sTmp2}, v{t0}")
    for qt in range(4):
        A(f"ds_write_b32 v{t1}, v{vM+qt} offset:{qt*256}")
    A("s_waitcnt lgkmcnt(0)")
    fb_sync(c, sTmp, sTmp2, vT[2], vT[3], 2)
    A(f"v_lshrrev_b32 v{t0}, 2, v{vL16}")
    for qt in range(4):
        for ww in range(4):
            A(f"ds_read_b32 v{E+ww}, v{t0} offset:{ww*1024+qt*256}")
        A("s_waitcnt lgkmcnt(0)")
        A(f"v_max3_f32 v{vM+qt}, v{E}, v{E+1}, v{E+2}")
        A(f"v_max_f32 v{vM+qt}, v{vM+qt}, v{E+3}")
    fb_sync(c, sTmp, sTmp2, vT[2], vT[3], 3)
    for qt in range(4): set_m(qt, vM+qt)
    A(f"s_branch {Lmain}")

def fb_sync(c, sTmp, sTmp2, va, vb, k):
    A = c.A
    L = A.newlabel(c.name + "_fbs"); L2 = A.newlabel(c.name + "_fbsx")
    A("s_waitcnt lgkmcnt(0)")
    A(f"v_mov_b32 v{va}, {65536+16+4*k}")
    A(f"v_mov_b32 v{vb}, 1")
    A("s_mov_b64 exec, 1")
    A(f"ds_add_u32 v{va}, v{vb}")
    A("s_mov_b64 exec, -1")
    A(f"s_mov_b32 s{sTmp2}, {1<<20}")
    A.label(L)
    A(f"ds_read_b32 v{vb}, v{va}")
    A("s_waitcnt lgkmcnt(0)")
    A(f"v_readfirstlane_b32 s{sTmp}, v{vb}")
    A(f"s_sub_u32 s{sTmp2}, s{sTmp2}, 1")
    A(f"s_cmp_eq_u32 s{sTmp2}, 0")
    A(f"s_cbranch_scc1 {L2}")
    A(f"s_cmp_lt_u32 s{sTmp}, 4")
    A(f"s_cbranch_scc1 {L}")
    A.label(L2)

def gemm(c):
    A, ST, name, STF, LDF = c.A, c.ST, c.name, c.STF, c.LDF
    NS = 4
    vLane, vL16 = 1, 2
    vWd, vA0, vA1, vX = 3, 4, 5, 6
    vT = [7, 8, 9, 10]
    XR = 12
    ACC = 20
    AF = 84
    BF = 116
    sWS, sWD, sWO, sX, sOUT = 4, 8, 12, 16, 20
    sTB, sCB, sB, sWoff, sTmp, sTmp2, sLds, sW4 = 28, 29, 31, 32, 33, 34, 38, 39
    l = vLane
    t0, t1, t2, t3 = vT
    Lskip = name + "_gskip"
    if not A.trace:
        A("s_cmp_ge_u32 s2, 224")
        A(f"s_cbranch_scc1 {Lskip}")
    A(f"s_load_dwordx2 s[40:41], s[0:1], 48")
    A(f"s_load_dwordx2 s[42:43], s[0:1], 16")
    A(f"s_load_dwordx2 s[44:45], s[0:1], 0")
    A(f"s_load_dwordx2 s[46:47], s[0:1], 56")
    A(f"s_sub_u32 s{sW4}, s{c.sWV}, 4")
    A(f"s_and_b32 s{sTmp}, s2, 7")
    A(f"s_lshr_b32 s{sTmp2}, s2, 3")
    A(f"s_and_b32 s{sTB}, s{sTmp2}, 3")
    A(f"s_lshl_b32 s{sTmp}, s{sTmp}, 2")
    A(f"s_add_u32 s{sTB}, s{sTB}, s{sTmp}")
    A(f"s_lshr_b32 s{sCB}, s{sTmp2}, 2")
    A(f"v_lshrrev_b32 v{t0}, 3, v{l}")
    A(f"v_and_b32 v{t1}, 7, v{l}")
    A(f"v_bfe_u32 v{t2}, v{l}, 4, 1")
    A(f"v_lshlrev_b32 v{t2}, 2, v{t2}")
    A(f"v_xor_b32 v{t1}, v{t1}, v{t2}")
    A(f"v_lshlrev_b32 v{t1}, 4, v{t1}")
    A(f"v_mul_u32_u24 v{t0}, 896, v{t0}")
    A(f"s_lshl_b32 s{sTmp}, s{sCB}, 7")
    A(f"v_add3_u32 v{vWd}, v{t0}, v{t1}, s{sTmp}")
    A(f"v_lshrrev_b32 v{t0}, 5, v{l}")
    A(f"v_bfe_u32 v{t1}, v{l}, 2, 2")
    A(f"v_lshl_add_u32 v{t0}, v{t0}, 2, v{t1}")
    A(f"v_lshlrev_b32 v{t0}, 7, v{t0}")
    A(f"v_bfe_u32 v{t2}, v{l}, 4, 1")
    A(f"v_bfe_u32 v{t3}, v{l}, 1, 1")
    A(f"v_lshl_add_u32 v{t2}, v{t2}, 1, v{t3}")
    A(f"v_bfe_u32 v{t3}, v{l}, 3, 1")
    A(f"v_lshlrev_b32 v{t3}, 2, v{t3}")
    A(f"v_xor_b32 v{t2}, v{t2}, v{t3}")
    A(f"v_lshl_add_u32 v{t0}, v{t2}, 4, v{t0}")
    A(f"v_and_b32 v{t3}, 1, v{l}")
    A(f"v_lshl_add_u32 v{t0}, v{t3}, 3, v{t0}")
    A(f"s_mul_i32 s{sLds}, s{sW4}, {NS*4096}")
    A(f"s_add_u32 s{sLds}, s{sLds}, {G_LDS}")
    A(f"v_add_u32 v{vA0}, s{sLds}, v{t0}")
    A(f"v_xor_b32 v{vA1}, 64, v{vA0}")
    A(f"s_and_b32 s{sTmp2}, s{sW4}, 1")
    A(f"s_lshl_b32 s{sTmp2}, s{sTmp2}, 5")
    A(f"s_lshl_b32 s{sTmp}, s{sTB}, 6")
    A(f"s_add_u32 s{sTmp2}, s{sTmp2}, s{sTmp}")
    A(f"v_and_b32 v{t0}, 31, v{l}")
    A(f"v_add_u32 v{t0}, s{sTmp2}, v{t0}")
    A(f"v_mul_u32_u24 v{t0}, 896, v{t0}")
    A(f"s_lshr_b32 s{sTmp}, s{sW4}, 1")
    A(f"s_lshl_b32 s{sTmp}, s{sTmp}, 6")
    A(f"s_lshl_b32 s{sTmp2}, s{sCB}, 7")
    A(f"s_add_u32 s{sTmp}, s{sTmp}, s{sTmp2}")
    A(f"v_lshrrev_b32 v{t1}, 5, v{l}")
    A(f"v_lshlrev_b32 v{t1}, 4, v{t1}")
    A(f"v_add3_u32 v{vX}, v{t0}, v{t1}, s{sTmp}")
    A("s_waitcnt lgkmcnt(0)")
    make_srd(A, sWS, c.sWSp, 0x2000000)
    make_srd(A, sWD, 40, SZ_WD)
    make_srd(A, sWO, 42, SZ_WO)
    make_srd(A, sX, 44, SZ_X)
    make_srd(A, sOUT, 46, SZ_OUT)
    NCH = 14
    A(f"s_mul_i32 s{sTmp2}, s{sW4}, {NCH}")
    A(f"s_mul_i32 s{sB}, s{sTB}, {2*144}")
    A(f"s_lshl_b32 s{sTmp}, s{sTmp2}, 1")
    A(f"s_add_u32 s{sB}, s{sB}, s{sTmp}")
    A(f"s_lshl_b32 s{sB}, s{sB}, 10")
    A(f"s_add_u32 s{sB}, s{sB}, {HF}")
    A(f"s_mul_i32 s{sWoff}, s{sTmp2}, {32*896}")

    def issue_w(sl, srd, rowstep_tail):
        for rg in range(4):
            A(f"s_add_u32 m0, s{sLds}, {sl*4096 + rg*1024}")
            if rg: A(f"s_add_u32 s{sWoff}, s{sWoff}, {8*896}")
            else: A("s_nop 0")
            A(f"buffer_load_dwordx4 v{vWd}, s[{srd}:{srd+3}], s{sWoff} offen lds")
        A(f"s_add_u32 s{sWoff}, s{sWoff}, {rowstep_tail}")
    def issue_b(sl):
        A(f"s_add_u32 s{sTmp}, s{sB}, {144*1024}")
        for kb in range(2):
            A(f"buffer_load_dwordx4 {v(BF+16*sl+4*kb,4)}, v{vL16}, s[{sWS}:{sWS+3}], s{sB} offen offset:{kb*1024}{LDF}")
        for kb in range(2):
            A(f"buffer_load_dwordx4 {v(BF+16*sl+8+4*kb,4)}, v{vL16}, s[{sWS}:{sWS+3}], s{sTmp} offen offset:{kb*1024}{LDF}")
        A(f"s_add_u32 s{sB}, s{sB}, 2048")
    def trreads(sl, bb):
        for ct in range(2):
            for kb in range(2):
                for q in range(2):
                    A(f"ds_read_b64_tr_b16 {v(AF+16*bb+8*ct+4*kb+2*q,2)}, v{vA0 if ct==0 else vA1} offset:{sl*4096+(2*kb+q)*1024}")
    def mfmas(sl, bb, first):
        for kb in range(2):
            for ct in range(2):
                for tl in range(2):
                    acc = ACC + 16*(ct*2+tl)
                    cc = "0" if (first and kb == 0) else v(acc,16)
                    A(f"v_mfma_f32_32x32x16_bf16 {v(acc,16)}, {v(AF+16*bb+8*ct+4*kb,4)}, {v(BF+16*sl+8*tl+4*kb,4)}, {cc}")
    for i in range(3): issue_w(i, sWD, 8*896)
    A(f"buffer_load_dwordx4 {v(XR,4)}, v{vX}, s[{sX}:{sX+3}], 0 offen")
    A(f"buffer_load_dwordx4 {v(XR+4,4)}, v{vX}, s[{sX}:{sX+3}], 0 offen offset:32")
    A(f"s_lshr_b32 s{sTmp}, s{sTB}, 1")
    A(f"v_mov_b32 v{t0}, s{sTmp}")
    A(f"v_and_b32 v{t1}, 15, v{l}")
    wg_of(A, t0, t1, t2, t3)
    A(f"v_lshlrev_b32 v{t2}, 6, v{t2}")
    A(f"v_add_u32 v{t2}, {FLAGA}, v{t2}")
    c.poll(t2, t0, sWS, 0, 0xffffffff, 0xffffffff)
    ST.stamp()
    for i in range(3): issue_b(i)
    A("s_waitcnt vmcnt(8)")
    trreads(0, 0)
    def step(i, issue, vm, last=False):
        sl = i % NS; bb = i & 1
        if not last:
            A(f"s_waitcnt vmcnt({vm})")
            trreads((i+1) % NS, bb ^ 1)
            if issue:
                issue_w((i+3) % NS, sWD, 8*896); issue_b((i+3) % NS)
            A("s_waitcnt lgkmcnt(8)")
        else:
            A("s_waitcnt lgkmcnt(0)")
        mfmas(sl, bb, i == 0)
    step(0, True, 4)
    step(1, True, 8)
    step(2, True, 8)
    step(3, True, 8)
    def quad(i0, n_issue):
        for k in range(4):
            step(i0+k, k < n_issue, 8)
    if A.trace:
        quad(4, 4)
    else:
        quad(4, 4)
    step(8, True, 8); step(9, True, 8); step(10, True, 8)
    step(11, False, 8)
    step(12, False, 0)
    step(13, False, 0, last=True)
    ST.stamp()
    A(f"s_mul_i32 s{sWoff}, s{sW4}, {4*28*896}")
    for k in range(4): issue_w(k, sWO, (28-24)*896)
    A(f"s_mul_i32 s{sB}, s{sTB}, {2*144}")
    A(f"s_lshl_b32 s{sTmp}, s{sW4}, 3")
    A(f"s_add_u32 s{sB}, s{sB}, s{sTmp}")
    A(f"s_add_u32 s{sB}, s{sB}, 112")
    A(f"s_lshl_b32 s{sB}, s{sB}, 10")
    A(f"s_add_u32 s{sB}, s{sB}, {HF}")
    A("s_barrier")
    A(f"v_and_b32 v{t0}, 15, v{l}")
    A(f"v_lshrrev_b32 v{t1}, 1, v{t0}")
    A(f"v_and_b32 v{t0}, 1, v{t0}")
    A(f"s_lshr_b32 s{sTmp}, s{sTB}, 1")
    A(f"s_lshl_b32 s{sTmp}, s{sTmp}, 1")
    A(f"v_add_u32 v{t0}, s{sTmp}, v{t0}")
    A(f"v_lshl_add_u32 v{t2}, v{t0}, 3, v{t1}")
    A(f"v_lshlrev_b32 v{t2}, 6, v{t2}")
    A(f"v_add_u32 v{t2}, {FLAGO}, v{t2}")
    c.poll(t2, t0, sWS, 1, 0xffffffff, 0xffffffff)
    ST.stamp()
    for k in range(4): issue_b(k)
    for k in range(4):
        A(f"s_waitcnt vmcnt({12-4*k})")
        trreads(k, k & 1)
        A("s_waitcnt lgkmcnt(0)")
        mfmas(k, k & 1, False)
    A.nop(12)
    A(f"v_add_u32 v{t0}, s{sLds}, v{vL16}")
    for tile in range(4):
        for a_ in range(4):
            A(f"ds_write_b128 v{t0}, {v(ACC+16*tile+4*a_,4)} offset:{(tile*4+a_)*1024}")
    A("s_waitcnt lgkmcnt(0)")
    A("s_barrier")
    R = AF
    A(f"s_lshl_b32 s{sTmp}, s{sW4}, 12")
    A(f"s_add_u32 s{sTmp}, s{sTmp}, {G_LDS}")
    A(f"v_add_u32 v{t0}, s{sTmp}, v{vL16}")
    for ww in range(4):
        for a_ in range(4):
            A(f"ds_read_b128 {v(R+16*ww+4*a_,4)}, v{t0} offset:{ww*16384+a_*1024}")
    A("s_waitcnt lgkmcnt(0)")
    for r in range(16):
        A(f"v_add_f32 v{R+r}, v{R+r}, v{R+16+r}")
        A(f"v_add_f32 v{R+32+r}, v{R+32+r}, v{R+48+r}")
    for r in range(16):
        A(f"v_add_f32 v{R+r}, v{R+r}, v{R+32+r}")
    A("s_nop 1")
    for x in range(2):
        for r in range(4):
            A(f"v_permlane32_swap_b32 v{R+8*x+r}, v{R+8*x+4+r}")
    for x in range(2):
        for r in range(4):
            A(f"v_lshlrev_b32 v{t0}, 16, v{XR+4*x+r}")
            A(f"v_and_b32 v{t1}, 0xffff0000, v{XR+4*x+r}")
            A(f"v_add_f32 v{R+8*x+2*r}, v{R+8*x+2*r}, v{t0}")
            A(f"v_add_f32 v{R+8*x+2*r+1}, v{R+8*x+2*r+1}, v{t1}")
        for r in range(4):
            A(f"v_cvt_pk_bf16_f32 v{XR+4*x+r}, v{R+8*x+2*r}, v{R+8*x+2*r+1}")
    A(f"buffer_store_dwordx4 {v(XR,4)}, v{vX}, s[{sOUT}:{sOUT+3}], 0 offen")
    A(f"buffer_store_dwordx4 {v(XR+4,4)}, v{vX}, s[{sOUT}:{sOUT+3}], 0 offen offset:32")
    if c.stamps:
        A("s_waitcnt vmcnt(0)")
        ST.stamp(real=True)
        ST.flush(2, c.sWV, c.sWSp, t0, t1, sTmp, 60)
    A("s_endpgm")
    if not A.trace:
        A.label(Lskip)
        A("s_barrier")
        A("s_endpgm")
```

```python
import sys
from common import *
import common, fused
def build(path, stamps=False, **kw):
    A = Asm()
    hdr = open("parallel_sum__softmax_full_mha__swiglu_ffn__prompt.s.ref").read().split("\n")
    for ln in hdr:
        if ln.startswith(";") and "@launch" not in ln and "Override launch" not in ln and "grid=ceil" not in ln:
            A.lines.append(ln)
        if not ln.startswith(";"): break
    A.lines.append(f"; @launch grid=(256,1,1) block=(512,1,1) lds={fused.LDS_BYTES}")
    A('.amdgcn_target "amdgcn-amd-amdhsa--gfx950"')
    nv = fused.gen(A, stamps=stamps, **kw)
    kernel_desc(A, fused.NAME, nv, 100)
    open(path, "w").write(A.text())
def check():
    e = []
    for kind, role in (('V',0),('Q',0),('H',1),('K',0),('K',1)):
        T = Asm(trace=True); fused.gen(T, trace=("A",kind,role)); e += check_trace(T.lines, f"A {kind}{role}")
    T = Asm(trace=True); fused.gen(T, trace=("attn",)); e += check_trace(T.lines, "attn")
    T = Asm(trace=True); fused.gen(T, trace=("gemm",)); e += check_trace(T.lines, "gemm")
    for x in e[:30]: print(x)
    print("hazard errors:", len(e))
if __name__ == "__main__":
    check()
    build("fused.s")
    build("fused_s.s", stamps=True)
    build("fused_fb.s", force_fallback=True)
    common.ALLREAL = True
    build("fused_rt_s.s", stamps=True)
```

```python
from common import *
XB = 14*8192
WSLOT = 10*1024
STATS = XB + 4*WSLOT

def phaseA(c, only=None):
    A, ST, name, exp, STF = c.A, c.ST, c.name, c.exp, c.STF
    sWV = c.sWV
    vLane, vL16 = 1, 2
    vXe, vXo, vW = 3, 4, 5
    vD = [6, 7, 8]
    vT = [9, 10, 11, 12, 13]
    vR, vNMR = 14, 15
    F = 16
    ACC = 56
    vDA, vDQ, vPA, vPQ = 152, 153, 154, 155
    PF = 160
    def FX(b, tl): return F + 20*b + 4*tl
    def FW(b, t): return F + 20*b + 8 + 4*t
    def AC(t, tl): return ACC + 32*t + 16*tl
    sX, sA, sQK, sWS, sWM = 4, 8, 16, 20, 12
    sRB, sG, sTH, sCH = 24, 25, 27, 28
    sStr, sKA, sKQ, sMA, sMQ = 29, 30, 31, 32, 33
    sCnt, sTmp, sTmp2, sTmp3 = 34, 35, 36, 37
    sIsV, sE, sScale, sPad2, sPad3 = 38, 39, 40, 41, 42
    sTT0, sTT1, sFB = 43, 44, 45
    sHi = 46
    sWR, sStep, sPFA = 48, 49, 50
    sPFo, sPFs, sPFq, sIsQ0 = 51, 52, 53, 54
    l = vLane
    t0, t1, t2, t3, t4 = vT

    def setup():
        A(f"s_and_b32 s{sTmp}, s2, 7")
        A(f"s_lshr_b32 s{sTmp2}, s2, 3")
        A(f"s_and_b32 s{sRB}, s{sTmp}, 1")
        A(f"s_lshl_b32 s{sRB}, s{sRB}, 3")
        A(f"s_and_b32 s{sTmp3}, s{sTmp2}, 7")
        A(f"s_add_u32 s{sRB}, s{sRB}, s{sTmp3}")
        A(f"s_lshr_b32 s{sG}, s{sTmp}, 1")
        A(f"s_lshl_b32 s{sG}, s{sG}, 2")
        A(f"s_lshr_b32 s{sTmp3}, s{sTmp2}, 3")
        A(f"s_add_u32 s{sG}, s{sG}, s{sTmp3}")
        A(f"s_cmp_ge_u32 s{sG}, 14")
        A(f"s_cselect_b32 s{sIsV}, 1, 0")
        A(f"v_lshrrev_b32 v{t0}, 2, v{l}")
        A(f"v_and_b32 v{t1}, 3, v{l}")
        A(f"s_and_b32 s{sTH}, s{sWV}, 1")
        A(f"s_bfe_u32 s{sCH}, s{sWV}, 0x10001")
        A(f"v_bfe_u32 v{t2}, v{l}, 4, 2")
        A(f"v_xor_b32 v{t2}, v{t2}, v{t1}")
        A(f"s_lshl_b32 s{sTmp}, s{sRB}, 7")
        A(f"s_lshl_b32 s{sTmp2}, s{sWV}, 4")
        A(f"s_add_u32 s{sTmp}, s{sTmp}, s{sTmp2}")
        A(f"v_add_u32 v{t3}, s{sTmp}, v{t0}")
        A(f"v_mul_u32_u24 v{t3}, 896, v{t3}")
        A(f"v_lshl_add_u32 v{vD[0]}, v{t2}, 4, v{t3}")
        A(f"s_lshl_b32 s{sTmp3}, s{sWV}, 10")
        A("s_waitcnt lgkmcnt(0)")
        make_srd(A, sX, 56, SZ_X)
        for i in range(14):
            A(f"s_add_u32 m0, s{sTmp3}, {i*8192}")
            A(f"s_movk_i32 s{sTmp}, {64*i}")
            A(f"buffer_load_dwordx4 v{vD[0]}, s[{sX}:{sX+3}], s{sTmp} offen lds")
        if not A.trace:
            Lt = name + "_notag"
            A(f"s_or_b32 s{sTmp}, s2, s{sWV}")
            A(f"s_cmp_lg_u32 s{sTmp}, 0")
            A(f"s_cbranch_scc1 {Lt}")
            A(f"s_memrealtime s[52:53]")
            A(f"s_mov_b32 s12, s{c.sDBG}"); A(f"s_and_b32 s13, s{c.sDBG+1}, 0xffff"); A("s_mov_b32 s14, 256"); A("s_mov_b32 s15, 0x20000")
            A("s_waitcnt lgkmcnt(0)")
            A(f"s_lshl_b32 s52, s52, 2")
            A(f"s_or_b32 s52, s52, 0x80000000")
            A(f"v_mov_b32 v{t3}, s52")
            A(f"v_mov_b32 v{t4}, 0")
            A("s_mov_b64 exec, 1")
            A(f"buffer_store_dword v{t3}, v{t4}, s[12:15], 0 offen sc0 sc1")
            A("s_mov_b64 exec, -1")
            A.label(Lt)
        make_srd(A, sWS, c.sWSp, WS_USED)
        A(f"v_add_u32 v{vD[1]}, s{sTmp3}, v{vL16}")
        make_srd(A, sQK, 58, SZ_WQKV)
        A(f"s_cmp_eq_u32 s{sTH}, 0")
        A(f"s_cselect_b32 s{sA}, s60, s62")
        A(f"s_cselect_b32 s{sA+1}, s61, s63")
        A(f"s_cmp_eq_u32 s{sIsV}, 1")
        A(f"s_cselect_b32 s{sA}, s58, s{sA}")
        A(f"s_cselect_b32 s{sA+1}, s59, s{sA+1}")
        A(f"s_mov_b32 s{sA+2}, {SZ_WG}")
        A(f"s_cselect_b32 s{sA+2}, {SZ_WQKV}, s{sA+2}")
        A(f"s_movk_i32 s{sStr}, 3584")
        A(f"s_cselect_b32 s{sStr}, 2688, s{sStr}")
        A(f"s_and_b32 s{sA+1}, s{sA+1}, 0xffff")
        A(f"s_mov_b32 s{sA+3}, 0x20000")
        A(f"s_lshl_b32 s{sStep}, s{sStr}, 4")
        A(f"s_lshr_b32 s{sTmp3}, s{sWV}, 2")
        A(f"s_lshl_b32 s{sTmp}, s{sCH}, 1")
        A(f"s_add_u32 s{sTmp}, s{sTmp}, s{sTmp3}")
        A(f"s_lshl_b32 s{sTmp2}, s{sTmp}, 6")
        A(f"s_lshl_b32 s{sE}, s{sG}, 8")
        A(f"s_add_u32 s{sTmp2}, s{sTmp2}, s{sE}")
        A(f"s_lshl_b32 s{sTmp}, s{sTmp}, 1")
        A(f"s_add_u32 s{sTmp}, s{sTmp}, s{sTH}")
        A(f"s_mul_i32 s{sTmp}, s{sTmp}, 56")
        A(f"s_mul_i32 s{sE}, s{sG}, 448")
        A(f"s_add_u32 s{sTmp}, s{sTmp}, s{sE}")
        A(f"s_sub_u32 s{sTmp}, s{sTmp}, {448*14-1792}")
        A(f"s_cmp_eq_u32 s{sIsV}, 1")
        A(f"s_cselect_b32 s{sE}, s{sTmp}, s{sTmp2}")
        A(f"v_mul_lo_u32 v{t2}, v{t0}, s{sStr}")
        A(f"v_lshl_add_u32 v{t2}, v{t1}, 4, v{t2}")
        A(f"v_add_u32 v{vDA}, s{sE}, v{t2}")
        A(f"v_mul_u32_u24 v{t2}, 2688, v{t0}")
        A(f"v_lshl_add_u32 v{t2}, v{t1}, 4, v{t2}")
        A(f"s_mul_i32 s{sTmp}, s{sG}, 112")
        A(f"s_mul_i32 s{sTmp2}, s{sCH}, 56")
        A(f"s_add_u32 s{sTmp}, s{sTmp}, s{sTmp2}")
        A(f"v_add_u32 v{vDQ}, s{sTmp}, v{t2}")
        A(f"s_mul_i32 s{sTmp}, s{sCH}, 5")
        A(f"s_lshl_b32 s{sTmp2}, s{sTmp3}, 1")
        A(f"s_add_u32 s{sTmp2}, s{sTmp2}, s{sTmp}")
        A(f"s_add_u32 s{sTmp2}, s{sTmp2}, s{sTH}")
        A(f"s_lshl_b32 s{sMA}, s{sTmp2}, 10")
        A(f"s_add_u32 s{sMA}, s{sMA}, {XB}")
        A(f"s_add_u32 s{sTmp2}, s{sTmp}, 4")
        A(f"s_lshl_b32 s{sMQ}, s{sTmp2}, 10")
        A(f"s_add_u32 s{sMQ}, s{sMQ}, {XB}")
        A(f"s_mov_b32 s{sKA}, 0"); A(f"s_mov_b32 s{sKQ}, 0")
        A(f"s_mov_b32 s{sHi}, 0"); A(f"s_mov_b32 s{sHi+1}, -1")
        A(f"s_lshl_b32 s{sTmp2}, s{sTmp3}, 1")
        A(f"s_add_u32 s{sTmp}, s{sTmp}, s{sTmp2}")
        A(f"s_lshl_b32 s{sTmp}, s{sTmp}, 10")
        A(f"s_add_u32 s{sTmp}, s{sTmp}, {XB}")
        A(f"v_lshrrev_b32 v{t2}, 5, v{l}")
        A(f"v_lshlrev_b32 v{t2}, 9, v{t2}")
        A(f"v_bfe_u32 v{t3}, v{l}, 2, 2")
        A(f"v_lshl_add_u32 v{t2}, v{t3}, 6, v{t2}")
        A(f"v_bfe_u32 v{t3}, v{l}, 4, 1")
        A(f"v_lshl_add_u32 v{t2}, v{t3}, 5, v{t2}")
        A(f"v_lshl_add_u32 v{t2}, v{t1}, 3, v{t2}")
        A(f"v_add_u32 v{vW}, s{sTmp}, v{t2}")
        A(f"v_and_b32 v{t2}, 31, v{l}")
        A(f"v_lshrrev_b32 v{t3}, 5, v{l}")
        A(f"v_bfe_u32 v{t4}, v{l}, 2, 2")
        A(f"v_xor_b32 v{t3}, v{t3}, v{t4}")
        A(f"v_lshlrev_b32 v{t3}, 4, v{t3}")
        A(f"v_lshl_add_u32 v{t2}, v{t2}, 6, v{t3}")
        A(f"s_lshl_b32 s{sTmp}, s{sTH}, 12")
        A(f"v_add_u32 v{vXe}, s{sTmp}, v{t2}")
        A(f"v_xor_b32 v{vXo}, 32, v{vXe}")
        A(f"s_lshl_b32 s{sTT0}, s{sRB}, 2")
        A(f"s_lshl_b32 s{sTmp}, s{sTH}, 1")
        A(f"s_add_u32 s{sTT0}, s{sTT0}, s{sTmp}")
        A(f"s_add_u32 s{sTT1}, s{sTT0}, 1")
        A(f"v_lshrrev_b32 v{t2}, 4, v{l}")
        A(f"v_lshlrev_b32 v{t2}, 4, v{t2}")
        A(f"v_bfe_u32 v{t3}, v{l}, 3, 1")
        A(f"v_add_u32 v{t2}, v{t2}, v{t3}")
        A(f"v_and_b32 v{t3}, 7, v{l}")
        A(f"v_lshlrev_b32 v{t3}, 4, v{t3}")
        A(f"v_mul_lo_u32 v{vPA}, v{t2}, s{sStr}")
        A(f"v_add_u32 v{vPA}, v{vPA}, v{t3}")
        A(f"v_mul_u32_u24 v{vPQ}, 2688, v{t2}")
        A(f"v_add_u32 v{vPQ}, v{vPQ}, v{t3}")
        A(f"s_lshl_b32 s{sTmp}, s{sG}, 8")
        A(f"s_mul_i32 s{sTmp2}, s{sG}, 448")
        A(f"s_sub_u32 s{sTmp2}, s{sTmp2}, {448*14-1792}")
        A(f"s_lshl_b32 s{sTmp3}, s{sTH}, 8")
        A(f"s_add_u32 s{sTmp2}, s{sTmp2}, s{sTmp3}")
        A(f"s_cmp_eq_u32 s{sIsV}, 1")
        A(f"s_cselect_b32 s{sPFA}, s{sTmp2}, s{sTmp}")

    def prefetch_groups():
        G = []
        pre = [f"s_and_b32 s{sTmp}, s{sRB}, 7",
               f"s_lshl_b32 s{sTmp}, s{sTmp}, 1",
               f"s_lshr_b32 s{sTmp2}, s{sWV}, 2",
               f"s_lshl_b32 s{sTmp2}, s{sTmp2}, 6",
               f"s_add_u32 s{sTmp2}, s{sTmp2}, s{sTmp}",
               f"s_mul_i32 s{sPFo}, s{sTmp2}, s{sStr}",
               f"s_add_u32 s{sPFo}, s{sPFo}, s{sPFA}",
               f"s_lshl_b32 s{sTmp2}, s{sCH}, 7",
               f"s_add_u32 s{sPFo}, s{sPFo}, s{sTmp2}",
               f"s_lshl_b32 s{sPFs}, s{sStr}, 7",
               f"s_mul_i32 s{sTmp2}, s{sWV}, 64",
               f"s_add_u32 s{sTmp2}, s{sTmp2}, s{sTmp}",
               f"s_mul_i32 s{sPFq}, s{sTmp2}, 2688",
               f"s_mul_i32 s{sTmp}, s{sG}, 112",
               f"s_add_u32 s{sPFq}, s{sPFq}, s{sTmp}"]
        for q in range(4):
            g = pre if q == 0 else []
            g = g + [f"buffer_load_dwordx4 {v(PF+4*q,4)}, v{vPA}, s[{sA}:{sA+3}], s{sPFo} offen",
                     f"s_add_u32 s{sPFo}, s{sPFo}, s{sPFs}"]
            G.append(g)
            if q == 0:
                G.append([f"buffer_load_dwordx4 {v(PF+16,4)}, v{vPQ}, s[{sQK}:{sQK+3}], s{sPFq} offen"])
        w = [f"s_lshl_b32 s{sTmp}, s2, 3", f"s_add_u32 s{sTmp}, s{sTmp}, s{sWV}", f"s_lshl_b32 s{sTmp}, s{sTmp}, 10",
             f"s_mov_b32 s{sWM}, s64", f"s_and_b32 s{sWM+1}, s65, 0xffff", f"s_mov_b32 s{sWM+2}, {SZ_WD}", f"s_mov_b32 s{sWM+3}, 0x20000",
             f"s_cmp_lt_u32 s{sTmp}, {SZ_WD}",
             f"s_cselect_b32 s{sWM}, s{sWM}, s66", f"s_cselect_b32 s{sWM+1}, s{sWM+1}, s67",
             f"s_cselect_b32 s{sWM+2}, s{sWM+2}, {SZ_WO}", f"s_cselect_b32 s{sTmp2}, 0, {SZ_WD}",
             f"s_and_b32 s{sWM+1}, s{sWM+1}, 0xffff", f"s_sub_u32 s{sTmp}, s{sTmp}, s{sTmp2}",
             f"buffer_load_dwordx4 {v(PF+20,4)}, v{vL16}, s[{sWM}:{sWM+3}], s{sTmp} offen"]
        G.append(w)
        return G

    def cdma(var, slot):
        role, th = var
        L = [f"s_add_u32 m0, s{sMA}, {slot*WSLOT}", f"s_nop 0",
             f"buffer_load_dwordx4 v{vDA}, s[{sA}:{sA+3}], s{sKA} offen lds",
             f"s_add_u32 s{sKA}, s{sKA}, s{sStep}"]
        if role == 1 and th == 0:
            L += [f"s_add_u32 m0, s{sMQ}, {slot*WSLOT}", f"s_nop 0",
                  f"buffer_load_dwordx4 v{vDQ}, s[{sQK}:{sQK+3}], s{sKQ} offen lds",
                  f"s_add_u32 s{sKQ}, s{sKQ}, {16*2688}"]
        return L
    def ndma(var): return 2 if var == (1, 0) else 1

    def cdma_rt(slot):
        for x_ in cdma((0, 0), slot): A(x_)
        if A.trace:
            if c.trace_q0:
                for x_ in cdma((1, 0), slot)[4:]: A(x_)
            return
        L = A.newlabel(name + "_nq")
        A(f"s_cmp_eq_u32 s{sIsQ0}, 0")
        A(f"s_cbranch_scc1 {L}")
        for x_ in cdma((1, 0), slot)[4:]: A(x_)
        A.label(L)

    def ln():
        RB = [F, F+4]
        A(f"s_lshr_b32 s{sTmp}, s{sWV}, 2")
        A(f"s_xor_b32 s{sTmp2}, s{sTH}, 1")
        A(f"s_and_b32 s{sIsQ0}, s{sTmp}, s{sTmp2}")
        A(f"v_mov_b32 v{t4}, 0x3f803f80")
        for r in (t0, t1, t2, t3): A(f"v_mov_b32 v{r}, 0")
        A(f"v_add_u32 v{vD[0]}, 0x10000, v{vD[1]}")
        def rd(i, dst):
            if i*8192 < 65536: A(f"ds_read_b128 {v(dst,4)}, v{vD[1]} offset:{i*8192}")
            else: A(f"ds_read_b128 {v(dst,4)}, v{vD[0]} offset:{i*8192-65536}")
        def wr(i, src):
            if i*8192 < 65536: A(f"ds_write_b128 v{vD[1]}, {v(src,4)} offset:{i*8192}")
            else: A(f"ds_write_b128 v{vD[0]}, {v(src,4)} offset:{i*8192-65536}")
        A(f"s_waitcnt vmcnt(13)")
        rd(0, RB[0])
        for i in range(14):
            if i+1 < 14:
                A(f"s_waitcnt vmcnt({12-i})")
                rd(i+1, RB[(i+1) & 1])
                A("s_waitcnt lgkmcnt(1)")
            else:
                A("s_waitcnt lgkmcnt(0)")
            for k in range(4):
                R = RB[i & 1]+k
                A(f"v_dot2c_f32_bf16 v{t0 if k%2==0 else t1}, v{R}, v{t4}")
                A(f"v_dot2c_f32_bf16 v{t2 if k%2==0 else t3}, v{R}, v{R}")
        ST.stamp()
        RA = [F+8, F+12]; T = [F+16+k for k in range(8)]
        rd(0, RA[0])
        cdma_rt(0); cdma_rt(1)
        A(f"v_add_f32 v{t0}, v{t0}, v{t1}")
        A(f"v_add_f32 v{t2}, v{t2}, v{t3}")
        for qp in ("[1,0,3,2]", "[2,3,0,1]"):
            A("s_nop 1")
            A(f"v_add_f32_dpp v{t0}, v{t0}, v{t0} quad_perm:{qp} row_mask:0xf bank_mask:0xf")
            A(f"v_add_f32_dpp v{t2}, v{t2}, v{t2} quad_perm:{qp} row_mask:0xf bank_mask:0xf")
        A(f"v_mul_f32 v{t0}, {f2u(1.0/448):#x}, v{t0}")
        A(f"v_mul_f32 v{t2}, {f2u(1.0/448):#x}, v{t2}")
        A(f"v_fma_f32 v{t2}, -v{t0}, v{t0}, v{t2}")
        A(f"v_max_f32 v{t2}, 0, v{t2}")
        A(f"v_add_f32 v{t2}, {f2u(1e-5):#x}, v{t2}")
        A(f"v_rsq_f32 v{vR}, v{t2}")
        A("s_nop 0")
        A(f"v_mul_f32 v{t0}, v{t0}, v{vR}")
        A(f"v_sub_f32 v{vNMR}, 0, v{t0}")
        def norm(R0):
            R = [R0+k for k in range(4)]
            for k in range(4):
                A(f"v_lshlrev_b32 v{T[2*k]}, 16, v{R[k]}")
                A(f"v_and_b32 v{T[2*k+1]}, 0xffff0000, v{R[k]}")
            for k in range(8):
                A(f"v_fma_f32 v{T[k]}, v{T[k]}, v{vR}, v{vNMR}")
            for k in range(4):
                A(f"v_cvt_pk_bf16_f32 v{R[k]}, v{T[2*k]}, v{T[2*k+1]}")
        G = prefetch_groups()
        sched = {1: "st2", 3: "st3"}
        gi = 0
        for i in range(14):
            if i+1 < 14: rd(i+1, RA[(i+1) & 1])
            A(f"s_waitcnt lgkmcnt({1 if i+1 < 14 else 0})" if i == 0 else f"s_waitcnt lgkmcnt({2 if i+1 < 14 else 1})")
            norm(RA[i & 1])
            wr(i, RA[i & 1])
            if i in sched:
                cdma_rt(2 if sched[i] == "st2" else 3)
            elif i >= 5 and gi < len(G):
                for x_ in G[gi]: A(x_)
                gi += 1
        assert gi == len(G), (gi, len(G))
        return len(G)

    def reads_x(b, k4):
        ad = vXe if k4 % 2 == 0 else vXo
        return [f"ds_read_b128 {v(FX(b,tl),4)}, v{ad} offset:{(k4//2)*8192 + tl*2048}" for tl in range(2)]
    def reads_w(role, b, slot):
        nt = 2 if role == 0 else 3
        L = []
        for t in range(nt):
            j = t if t < 2 else (4 - 2*role)
            for q in range(2):
                L.append(f"ds_read_b64_tr_b16 {v(FW(b,t)+2*q,2)}, v{vW} offset:{slot*WSLOT + j*1024 + q*256}")
        return L
    def mf(role, isV, b, first):
        nt = 2 if role == 0 else 3
        L = []
        for t in range(nt):
            for tl in range(2):
                acc = AC(t, tl)
                cc = "0" if first else v(acc,16)
                if isV and t < 2:
                    L.append(f"v_mfma_f32_32x32x16_bf16 {v(acc,16)}, {v(FX(b,tl),4)}, {v(FW(b,t),4)}, {cc}")
                else:
                    L.append(f"v_mfma_f32_32x32x16_bf16 {v(acc,16)}, {v(FW(b,t),4)}, {v(FX(b,tl),4)}, {cc}")
        return L
    def interleave_post(mfl, others):
        n = len(mfl); k = len(others); idx = 0
        per = (k + n - 1)//n
        for i in range(n):
            A(mfl[i])
            for _ in range(per):
                if idx < k: A(others[idx]); idx += 1
        while idx < k: A(others[idx]); idx += 1
    def kstep(var, isV, k4, first=False, last=False, do_dma=True, vm=None):
        role, th = var
        b = k4 & 1
        M = mf(role, isV, b, first)
        A("s_waitcnt lgkmcnt(0)")
        A(M[0]); A(M[1])
        if last:
            for m in M[2:]: A(m)
            return
        A(f"s_waitcnt vmcnt({vm})")
        A("s_barrier")
        nxt = (k4+1) % 4
        oth = []
        if k4 == 3:
            oth += [f"v_add_u32 v{vXe}, 16384, v{vXe}", f"v_add_u32 v{vXo}, 16384, v{vXo}"]
        oth += reads_w(role, b ^ 1, nxt) + reads_x(b ^ 1, nxt)
        if do_dma: oth += cdma(var, k4)
        interleave_post(M[2:], oth)

    def epilogue(role, isV):
        TM = [F, F+1, F+2, F+3]
        def store_frags(src8, soff):
            A(f"buffer_store_dwordx4 {v(src8,4)}, v{vL16}, s[{sWS}:{sWS+3}], s{soff} offen{STF}")
            A(f"buffer_store_dwordx4 {v(src8+4,4)}, v{vL16}, s[{sWS}:{sWS+3}], s{soff} offen offset:1024{STF}")
        sTT = [sTT0, sTT1]
        if role == 1:
            A(f"s_lshl_b32 s{sE}, s{sG}, 1")
            A(f"s_add_u32 s{sE}, s{sE}, s{sCH}")
            A(f"s_cmp_lt_u32 s{sE}, 16")
            A(f"s_cselect_b32 s{sScale}, {f2u(CSCALE):#x}, 1.0")
            A(f"s_cselect_b32 s{sPad2}, 0, 0x3f803f80")
            A(f"s_cselect_b32 s{sPad3}, 0, 0x00003f80")
            for tl in range(2):
                C = AC(2, tl)
                for i in range(16):
                    A(f"v_mul_f32 v{C+i}, s{sScale}, v{C+i}")
                for r in range(8):
                    A(f"v_cvt_pk_bf16_f32 v{C+r}, v{C+2*r}, v{C+2*r+1}")
                A(f"s_mov_b64 exec, s[{sHi}:{sHi+1}]")
                A(f"v_mov_b32 v{C+6}, s{sPad2}")
                A(f"v_mov_b32 v{C+7}, s{sPad3}")
                A(f"s_mov_b64 exec, -1")
                A(f"s_lshl_b32 s{sTmp}, s{sE}, 6")
                A(f"s_add_u32 s{sTmp}, s{sTmp}, s{sTT[tl]}")
                A(f"s_lshl_b32 s{sTmp}, s{sTmp}, 11")
                store_frags(C, sTmp)
        if not isV:
            A(f"s_lshl_b32 s{sTmp}, s{sG}, 2")
            A(f"s_lshl_b32 s{sTmp3}, s{sCH}, 1")
            A(f"s_add_u32 s{sTmp}, s{sTmp}, s{sTmp3}")
            A(f"s_add_u32 s{sTmp}, s{sTmp}, {role}")
            A(f"s_lshl_b32 s{sFB}, s{sTmp}, 1")
            A(f"s_mov_b32 s{sTmp2}, {f2u(-LOG2E):#x}")
            for tl in range(2):
                G = AC(0, tl); U = AC(1, tl)
                for i0 in range(0, 16, 4):
                    for i in range(4): A(f"v_mul_f32 v{TM[i]}, s{sTmp2}, v{G+i0+i}")
                    for i in range(4): A(f"v_exp_f32 v{TM[i]}, v{TM[i]}")
                    for i in range(4): A(f"v_mul_f32 v{G+i0+i}, v{G+i0+i}, v{U+i0+i}")
                    for i in range(4): A(f"v_add_f32 v{TM[i]}, 1.0, v{TM[i]}")
                    for i in range(4): A(f"v_rcp_f32 v{TM[i]}, v{TM[i]}")
                    A("s_nop 0")
                    for i in range(4): A(f"v_mul_f32 v{G+i0+i}, v{G+i0+i}, v{TM[i]}")
                for r in range(8):
                    A(f"v_cvt_pk_bf16_f32 v{U+r}, v{G+2*r}, v{G+2*r+1}")
                A(f"s_mul_i32 s{sTmp}, s{sTT[tl]}, 144")
                A(f"s_add_u32 s{sTmp}, s{sTmp}, s{sFB}")
                A(f"s_lshl_b32 s{sTmp}, s{sTmp}, 10")
                A(f"s_add_u32 s{sTmp}, s{sTmp}, {HF}")
                store_frags(U, sTmp)
        else:
            A(f"s_sub_u32 s{sTmp}, s{sG}, 14")
            A(f"s_lshl_b32 s{sTmp}, s{sTmp}, 3")
            A(f"s_lshl_b32 s{sTmp3}, s{sCH}, 2")
            A(f"s_add_u32 s{sTmp}, s{sTmp}, s{sTmp3}")
            A(f"s_add_u32 s{sFB}, s{sTmp}, {32+2*role}")
            A(f"v_cmp_eq_u32 vcc, 28, v{l}" )
            A(f"v_cmp_eq_u32 s[50:51], 60, v{l}")
            A("s_nop 3")
            A("s_or_b64 s[50:51], s[50:51], vcc")
            for tl in range(2):
                for t in range(2):
                    acc = AC(t, tl)
                    for r in range(8):
                        A(f"v_cvt_pk_bf16_f32 v{acc+r}, v{acc+2*r}, v{acc+2*r+1}")
                    A(f"s_mov_b64 exec, s[50:51]")
                    for r in range(8):
                        A(f"v_mov_b32 v{acc+r}, 0x3f803f80")
                    A(f"s_mov_b64 exec, -1")
                    A(f"s_add_u32 s{sTmp}, s{sFB}, {t}")
                    A(f"s_lshl_b32 s{sTmp}, s{sTmp}, 6")
                    A(f"s_add_u32 s{sTmp}, s{sTmp}, s{sTT[tl]}")
                    A(f"s_lshl_b32 s{sTmp}, s{sTmp}, 11")
                    store_frags(acc, sTmp)

    def variant(role, isV, th):
        var = (role, th if role == 1 else 0)
        nd = ndma(var)
        tag = f"{name}_r{role}v{int(isV)}t{th}"
        npf = c.npf
        A(f"s_waitcnt vmcnt({3*nd+npf}) lgkmcnt(0)")
        A("s_barrier")
        ST.stamp()
        for x_ in reads_w(role, 0, 0) + reads_x(0, 0): A(x_)
        def body(first, final):
            for k in range(4):
                if final: kstep(var, isV, k, last=(k == 3), do_dma=False, vm=(2-k)*nd if k < 3 else None)
                else: kstep(var, isV, k, first=(first and k == 0), vm=2*nd + (npf if (first and k <= 2) else 0))
        body(True, False)
        if A.trace:
            for it in range(5): body(False, False)
        else:
            A(f"s_mov_b32 s{sCnt}, 5")
            A.label(tag + "_loop")
            body(False, False)
            A(f"s_sub_u32 s{sCnt}, s{sCnt}, 1")
            A(f"s_cmp_lg_u32 s{sCnt}, 0")
            A(f"s_cbranch_scc1 {tag}_loop")
        body(False, True)
        ST.stamp()
        A.nop(12)
        epilogue(role, isV)
        c.nstamp_after_A = ST.n
        if not A.trace: A(f"s_branch {c.LB}")

    setup()
    c.trace_q0 = (only is not None and only[0] == 1 and only[2] == 0)
    c.npf = ln()
    if only is not None:
        variant(*only)
        return
    nsave = ST.n
    keys = [(0,0,0),(0,1,0),(1,0,0),(1,0,1),(1,1,0),(1,1,1)]
    labs = {k: f"{name}_V{k[0]}{k[1]}{k[2]}" for k in keys}
    A(f"s_lshr_b32 s{sTmp}, s{sWV}, 2")
    A(f"s_and_b32 s{sTmp3}, s{sTmp}, s{sTH}")
    A(f"s_lshl_b32 s{sTmp}, s{sTmp}, 2")
    A(f"s_lshl_b32 s{sTmp2}, s{sIsV}, 1")
    A(f"s_add_u32 s{sTmp}, s{sTmp}, s{sTmp2}")
    A(f"s_add_u32 s{sTmp}, s{sTmp}, s{sTmp3}")
    for k in keys[1:]:
        A(f"s_cmp_eq_u32 s{sTmp}, {k[0]*4+k[1]*2+k[2]}")
        A(f"s_cbranch_scc1 {labs[k]}")
    for k in keys:
        A.label(labs[k])
        ST.n = nsave
        variant(k[0], bool(k[1]), k[2])
```

```python
from common import *
XB = 14*8192
WSLOT = 8192
NSL = 4
CNT = XB + 5*WSLOT
FLAGA = 24*1024*1024
FLAGQ = FLAGA + 2*65536

def phaseA(c, only=None):
    A, ST, name, exp, STF = c.A, c.ST, c.name, c.exp, c.STF
    sWV = c.sWV
    vLane, vL16 = 1, 2
    vXe, vXo, vW = 3, 4, 5
    vD = [6, 7, 8]
    vT = [9, 10, 11, 12, 13]
    vR, vNMR = 14, 15
    F = 16
    ACC = 56
    vD1, vD2, vW1, vX1e, vX1o = 152, 153, 154, 155, 157
    vTAG, vZ = 156, 158
    vPA, vPQ = 160, 161
    PF = 164
    def FX(b, tl): return F + 16*b + 4*tl
    def FW(b, t): return F + 16*b + 8 + 4*t
    def AC(t, tl): return ACC + 32*t + 16*tl
    sX, sA, sQK, sWS, sWM, sU = 4, 8, 16, 20, 12, 52
    sRB, sG, sTH, sCH = 24, 25, 27, 28
    sStep2, sK1, sK2, sM1, sM2 = 29, 30, 31, 32, 33
    sCnt, sTmp, sTmp2, sTmp3 = 34, 35, 36, 37
    sTyA, sE, sScale, sPad2, sPad3 = 38, 39, 40, 41, 42
    sTT0, sTT1, sFB = 43, 44, 45
    sHi = 46
    sRole, sAi, sSlot, sDel, sNoD = 48, 49, 50, 51, 56+0
    sNoD = 26
    l = vLane
    t0, t1, t2, t3, t4 = vT

    def setup():
        A(f"s_and_b32 s{sTmp}, s2, 7")
        A(f"s_lshr_b32 s{sTmp2}, s2, 3")
        A(f"s_and_b32 s{sRB}, s{sTmp}, 1")
        A(f"s_lshl_b32 s{sRB}, s{sRB}, 3")
        A(f"s_and_b32 s{sTmp3}, s{sTmp2}, 7")
        A(f"s_add_u32 s{sRB}, s{sRB}, s{sTmp3}")
        A(f"s_lshr_b32 s{sG}, s{sTmp}, 1")
        A(f"s_lshl_b32 s{sG}, s{sG}, 2")
        A(f"s_lshr_b32 s{sTmp3}, s{sTmp2}, 3")
        A(f"s_add_u32 s{sG}, s{sG}, s{sTmp3}")
        A(f"v_lshrrev_b32 v{t0}, 2, v{l}")
        A(f"v_and_b32 v{t1}, 3, v{l}")
        A(f"v_bfe_u32 v{t2}, v{l}, 4, 2")
        A(f"v_xor_b32 v{t2}, v{t2}, v{t1}")
        A(f"s_lshl_b32 s{sTmp}, s{sRB}, 7")
        A(f"s_lshl_b32 s{sTmp2}, s{sWV}, 4")
        A(f"s_add_u32 s{sTmp}, s{sTmp}, s{sTmp2}")
        A(f"v_add_u32 v{t3}, s{sTmp}, v{t0}")
        A(f"v_mul_u32_u24 v{t3}, 896, v{t3}")
        A(f"v_lshl_add_u32 v{vD[0]}, v{t2}, 4, v{t3}")
        A(f"s_lshl_b32 s{sTmp3}, s{sWV}, 10")
        A("s_waitcnt lgkmcnt(0)")
        make_srd(A, sX, 56, SZ_X)
        A(f"v_mov_b32 v{vZ}, 0"); A(f"v_mov_b32 v{vZ+1}, 0")
        for i in range(14):
            A(f"s_add_u32 m0, s{sTmp3}, {i*8192}")
            A(f"s_movk_i32 s{sTmp}, {64*i}")
            A(f"buffer_load_dwordx4 v{vD[0]}, s[{sX}:{sX+3}], s{sTmp} offen lds")
        if not A.trace:
            Lt = name + "_notag"
            A(f"s_or_b32 s{sTmp}, s2, s{sWV}")
            A(f"s_cmp_lg_u32 s{sTmp}, 0")
            A(f"s_cbranch_scc1 {Lt}")
            A(f"s_memrealtime s[52:53]")
            A(f"s_mov_b32 s12, s{c.sDBG}"); A(f"s_and_b32 s13, s{c.sDBG+1}, 0xffff"); A("s_mov_b32 s14, 256"); A("s_mov_b32 s15, 0x20000")
            A("s_waitcnt lgkmcnt(0)")
            A(f"s_lshl_b32 s{sTmp}, s52, 2")
            A(f"s_or_b32 s{sTmp}, s{sTmp}, 0x80000000")
            A(f"v_mov_b32 v{t3}, s{sTmp}")
            A(f"v_mov_b32 v{t4}, 0")
            A("s_mov_b64 exec, 1")
            A(f"buffer_store_dword v{t3}, v{t4}, s[12:15], 0 offen sc0 sc1")
            A("s_mov_b64 exec, -1")
            A.label(Lt)
        A(f"v_mov_b32 v{t3}, {CNT}")
        A(f"ds_write_b64 v{t3}, v[{vZ}:{vZ+1}]")
        make_srd(A, sWS, c.sWSp, 0x2000000)
        make_srd(A, sQK, 58, SZ_WQKV)
        A(f"v_add_u32 v{vD[1]}, s{sTmp3}, v{vL16}")
        A(f"s_and_b32 s{sTH}, s{sWV}, 1")
        A(f"s_bfe_u32 s{sCH}, s{sWV}, 0x10001")
        A(f"s_lshr_b32 s{sRole}, s{sWV}, 2")
        A(f"s_lshr_b32 s{sAi}, s{sG}, 1")
        A(f"s_and_b32 s{sTyA}, s{sG}, 1")
        A(f"s_xor_b32 s{sTyA}, s{sTyA}, 1")
        A(f"s_cmp_eq_u32 s{sTH}, 0")
        A(f"s_cselect_b32 s{sA}, s60, s62"); A(f"s_cselect_b32 s{sA+1}, s61, s63")
        for r in (sA,):
            A(f"s_and_b32 s{r+1}, s{r+1}, 0xffff"); A(f"s_mov_b32 s{r+2}, {SZ_WG}"); A(f"s_mov_b32 s{r+3}, 0x20000")
        A(f"s_lshl_b32 s{sTmp}, s{sAi}, 1")
        A(f"s_add_u32 s{sTmp}, s{sTmp}, s{sCH}")
        A(f"s_mul_i32 s{sTmp2}, s{sTmp}, 56")
        A(f"s_cmp_eq_u32 s{sRole}, 0")
        A(f"s_cselect_b32 s{sTmp3}, 1792, 0")
        A(f"s_cselect_b32 s{sE}, 32, 0")
        A(f"s_cmp_eq_u32 s{sTyA}, 1")
        A(f"s_cselect_b32 s{sTmp3}, s{sTmp3}, 896")
        A(f"s_cselect_b32 s{sE}, s{sE}, 16")
        A(f"s_add_u32 s{sTmp2}, s{sTmp2}, s{sTmp3}")
        A(f"s_add_u32 s{sE}, s{sE}, s{sTmp}")
        A(f"v_mul_u32_u24 v{t2}, 2688, v{t0}")
        A(f"v_lshl_add_u32 v{t2}, v{t1}, 4, v{t2}")
        A(f"v_add_u32 v{vD1}, s{sTmp2}, v{t2}")
        A(f"s_lshl_b32 s{sTmp}, s{sRole}, 1")
        A(f"s_add_u32 s{sTmp}, s{sTmp}, s{sCH}")
        A(f"s_lshl_b32 s{sTmp2}, s{sTH}, 2")
        A(f"s_add_u32 s{sTmp2}, s{sTmp2}, s{sTmp}")
        A(f"s_lshl_b32 s{sTmp3}, s{sTH}, 1")
        A(f"s_add_u32 s{sTmp3}, s{sTmp3}, s{sRole}")
        A(f"s_lshl_b32 s{sM1}, s{sTmp3}, 1")
        A(f"s_add_u32 s{sM1}, s{sM1}, s{sCH}")
        A(f"s_cmp_eq_u32 s{sTyA}, 1")
        A(f"s_cselect_b32 s{sM1}, s{sTmp2}, s{sM1}")
        A(f"s_cselect_b32 s{sTmp3}, s{sTH}, s{sTmp3}")
        A(f"s_cselect_b32 s{sTmp}, s{sTmp}, s{sCH}")
        A(f"s_lshl_b32 s{sM1}, s{sM1}, 10")
        A(f"s_add_u32 s{sM1}, s{sM1}, {XB}")
        A(f"s_mul_i32 s{sK1}, s{sTmp3}, {16*2688}")
        A(f"v_lshrrev_b32 v{t2}, 5, v{l}")
        A(f"v_lshlrev_b32 v{t2}, 9, v{t2}")
        A(f"v_bfe_u32 v{t3}, v{l}, 2, 2")
        A(f"v_lshl_add_u32 v{t2}, v{t3}, 6, v{t2}")
        A(f"v_bfe_u32 v{t3}, v{l}, 4, 1")
        A(f"v_lshl_add_u32 v{t2}, v{t3}, 5, v{t2}")
        A(f"v_lshl_add_u32 v{t2}, v{t1}, 3, v{t2}")
        A(f"s_lshl_b32 s{sTmp}, s{sTmp}, 10")
        A(f"s_add_u32 s{sTmp}, s{sTmp}, {XB}")
        A(f"v_add_u32 v{vW1}, s{sTmp}, v{t2}")
        A(f"s_mul_i32 s{sTmp}, s{sAi}, 3")
        A(f"s_lshl_b32 s{sTmp2}, s{sCH}, 1")
        A(f"s_cmp_eq_u32 s{sRole}, 0")
        A(f"s_cselect_b32 s{sTmp3}, s{sTmp2}, 1")
        A(f"s_add_u32 s{sTmp}, s{sTmp}, s{sTmp3}")
        A(f"s_add_u32 s{sTmp2}, s{sTmp2}, s{sRole}")
        A(f"s_lshl_b32 s{sFB}, s{sAi}, 2")
        A(f"s_add_u32 s{sFB}, s{sFB}, 24")
        A(f"s_add_u32 s{sFB}, s{sFB}, s{sTmp2}")
        A(f"s_cmp_eq_u32 s{sTyA}, 1")
        A(f"s_cselect_b32 s{sFB}, s{sTmp}, s{sFB}")
        A(f"s_cselect_b32 s{sTmp3}, s{sTmp3}, s{sTmp2}")
        A(f"s_lshl_b32 s{sTmp}, s{sFB}, 6")
        A(f"v_mul_u32_u24 v{t3}, 3584, v{t0}")
        A(f"v_lshl_add_u32 v{t3}, v{t1}, 4, v{t3}")
        A(f"v_add_u32 v{vD2}, s{sTmp}, v{t3}")
        A(f"s_lshl_b32 s{sTmp3}, s{sTmp3}, 11")
        A(f"s_add_u32 s{sTmp3}, s{sTmp3}, {XB}")
        A(f"v_add_u32 v{vW}, s{sTmp3}, v{t2}")
        A(f"s_lshl_b32 s{sM2}, s{sTH}, 10")
        A(f"s_add_u32 s{sM2}, s{sM2}, s{sTmp3}")
        A(f"s_lshl_b32 s{sFB}, s{sFB}, 1")
        A(f"s_mov_b32 s{sK2}, 0")
        A(f"s_and_b32 s{sNoD}, s{sTyA}, s{sRole}")
        A(f"s_and_b32 s{sNoD}, s{sNoD}, s{sCH}")
        A(f"s_mov_b32 s{sHi}, 0"); A(f"s_mov_b32 s{sHi+1}, -1")
        A(f"v_and_b32 v{t2}, 31, v{l}")
        A(f"v_lshrrev_b32 v{t3}, 5, v{l}")
        A(f"v_bfe_u32 v{t4}, v{l}, 2, 2")
        A(f"v_xor_b32 v{t3}, v{t3}, v{t4}")
        A(f"v_lshlrev_b32 v{t3}, 4, v{t3}")
        A(f"v_lshl_add_u32 v{t2}, v{t2}, 6, v{t3}")
        A(f"s_lshl_b32 s{sTmp}, s{sTH}, 12")
        A(f"v_add_u32 v{vXe}, s{sTmp}, v{t2}")
        A(f"v_xor_b32 v{vXo}, 32, v{vXe}")
        A(f"s_lshl_b32 s{sTmp}, s{sRole}, 11")
        A(f"v_add_u32 v{vX1e}, s{sTmp}, v{vXe}")
        A(f"v_xor_b32 v{vX1o}, 32, v{vX1e}")
        A(f"v_lshrrev_b32 v{t2}, 4, v{l}")
        A(f"v_lshlrev_b32 v{t2}, 4, v{t2}")
        A(f"v_bfe_u32 v{t3}, v{l}, 3, 1")
        A(f"v_add_u32 v{t2}, v{t2}, v{t3}")
        A(f"v_and_b32 v{t3}, 7, v{l}")
        A(f"v_lshlrev_b32 v{t3}, 4, v{t3}")
        A(f"v_mul_u32_u24 v{vPA}, 3584, v{t2}")
        A(f"v_add_u32 v{vPA}, v{vPA}, v{t3}")
        A(f"v_mul_u32_u24 v{vPQ}, 2688, v{t2}")
        A(f"v_add_u32 v{vPQ}, v{vPQ}, v{t3}")
        A(f"s_lshl_b32 s{sTT0}, s{sRB}, 2")
        A(f"s_lshl_b32 s{sTmp}, s{sTH}, 1")
        A(f"s_add_u32 s{sTT0}, s{sTT0}, s{sTmp}")
        A(f"s_add_u32 s{sTT1}, s{sTT0}, 1")

    def prefetch():
        A(f"s_and_b32 s{sTmp}, s{sRB}, 7")
        A(f"s_lshl_b32 s{sTmp}, s{sTmp}, 1")
        A(f"s_mul_i32 s{sTmp2}, s{sAi}, 112")
        A(f"s_cmp_eq_u32 s{sTH}, 0")
        A(f"s_cselect_b32 s{sTmp3}, 1792, 0")
        A(f"s_cmp_eq_u32 s{sTyA}, 1")
        A(f"s_cselect_b32 s{sTmp3}, s{sTmp3}, 896")
        A(f"s_add_u32 s{sTmp2}, s{sTmp2}, s{sTmp3}")
        A(f"s_lshl_b32 s{sTmp3}, s{sCH}, 6")
        A(f"s_add_u32 s{sTmp3}, s{sTmp3}, s{sTmp}")
        A(f"s_mul_i32 s{sTmp3}, s{sTmp3}, 2688")
        A(f"s_add_u32 s{sScale}, s{sTmp3}, s{sTmp2}")
        A(f"s_mul_i32 s{sTmp2}, s{sAi}, 192")
        A(f"s_lshl_b32 s{sTmp3}, s{sAi}, 8")
        A(f"s_add_u32 s{sTmp3}, s{sTmp3}, {24*64}")
        A(f"s_cmp_eq_u32 s{sTyA}, 1")
        A(f"s_cselect_b32 s{sTmp2}, s{sTmp2}, s{sTmp3}")
        A(f"s_lshl_b32 s{sTmp3}, s{sCH}, 7")
        A(f"s_add_u32 s{sTmp2}, s{sTmp2}, s{sTmp3}")
        A(f"s_mul_i32 s{sTmp3}, s{sTmp}, 3584")
        A(f"s_add_u32 s{sPad2}, s{sTmp2}, s{sTmp3}")
        n = [0]
        def ld(vrow, srd, soff, off=0):
            t_ = f"buffer_load_dwordx4 {v(PF+4*n[0],4)}, v{vrow}, s[{srd}:{srd+3}], s{soff} offen" + (f" offset:{off}" if off else "")
            n[0] += 1
            return t_
        gq, ga, gb = [], [], []
        for m in range(4):
            gq += [ld(vPQ, sQK, sScale), f"s_add_u32 s{sScale}, s{sScale}, {128*2688}"]
        for m in range(7):
            (ga if m < 4 else gb).extend([ld(vPA, sA, sPad2), f"s_add_u32 s{sPad2}, s{sPad2}, {64*3584}"])
        gb += [f"s_lshl_b32 s{sTmp}, s2, 2", f"s_add_u32 s{sTmp}, s{sTmp}, s{sWV}", f"s_lshl_b32 s{sTmp}, s{sTmp}, 11",
               f"s_mov_b32 s{sWM}, s64", f"s_and_b32 s{sWM+1}, s65, 0xffff", f"s_mov_b32 s{sWM+2}, {SZ_WD}", f"s_mov_b32 s{sWM+3}, 0x20000",
               f"s_cmp_lt_u32 s{sTmp}, {SZ_WD}", f"s_cselect_b32 s{sWM}, s{sWM}, s66", f"s_cselect_b32 s{sWM+1}, s{sWM+1}, s67",
               f"s_cselect_b32 s{sWM+2}, s{sWM+2}, {SZ_WO}", f"s_cselect_b32 s{sTmp2}, 0, {SZ_WD}",
               f"s_and_b32 s{sWM+1}, s{sWM+1}, 0xffff", f"s_sub_u32 s{sPad3}, s{sTmp}, s{sTmp2}",
               ld(vL16, sWM, sPad3), ld(vL16, sWM, sPad3, 1024)]
        return gq, ga, gb

    def dma1(slot_imm=None):
        L = []
        if slot_imm is None: L.append(f"s_add_u32 m0, s{sM1}, s{sSlot}")
        else: L.append(f"s_add_u32 m0, s{sM1}, {slot_imm*WSLOT}")
        L += ["s_nop 0", f"buffer_load_dwordx4 v{vD1}, s[{sQK}:{sQK+3}], s{sK1} offen lds", f"s_add_u32 s{sK1}, s{sK1}, s{sDel}"]
        return L

    def ln():
        RB = [F, F+4]
        A(f"v_mov_b32 v{t4}, 0x3f803f80")
        for r in (t0, t1, t2, t3): A(f"v_mov_b32 v{r}, 0")
        A(f"v_add_u32 v{vD[0]}, 0x10000, v{vD[1]}")
        A(f"s_cmp_eq_u32 s{sTyA}, 1")
        A(f"s_mov_b32 s{sDel}, {64*2688}")
        A(f"s_cselect_b32 s{sDel}, {32*2688}, s{sDel}")
        def rd(i, dst):
            if i*8192 < 65536: A(f"ds_read_b128 {v(dst,4)}, v{vD[1]} offset:{i*8192}")
            else: A(f"ds_read_b128 {v(dst,4)}, v{vD[0]} offset:{i*8192-65536}")
        A(f"s_waitcnt vmcnt(13)")
        rd(0, RB[0])
        for i in range(14):
            if i+1 < 14:
                A(f"s_waitcnt vmcnt({12-i})")
                rd(i+1, RB[(i+1) & 1])
                A("s_waitcnt lgkmcnt(1)")
            else:
                A("s_waitcnt lgkmcnt(0)")
            for k in range(4):
                R = RB[i & 1]+k
                A(f"v_dot2c_f32_bf16 v{t0 if k%2==0 else t1}, v{R}, v{t4}")
                A(f"v_dot2c_f32_bf16 v{t2 if k%2==0 else t3}, v{R}, v{R}")
        ST.stamp()
        RA = [F+8, F+12]; T = [F+16+k for k in range(8)]
        A(f"ds_read_b128 {v(RA[0],4)}, v{vD[1]}")
        A.nop(1)
        for x_ in dma1(0) + dma1(1): A(x_)
        A(f"v_add_f32 v{t0}, v{t0}, v{t1}")
        A(f"v_add_f32 v{t2}, v{t2}, v{t3}")
        for qp in ("[1,0,3,2]", "[2,3,0,1]"):
            A("s_nop 1")
            A(f"v_add_f32_dpp v{t0}, v{t0}, v{t0} quad_perm:{qp} row_mask:0xf bank_mask:0xf")
            A(f"v_add_f32_dpp v{t2}, v{t2}, v{t2} quad_perm:{qp} row_mask:0xf bank_mask:0xf")
        A(f"v_mul_f32 v{t0}, {f2u(1.0/448):#x}, v{t0}")
        A(f"v_mul_f32 v{t2}, {f2u(1.0/448):#x}, v{t2}")
        A(f"v_fma_f32 v{t2}, -v{t0}, v{t0}, v{t2}")
        A(f"v_max_f32 v{t2}, 0, v{t2}")
        A(f"v_add_f32 v{t2}, {f2u(1e-5):#x}, v{t2}")
        A(f"v_rsq_f32 v{vR}, v{t2}")
        A("s_nop 0")
        A(f"v_mul_f32 v{t0}, v{t0}, v{vR}")
        A(f"v_sub_f32 v{vNMR}, 0, v{t0}")
        def norm(R0):
            R = [R0+k for k in range(4)]
            for k in range(4):
                A(f"v_lshlrev_b32 v{T[2*k]}, 16, v{R[k]}")
                A(f"v_and_b32 v{T[2*k+1]}, 0xffff0000, v{R[k]}")
            for k in range(8):
                A(f"v_fma_f32 v{T[k]}, v{T[k]}, v{vR}, v{vNMR}")
            for k in range(4):
                A(f"v_cvt_pk_bf16_f32 v{R[k]}, v{T[2*k]}, v{T[2*k+1]}")
        def nbody(last):
            A(f"ds_read_b128 {v(RA[1],4)}, v{vD[1]} offset:8192")
            A("s_waitcnt lgkmcnt(1)")
            norm(RA[0])
            A(f"ds_write_b128 v{vD[1]}, {v(RA[0],4)}")
            if not last:
                A(f"ds_read_b128 {v(RA[0],4)}, v{vD[1]} offset:16384")
            A(f"s_waitcnt lgkmcnt({2 if not last else 1})")
            norm(RA[1])
            A(f"ds_write_b128 v{vD[1]}, {v(RA[1],4)} offset:8192")
            if not last:
                A(f"v_add_u32 v{vD[1]}, 16384, v{vD[1]}")
        if A.trace:
            for it in range(6): nbody(False)
        else:
            Ln = A.newlabel(name + "_ln")
            A(f"s_mov_b32 s{sCnt}, 6")
            A.label(Ln)
            nbody(False)
            A(f"s_sub_u32 s{sCnt}, s{sCnt}, 1")
            A(f"s_cmp_lg_u32 s{sCnt}, 0")
            A(f"s_cbranch_scc1 {Ln}")
        nbody(True)
        for x_ in dma1(2): A(x_)
        if A.trace:
            if c.trace_role == 0:
                c.pf = prefetch()
                for x_ in c.pf[0]: A(x_)
        else:
            Lq = A.newlabel(name + "_qskip")
            A(f"s_cmp_ge_u32 s{sWV}, 4")
            A(f"s_cbranch_scc1 {Lq}")
            c.pf = prefetch()
            for x_ in c.pf[0]: A(x_)
            A.label(Lq)
        return 4

    def arrive(off, total_s, flagbase):
        A(f"v_mov_b32 v{t0}, {CNT+off}")
        A(f"v_mov_b32 v{t1}, 1")
        A("s_mov_b64 exec, 1")
        A(f"ds_add_rtn_u32 v{t1}, v{t0}, v{t1}")
        A("s_waitcnt lgkmcnt(0)")
        A("s_mov_b64 exec, -1")
        A(f"v_readfirstlane_b32 s{sTmp}, v{t1}")
        A("s_nop 3")
        A(f"s_cmp_lg_u32 s{sTmp}, {total_s-1}")
        L = A.newlabel(name + "_arr")
        if not A.trace: A(f"s_cbranch_scc1 {L}")
        A(f"s_lshl_b32 s{sTmp}, s2, 6")
        A(f"s_add_u32 s{sTmp}, s{sTmp}, {flagbase}")
        A(f"v_mov_b32 v{t0}, s{c.sTAG}")
        A(f"v_mov_b32 v{t1}, 0")
        A("s_mov_b64 exec, 1")
        A(f"buffer_store_dword v{t0}, v{t1}, s[{sWS}:{sWS+3}], s{sTmp} offen sc0 sc1")
        A("s_mov_b64 exec, -1")
        A.label(L)

    def store_frags(src8, soff):
        A(f"buffer_store_dwordx4 {v(src8,4)}, v{vL16}, s[{sWS}:{sWS+3}], s{soff} offen{STF}")
        A(f"buffer_store_dwordx4 {v(src8+4,4)}, v{vL16}, s[{sWS}:{sWS+3}], s{soff} offen offset:1024{STF}")

    def pass1(kind, npf_P):
        nks = 2 if kind != 'K' else 4
        ntl = 2 if kind != 'K' else 1
        nst = 28//nks
        blkstride = 4096 if kind != 'K' else 2048
        xe, xo = (vXe, vXo) if kind != 'K' else (vX1e, vX1o)
        FB = lambda b: F + 16*b
        def reads(b, ks, slot_off_v):
            L = []
            for q in range(2):
                L.append(f"ds_read_b64_tr_b16 {v(FB(b)+8+2*q,2)}, v{slot_off_v} offset:{ks*blkstride + q*256}")
            ad = xe if ks % 2 == 0 else xo
            for tl in range(ntl):
                L.append(f"ds_read_b128 {v(FB(b)+4*tl,4)}, v{ad} offset:{(ks//2)*8192 + tl*2048}")
            return L
        def mfm(b, first):
            L = []
            for tl in range(ntl):
                acc = ACC + 16*tl
                cc = "0" if first else v(acc,16)
                if kind == 'V': L.append(f"v_mfma_f32_32x32x16_bf16 {v(acc,16)}, {v(FB(b)+4*tl,4)}, {v(FB(b)+8,4)}, {cc}")
                else: L.append(f"v_mfma_f32_32x32x16_bf16 {v(acc,16)}, {v(FB(b)+8,4)}, {v(FB(b)+4*tl,4)}, {cc}")
            return L
        def stage(first, last, vm, do_dma, pre=()):
            for ks in range(nks):
                b = ks & 1
                A("s_waitcnt lgkmcnt(0)")
                M = mfm(b, first and ks == 0)
                if ks + 1 < nks:
                    A(M[0])
                    for x_ in reads(b ^ 1, ks+1, vW1): A(x_)
                    for m in M[1:]: A(m)
                    if ks == 0:
                        for x_ in pre: A(x_)
                else:
                    A(M[0])
                    if last:
                        for m in M[1:]: A(m)
                        return
                    A(f"s_waitcnt vmcnt({vm})")
                    A("s_barrier")
                    A(f"s_add_u32 s{sSlot}, s{sSlot}, {WSLOT}")
                    A(f"s_cmp_eq_u32 s{sSlot}, {NSL*WSLOT}")
                    A(f"s_movk_i32 s{sTmp}, {WSLOT}")
                    A(f"s_cselect_b32 s{sTmp}, {(-(NSL-1)*WSLOT) & 0xffffffff}, s{sTmp}")
                    A(f"s_cselect_b32 s{sSlot}, 0, s{sSlot}")
                    A(f"v_add_u32 v{vW1}, s{sTmp}, v{vW1}")
                    A(f"v_add_u32 v{xe}, {(nks//2)*8192}, v{xe}")
                    A(f"v_add_u32 v{xo}, {(nks//2)*8192}, v{xo}")
                    for x_ in reads(0, 0, vW1): A(x_)
                    for m in M[1:]: A(m)
                    if do_dma:
                        A(f"s_add_u32 s{sTmp}, s{sSlot}, {(NSL-1)*WSLOT}")
                        A(f"s_cmp_ge_u32 s{sTmp}, {NSL*WSLOT}")
                        A(f"s_cselect_b32 s{sTmp2}, {NSL*WSLOT}, 0")
                        A(f"s_sub_u32 s{sTmp}, s{sTmp}, s{sTmp2}")
                        A(f"s_add_u32 m0, s{sM1}, s{sTmp}")
                        A("s_nop 0")
                        A(f"buffer_load_dwordx4 v{vD1}, s[{sQK}:{sQK+3}], s{sK1} offen lds")
                        A(f"s_add_u32 s{sK1}, s{sK1}, s{sDel}")
        return stage, reads, nst

    def run_pass1(kind, role):
        stage, reads, nst = pass1(kind, c.npf)
        isP = role == 0
        fifo = ["st0", "st1", "st2"] + (["pf"]*4 if isP else []) + ["st3"]
        def need(tagname):
            i = len(fifo) - 1 - fifo[::-1].index(tagname)
            return len(fifo) - 1 - i
        for x_ in dma1(3): A(x_)
        A(f"s_mov_b32 s{sSlot}, 0")
        A(f"s_waitcnt vmcnt({need('st0')}) lgkmcnt(0)")
        A("s_barrier")
        ST.stamp()
        for x_ in reads(0, 0, vW1): A(x_)
        A(f"s_mov_b32 s52, s{c.sDBG}"); A(f"s_and_b32 s53, s{c.sDBG+1}, 0xffff"); A("s_mov_b32 s54, 256"); A("s_mov_b32 s55, 0x20000")
        A(f"buffer_load_dword v{vTAG}, v{vZ}, s[52:55], 0 offen sc0 sc1")
        fifo.append("tag")
        tag = f"{name}_p1{kind}{role}"
        def nloads(L): return sum(1 for x_ in L if x_.startswith("buffer_load"))
        def one(s_, pre=()):
            fifo.extend(["pf"]*nloads(pre))
            last = s_ == nst-1
            vm = None if last else need(f"st{s_+1}")
            dd = s_+4 <= nst-1
            stage(s_ == 0, last, vm, dd, pre)
            if dd: fifo.append(f"st{s_+4}")
        pres = {0: c.pf[1], 1: c.pf[2]} if isP else {}
        nexp = 5 if isP else 3
        s_ = 0
        while s_ < nst:
            if s_ >= nexp and s_+4 <= nst-1:
                cnt = (nst-5) - s_ + 1
                assert need(f"st{s_+1}") == 2, (kind, role, s_, fifo)
                if A.trace or cnt == 1:
                    for it in range(cnt): one(s_+it)
                else:
                    A(f"s_mov_b32 s{sCnt}, {cnt}")
                    A.label(tag + "_loop")
                    stage(False, False, 2, True)
                    A(f"s_sub_u32 s{sCnt}, s{sCnt}, 1")
                    A(f"s_cmp_lg_u32 s{sCnt}, 0")
                    A(f"s_cbranch_scc1 {tag}_loop")
                    for it in range(cnt): fifo.append(f"st{s_+it+4}")
                s_ += cnt
            else:
                one(s_, pres.get(s_, ()))
                s_ += 1
        A("s_barrier")
        ST.stamp()
        A(f"v_readfirstlane_b32 s{c.sTAG}, v{vTAG}")
        if not A.trace:
            Lt = A.newlabel(name + "_havetag")
            A("s_nop 3")
            A(f"s_cmp_lg_u32 s{c.sTAG}, 0")
            A(f"s_cbranch_scc1 {Lt}")
            c.get_tag(t0, 52)
            A.label(Lt)

    def epilogue1(kind):
        ntl = 2 if kind != 'K' else 1
        if kind == 'V':
            A(f"v_cmp_eq_u32 vcc, 28, v{l}" )
            A(f"v_cmp_eq_u32 s[4:5], 60, v{l}")
            A("s_nop 3")
            A("s_or_b64 s[4:5], s[4:5], vcc")
        for tl in range(ntl):
            C = ACC + 16*tl
            if kind == 'Q':
                A(f"s_mov_b32 s{sScale}, {f2u(CSCALE):#x}")
                for i in range(16): A(f"v_mul_f32 v{C+i}, s{sScale}, v{C+i}")
            for r in range(8):
                A(f"v_cvt_pk_bf16_f32 v{C+r}, v{C+2*r}, v{C+2*r+1}")
            if kind == 'V':
                A(f"s_mov_b64 exec, s[4:5]")
                for r in range(8): A(f"v_mov_b32 v{C+r}, 0x3f803f80")
            else:
                A(f"s_mov_b64 exec, s[{sHi}:{sHi+1}]")
                A(f"v_mov_b32 v{C+6}, {0 if kind == 'Q' else 0x3f803f80:#x}")
                A(f"v_mov_b32 v{C+7}, {0 if kind == 'Q' else 0x00003f80:#x}")
            A(f"s_mov_b64 exec, -1")
            A(f"s_lshl_b32 s{sTmp}, s{sE}, 6")
            if kind == 'K':
                A(f"s_add_u32 s{sTmp}, s{sTmp}, s{sTT0}")
                A(f"s_add_u32 s{sTmp}, s{sTmp}, s{sRole}")
            else:
                A(f"s_add_u32 s{sTmp}, s{sTmp}, s{[sTT0, sTT1][tl]}")
            A(f"s_lshl_b32 s{sTmp}, s{sTmp}, 11")
            store_frags(C, sTmp)
        return 2*ntl

    def dma2(slot, cond):
        L = [f"s_add_u32 m0, s{sM2}, {slot*WSLOT}", "s_nop 0",
             f"buffer_load_dwordx4 v{vD2}, s[{sA}:{sA+3}], s{sK2} offen lds",
             f"s_add_u32 s{sK2}, s{sK2}, {16*3584}"]
        return L
    def emit_dma2(slot, cond):
        if cond and not A.trace:
            Ls = A.newlabel(name + "_nod")
            A(f"s_cmp_eq_u32 s{sNoD}, 1")
            A(f"s_cbranch_scc1 {Ls}")
            for x_ in dma2(slot, cond): A(x_)
            A.label(Ls)
        else:
            for x_ in dma2(slot, cond): A(x_)

    def pass2(ntl, nst1):
        cond = (ntl == 1)
        xe, xo = (vXe, vXo) if ntl == 2 else (vX1e, vX1o)
        def reads(b, k4, slot):
            L = []
            for t in range(2):
                for q in range(2):
                    L.append(f"ds_read_b64_tr_b16 {v(FW(b,t)+2*q,2)}, v{vW} offset:{slot*WSLOT + t*1024 + q*256}")
            ad = xe if k4 % 2 == 0 else xo
            for tl in range(ntl):
                L.append(f"ds_read_b128 {v(FX(b,tl),4)}, v{ad} offset:{(k4//2)*8192 + tl*2048}")
            return L
        def mfm(b, first):
            L = []
            for t in range(2):
                for tl in range(ntl):
                    acc = AC(t, tl)
                    cc = "0" if first else v(acc,16)
                    L.append(f"v_mfma_f32_32x32x16_bf16 {v(acc,16)}, {v(FW(b,t),4)}, {v(FX(b,tl),4)}, {cc}")
            return L
        def kstep(k4, first=False, last=False, do_dma=True, vm=None, after=None):
            b = k4 & 1
            M = mfm(b, first)
            npre = 1 if ntl == 1 else 2
            A("s_waitcnt lgkmcnt(0)")
            for m in M[:npre]: A(m)
            if last:
                for m in M[npre:]: A(m)
                return
            A(f"s_waitcnt vmcnt({vm})")
            A("s_barrier")
            nxt = (k4+1) % 4
            oth = []
            if k4 == 3:
                oth += [f"v_add_u32 v{xe}, 16384, v{xe}", f"v_add_u32 v{xo}, 16384, v{xo}"]
            oth += reads(b ^ 1, nxt, nxt)
            rest = M[npre:]
            k = len(oth); per = (k + len(rest) - 1)//len(rest); idx = 0
            for m in rest:
                A(m)
                for _ in range(per):
                    if idx < k: A(oth[idx]); idx += 1
            if do_dma: emit_dma2(k4, cond)
            if after: after()
        return reads, kstep

    def run_pass2(ntl, nst1, tag):
        reads, kstep = pass2(ntl, nst1)
        A(f"s_waitcnt vmcnt({3+nst1}) lgkmcnt(0)")
        A("s_barrier")
        for x_ in reads(0, 0, 0): A(x_)
        def body(first, final):
            for k in range(4):
                if final: kstep(k, last=(k == 3), do_dma=False, vm=(2-k) if k < 3 else None)
                elif first:
                    vm = [2+nst1, 2+nst1, 2+nst1, 2][k]
                    def aft():
                        if ntl == 1 and not A.trace:
                            Ls = A.newlabel(name + "_ndw")
                            A(f"s_cmp_eq_u32 s{sNoD}, 0")
                            A(f"s_cbranch_scc1 {Ls}")
                            A("s_waitcnt vmcnt(0)")
                            A.label(Ls)
                        arrive(0, 8, FLAGQ)
                    kstep(k, first=(k == 0), vm=vm, after=(aft if k == 3 else None))
                else: kstep(k, vm=2)
        body(True, False)
        if A.trace:
            for it in range(5): body(False, False)
        else:
            A(f"s_mov_b32 s{sCnt}, 5")
            A.label(tag + "_loop")
            body(False, False)
            A(f"s_sub_u32 s{sCnt}, s{sCnt}, 1")
            A(f"s_cmp_lg_u32 s{sCnt}, 0")
            A(f"s_cbranch_scc1 {tag}_loop")
        body(False, True)
        A("s_barrier")
        ST.stamp()
        A.nop(11)

    def epilogue2(ntl):
        TM = [F, F+1, F+2, F+3]
        A(f"s_mov_b32 s{sTmp2}, {f2u(-LOG2E):#x}")
        for tl in range(ntl):
            G = AC(0, tl); U = AC(1, tl)
            for i0 in range(0, 16, 4):
                for i in range(4): A(f"v_mul_f32 v{TM[i]}, s{sTmp2}, v{G+i0+i}")
                for i in range(4): A(f"v_exp_f32 v{TM[i]}, v{TM[i]}")
                for i in range(4): A(f"v_mul_f32 v{G+i0+i}, v{G+i0+i}, v{U+i0+i}")
                for i in range(4): A(f"v_add_f32 v{TM[i]}, 1.0, v{TM[i]}")
                for i in range(4): A(f"v_rcp_f32 v{TM[i]}, v{TM[i]}")
                A("s_nop 0")
                for i in range(4): A(f"v_mul_f32 v{G+i0+i}, v{G+i0+i}, v{TM[i]}")
            for r in range(8):
                A(f"v_cvt_pk_bf16_f32 v{U+r}, v{G+2*r}, v{G+2*r+1}")
            if ntl == 2:
                A(f"s_mul_i32 s{sTmp}, s{[sTT0, sTT1][tl]}, 144")
            else:
                A(f"s_add_u32 s{sTmp}, s{sTT0}, s{sCH}")
                A(f"s_mul_i32 s{sTmp}, s{sTmp}, 144")
            A(f"s_add_u32 s{sTmp}, s{sTmp}, s{sFB}")
            A(f"s_lshl_b32 s{sTmp}, s{sTmp}, 10")
            A(f"s_add_u32 s{sTmp}, s{sTmp}, {HF}")
            store_frags(U, sTmp)
        A("s_waitcnt vmcnt(0)")
        arrive(4, 8, FLAGA)

    def variant(kind, role):
        tag = f"{name}_{kind}{role}"
        run_pass1(kind, role)
        ntl2 = 1 if kind == 'Q' else 2
        if kind == 'K':
            pass
        elif kind == 'V':
            A(f"v_subrev_u32 v{vXe}, {13*8192}, v{vXe}"); A(f"v_subrev_u32 v{vXo}, {13*8192}, v{vXo}")
        else:
            A(f"v_subrev_u32 v{vXe}, {13*8192}, v{vXe}")
            A(f"s_lshl_b32 s{sTmp}, s{sCH}, 11")
            A(f"v_add_u32 v{vX1e}, s{sTmp}, v{vXe}")
            A(f"v_xor_b32 v{vX1o}, 32, v{vX1e}")
        for sl in range(4): emit_dma2(sl, ntl2 == 1)
        A.nop(8)
        nst1 = epilogue1(kind)
        run_pass2(ntl2, nst1, tag + "_p2")
        epilogue2(ntl2)
        c.nstamp_after_A = ST.n
        if not A.trace: A(f"s_branch {c.LB}")

    setup()
    c.trace_role = only[1] if only is not None else None
    c.npf = ln()
    if only is not None:
        variant(*only)
        return
    nsave = ST.n
    keys = [('V',0), ('Q',1), ('K',0), ('K',1)]
    labs = {k: f"{name}_V{k[0]}{k[1]}" for k in keys}
    A(f"s_lshl_b32 s{sTmp}, s{sTyA}, 1")
    A(f"s_add_u32 s{sTmp}, s{sTmp}, s{sRole}")
    A(f"s_cmp_eq_u32 s{sTmp}, 3"); A(f"s_cbranch_scc1 {labs[('Q',1)]}")
    A(f"s_cmp_eq_u32 s{sTmp}, 0"); A(f"s_cbranch_scc1 {labs[('K',0)]}")
    A(f"s_cmp_eq_u32 s{sTmp}, 1"); A(f"s_cbranch_scc1 {labs[('K',1)]}")
    for k in keys:
        A.label(labs[k])
        ST.n = nsave
        variant(*k)
```

```python
from common import *
XB = 14*8192
WSLOT = 8192
NSL = 4
CNT = XB + 5*WSLOT
FLAGA = 24*1024*1024
FLAGQ = FLAGA + 2*65536

PFSTART = {'V': 6, 'K': 1, 'Q': 0}

def phaseA(c, only=None):
    A, ST, name, exp, STF = c.A, c.ST, c.name, c.exp, c.STF
    sWV = c.sWV
    vLane, vL16 = 1, 2
    vXe, vXo, vW = 3, 4, 5
    vD = [6, 7, 8]
    vT = [9, 10, 11, 12, 13]
    vR, vNMR = 14, 15
    F = 16
    ACC = 56
    vD1, vD2, vW1, vX1e, vX1o = 152, 153, 154, 155, 157
    vTAG, vZ = 156, 158
    vPA, vPQ = 160, 161
    PF = 164
    def FX(b, tl): return F + 16*b + 4*tl
    def FW(b, t): return F + 16*b + 8 + 4*t
    def AC(t, tl): return ACC + 32*t + 16*tl
    sX, sA, sQK, sWS, sWM, sU = 4, 8, 16, 20, 12, 52
    sRB, sG, sTH, sCH = 24, 25, 27, 28
    sStep2, sK1, sK2, sM1, sM2 = 29, 30, 31, 32, 33
    sCnt, sTmp, sTmp2, sTmp3 = 34, 35, 36, 37
    sTyA, sE, sScale, sPad2, sPad3 = 38, 39, 40, 41, 42
    sTT0, sTT1, sFB = 43, 44, 45
    sHi = 46
    sRole, sAi, sSlot, sDel, sNoD = 48, 49, 50, 51, 56+0
    sNoD = 26
    l = vLane
    t0, t1, t2, t3, t4 = vT

    def setup():
        A(f"s_and_b32 s{sTmp}, s2, 7")
        A(f"s_lshr_b32 s{sTmp2}, s2, 3")
        A(f"s_and_b32 s{sRB}, s{sTmp}, 1")
        A(f"s_lshl_b32 s{sRB}, s{sRB}, 3")
        A(f"s_and_b32 s{sTmp3}, s{sTmp2}, 7")
        A(f"s_add_u32 s{sRB}, s{sRB}, s{sTmp3}")
        A(f"s_lshr_b32 s{sG}, s{sTmp}, 1")
        A(f"s_lshl_b32 s{sG}, s{sG}, 2")
        A(f"s_lshr_b32 s{sTmp3}, s{sTmp2}, 3")
        A(f"s_add_u32 s{sG}, s{sG}, s{sTmp3}")
        A(f"v_lshrrev_b32 v{t0}, 2, v{l}")
        A(f"v_and_b32 v{t1}, 3, v{l}")
        A(f"v_bfe_u32 v{t2}, v{l}, 4, 2")
        A(f"v_xor_b32 v{t2}, v{t2}, v{t1}")
        A(f"s_lshl_b32 s{sTmp}, s{sRB}, 7")
        A(f"s_lshl_b32 s{sTmp2}, s{sWV}, 4")
        A(f"s_add_u32 s{sTmp}, s{sTmp}, s{sTmp2}")
        A(f"v_add_u32 v{t3}, s{sTmp}, v{t0}")
        A(f"v_mul_u32_u24 v{t3}, 896, v{t3}")
        A(f"v_lshl_add_u32 v{vD[0]}, v{t2}, 4, v{t3}")
        A(f"s_lshl_b32 s{sTmp3}, s{sWV}, 10")
        A("s_waitcnt lgkmcnt(0)")
        make_srd(A, sX, 56, SZ_X)
        A(f"v_mov_b32 v{vZ}, 0"); A(f"v_mov_b32 v{vZ+1}, 0")
        for i in range(14):
            A(f"s_add_u32 m0, s{sTmp3}, {i*8192}")
            A(f"s_movk_i32 s{sTmp}, {64*i}")
            A(f"buffer_load_dwordx4 v{vD[0]}, s[{sX}:{sX+3}], s{sTmp} offen lds")
        if not A.trace:
            Lt = name + "_notag"
            A(f"s_or_b32 s{sTmp}, s2, s{sWV}")
            A(f"s_cmp_lg_u32 s{sTmp}, 0")
            A(f"s_cbranch_scc1 {Lt}")
            A(f"s_memrealtime s[52:53]")
            A(f"s_mov_b32 s12, s{c.sDBG}"); A(f"s_and_b32 s13, s{c.sDBG+1}, 0xffff"); A("s_mov_b32 s14, 256"); A("s_mov_b32 s15, 0x20000")
            A("s_waitcnt lgkmcnt(0)")
            A(f"s_lshl_b32 s{sTmp}, s52, 2")
            A(f"s_or_b32 s{sTmp}, s{sTmp}, 0x80000000")
            A(f"v_mov_b32 v{t3}, s{sTmp}")
            A(f"v_mov_b32 v{t4}, 0")
            A("s_mov_b64 exec, 1")
            A(f"buffer_store_dword v{t3}, v{t4}, s[12:15], 0 offen sc0 sc1")
            A("s_mov_b64 exec, -1")
            A.label(Lt)
        A(f"v_mov_b32 v{t3}, {CNT}")
        A(f"ds_write_b64 v{t3}, v[{vZ}:{vZ+1}]")
        make_srd(A, sWS, c.sWSp, 0x2000000)
        make_srd(A, sQK, 58, SZ_WQKV)
        A(f"v_add_u32 v{vD[1]}, s{sTmp3}, v{vL16}")
        A(f"s_and_b32 s{sTH}, s{sWV}, 1")
        A(f"s_bfe_u32 s{sCH}, s{sWV}, 0x10001")
        A(f"s_lshr_b32 s{sRole}, s{sWV}, 2")
        A(f"s_lshr_b32 s{sAi}, s{sG}, 1")
        A(f"s_and_b32 s{sTyA}, s{sG}, 1")
        A(f"s_xor_b32 s{sTyA}, s{sTyA}, 1")
        A(f"s_cmp_eq_u32 s{sTH}, 0")
        A(f"s_cselect_b32 s{sA}, s60, s62"); A(f"s_cselect_b32 s{sA+1}, s61, s63")
        for r in (sA,):
            A(f"s_and_b32 s{r+1}, s{r+1}, 0xffff"); A(f"s_mov_b32 s{r+2}, {SZ_WG}"); A(f"s_mov_b32 s{r+3}, 0x20000")
        A(f"s_lshl_b32 s{sTmp}, s{sAi}, 1")
        A(f"s_add_u32 s{sTmp}, s{sTmp}, s{sCH}")
        A(f"s_mul_i32 s{sTmp2}, s{sTmp}, 56")
        A(f"s_cmp_eq_u32 s{sRole}, 0")
        A(f"s_cselect_b32 s{sTmp3}, 1792, 0")
        A(f"s_cselect_b32 s{sE}, 32, 0")
        A(f"s_cmp_eq_u32 s{sTyA}, 1")
        A(f"s_cselect_b32 s{sTmp3}, s{sTmp3}, 896")
        A(f"s_cselect_b32 s{sE}, s{sE}, 16")
        A(f"s_add_u32 s{sTmp2}, s{sTmp2}, s{sTmp3}")
        A(f"s_add_u32 s{sE}, s{sE}, s{sTmp}")
        A(f"v_mul_u32_u24 v{t2}, 2688, v{t0}")
        A(f"v_lshl_add_u32 v{t2}, v{t1}, 4, v{t2}")
        A(f"v_add_u32 v{vD1}, s{sTmp2}, v{t2}")
        A(f"s_lshl_b32 s{sTmp}, s{sRole}, 1")
        A(f"s_add_u32 s{sTmp}, s{sTmp}, s{sCH}")
        A(f"s_lshl_b32 s{sTmp2}, s{sTH}, 2")
        A(f"s_add_u32 s{sTmp2}, s{sTmp2}, s{sTmp}")
        A(f"s_lshl_b32 s{sTmp3}, s{sTH}, 1")
        A(f"s_add_u32 s{sTmp3}, s{sTmp3}, s{sRole}")
        A(f"s_lshl_b32 s{sM1}, s{sTmp3}, 1")
        A(f"s_add_u32 s{sM1}, s{sM1}, s{sCH}")
        A(f"s_cmp_eq_u32 s{sTyA}, 1")
        A(f"s_cselect_b32 s{sM1}, s{sTmp2}, s{sM1}")
        A(f"s_cselect_b32 s{sTmp3}, s{sTH}, s{sTmp3}")
        A(f"s_cselect_b32 s{sTmp}, s{sTmp}, s{sCH}")
        A(f"s_lshl_b32 s{sM1}, s{sM1}, 10")
        A(f"s_add_u32 s{sM1}, s{sM1}, {XB}")
        A(f"s_mul_i32 s{sK1}, s{sTmp3}, {16*2688}")
        A(f"v_lshrrev_b32 v{t2}, 5, v{l}")
        A(f"v_lshlrev_b32 v{t2}, 9, v{t2}")
        A(f"v_bfe_u32 v{t3}, v{l}, 2, 2")
        A(f"v_lshl_add_u32 v{t2}, v{t3}, 6, v{t2}")
        A(f"v_bfe_u32 v{t3}, v{l}, 4, 1")
        A(f"v_lshl_add_u32 v{t2}, v{t3}, 5, v{t2}")
        A(f"v_lshl_add_u32 v{t2}, v{t1}, 3, v{t2}")
        A(f"s_lshl_b32 s{sTmp}, s{sTmp}, 10")
        A(f"s_add_u32 s{sTmp}, s{sTmp}, {XB}")
        A(f"v_add_u32 v{vW1}, s{sTmp}, v{t2}")
        A(f"s_mul_i32 s{sTmp}, s{sAi}, 3")
        A(f"s_lshl_b32 s{sTmp2}, s{sCH}, 1")
        A(f"s_cmp_eq_u32 s{sRole}, 0")
        A(f"s_cselect_b32 s{sTmp3}, s{sTmp2}, 1")
        A(f"s_add_u32 s{sTmp}, s{sTmp}, s{sTmp3}")
        A(f"s_add_u32 s{sTmp2}, s{sTmp2}, s{sRole}")
        A(f"s_lshl_b32 s{sFB}, s{sAi}, 2")
        A(f"s_add_u32 s{sFB}, s{sFB}, 24")
        A(f"s_add_u32 s{sFB}, s{sFB}, s{sTmp2}")
        A(f"s_cmp_eq_u32 s{sTyA}, 1")
        A(f"s_cselect_b32 s{sFB}, s{sTmp}, s{sFB}")
        A(f"s_cselect_b32 s{sTmp3}, s{sTmp3}, s{sTmp2}")
        A(f"s_lshl_b32 s{sTmp}, s{sFB}, 6")
        A(f"v_mul_u32_u24 v{t3}, 3584, v{t0}")
        A(f"v_lshl_add_u32 v{t3}, v{t1}, 4, v{t3}")
        A(f"v_add_u32 v{vD2}, s{sTmp}, v{t3}")
        A(f"s_lshl_b32 s{sTmp3}, s{sTmp3}, 11")
        A(f"s_add_u32 s{sTmp3}, s{sTmp3}, {XB}")
        A(f"v_add_u32 v{vW}, s{sTmp3}, v{t2}")
        A(f"s_lshl_b32 s{sM2}, s{sTH}, 10")
        A(f"s_add_u32 s{sM2}, s{sM2}, s{sTmp3}")
        A(f"s_lshl_b32 s{sFB}, s{sFB}, 1")
        A(f"s_mov_b32 s{sK2}, 0")
        A(f"s_and_b32 s{sNoD}, s{sTyA}, s{sRole}")
        A(f"s_and_b32 s{sNoD}, s{sNoD}, s{sCH}")
        A(f"s_mov_b32 s{sHi}, 0"); A(f"s_mov_b32 s{sHi+1}, -1")
        A(f"v_and_b32 v{t2}, 31, v{l}")
        A(f"v_lshrrev_b32 v{t3}, 5, v{l}")
        A(f"v_bfe_u32 v{t4}, v{l}, 2, 2")
        A(f"v_xor_b32 v{t3}, v{t3}, v{t4}")
        A(f"v_lshlrev_b32 v{t3}, 4, v{t3}")
        A(f"v_lshl_add_u32 v{t2}, v{t2}, 6, v{t3}")
        A(f"s_lshl_b32 s{sTmp}, s{sTH}, 12")
        A(f"v_add_u32 v{vXe}, s{sTmp}, v{t2}")
        A(f"v_xor_b32 v{vXo}, 32, v{vXe}")
        A(f"s_lshl_b32 s{sTmp}, s{sRole}, 11")
        A(f"v_add_u32 v{vX1e}, s{sTmp}, v{vXe}")
        A(f"v_xor_b32 v{vX1o}, 32, v{vX1e}")
        A(f"v_lshrrev_b32 v{t2}, 4, v{l}")
        A(f"v_lshlrev_b32 v{t2}, 4, v{t2}")
        A(f"v_bfe_u32 v{t3}, v{l}, 3, 1")
        A(f"v_add_u32 v{t2}, v{t2}, v{t3}")
        A(f"v_and_b32 v{t3}, 7, v{l}")
        A(f"v_lshlrev_b32 v{t3}, 4, v{t3}")
        A(f"v_mul_u32_u24 v{vPA}, 3584, v{t2}")
        A(f"v_add_u32 v{vPA}, v{vPA}, v{t3}")
        A(f"v_mul_u32_u24 v{vPQ}, 2688, v{t2}")
        A(f"v_add_u32 v{vPQ}, v{vPQ}, v{t3}")
        A(f"s_lshl_b32 s{sTT0}, s{sRB}, 2")
        A(f"s_lshl_b32 s{sTmp}, s{sTH}, 1")
        A(f"s_add_u32 s{sTT0}, s{sTT0}, s{sTmp}")
        A(f"s_add_u32 s{sTT1}, s{sTT0}, 1")

    def prefetch():
        A(f"s_and_b32 s{sTmp}, s{sRB}, 7")
        A(f"s_lshl_b32 s{sTmp}, s{sTmp}, 1")
        A(f"s_mul_i32 s{sTmp2}, s{sAi}, 112")
        A(f"s_cmp_eq_u32 s{sTH}, 0")
        A(f"s_cselect_b32 s{sTmp3}, 1792, 0")
        A(f"s_cmp_eq_u32 s{sTyA}, 1")
        A(f"s_cselect_b32 s{sTmp3}, s{sTmp3}, 896")
        A(f"s_add_u32 s{sTmp2}, s{sTmp2}, s{sTmp3}")
        A(f"s_lshl_b32 s{sTmp3}, s{sCH}, 6")
        A(f"s_add_u32 s{sTmp3}, s{sTmp3}, s{sTmp}")
        A(f"s_mul_i32 s{sTmp3}, s{sTmp3}, 2688")
        A(f"s_add_u32 s{sScale}, s{sTmp3}, s{sTmp2}")
        A(f"s_mul_i32 s{sTmp2}, s{sAi}, 192")
        A(f"s_lshl_b32 s{sTmp3}, s{sAi}, 8")
        A(f"s_add_u32 s{sTmp3}, s{sTmp3}, {24*64}")
        A(f"s_cmp_eq_u32 s{sTyA}, 1")
        A(f"s_cselect_b32 s{sTmp2}, s{sTmp2}, s{sTmp3}")
        A(f"s_lshl_b32 s{sTmp3}, s{sCH}, 7")
        A(f"s_add_u32 s{sTmp2}, s{sTmp2}, s{sTmp3}")
        A(f"s_mul_i32 s{sTmp3}, s{sTmp}, 3584")
        A(f"s_add_u32 s{sPad2}, s{sTmp2}, s{sTmp3}")
        n = [0]
        def ld(vrow, srd, soff, off=0):
            t_ = f"buffer_load_dwordx4 {v(PF+4*n[0],4)}, v{vrow}, s[{srd}:{srd+3}], s{soff} offen" + (f" offset:{off}" if off else "")
            n[0] += 1
            return t_
        gq, ga, gb = [], [], []
        for m in range(4):
            gq += [ld(vPQ, sQK, sScale), f"s_add_u32 s{sScale}, s{sScale}, {128*2688}"]
        for m in range(7):
            (ga if m < 4 else gb).extend([ld(vPA, sA, sPad2), f"s_add_u32 s{sPad2}, s{sPad2}, {64*3584}"])
        gb += [f"s_lshl_b32 s{sTmp}, s2, 2", f"s_add_u32 s{sTmp}, s{sTmp}, s{sWV}", f"s_lshl_b32 s{sTmp}, s{sTmp}, 11",
               f"s_mov_b32 s{sWM}, s64", f"s_and_b32 s{sWM+1}, s65, 0xffff", f"s_mov_b32 s{sWM+2}, {SZ_WD}", f"s_mov_b32 s{sWM+3}, 0x20000",
               f"s_cmp_lt_u32 s{sTmp}, {SZ_WD}", f"s_cselect_b32 s{sWM}, s{sWM}, s66", f"s_cselect_b32 s{sWM+1}, s{sWM+1}, s67",
               f"s_cselect_b32 s{sWM+2}, s{sWM+2}, {SZ_WO}", f"s_cselect_b32 s{sTmp2}, 0, {SZ_WD}",
               f"s_and_b32 s{sWM+1}, s{sWM+1}, 0xffff", f"s_sub_u32 s{sPad3}, s{sTmp}, s{sTmp2}",
               ld(vL16, sWM, sPad3), ld(vL16, sWM, sPad3, 1024)]
        return gq, ga, gb

    def dma1(slot_imm=None):
        L = []
        if slot_imm is None: L.append(f"s_add_u32 m0, s{sM1}, s{sSlot}")
        else: L.append(f"s_add_u32 m0, s{sM1}, {slot_imm*WSLOT}")
        L += ["s_nop 0", f"buffer_load_dwordx4 v{vD1}, s[{sQK}:{sQK+3}], s{sK1} offen lds", f"s_add_u32 s{sK1}, s{sK1}, s{sDel}"]
        return L

    def ln():
        RB = [F, F+4]
        A(f"v_mov_b32 v{t4}, 0x3f803f80")
        for r in (t0, t1, t2, t3): A(f"v_mov_b32 v{r}, 0")
        A(f"v_add_u32 v{vD[0]}, 0x10000, v{vD[1]}")
        A(f"s_cmp_eq_u32 s{sTyA}, 1")
        A(f"s_mov_b32 s{sDel}, {64*2688}")
        A(f"s_cselect_b32 s{sDel}, {32*2688}, s{sDel}")
        def rd(i, dst):
            if i*8192 < 65536: A(f"ds_read_b128 {v(dst,4)}, v{vD[1]} offset:{i*8192}")
            else: A(f"ds_read_b128 {v(dst,4)}, v{vD[0]} offset:{i*8192-65536}")
        A(f"s_waitcnt vmcnt(13)")
        rd(0, RB[0])
        for i in range(14):
            if i+1 < 14:
                A(f"s_waitcnt vmcnt({12-i})")
                rd(i+1, RB[(i+1) & 1])
                A("s_waitcnt lgkmcnt(1)")
            else:
                A("s_waitcnt lgkmcnt(0)")
            for k in range(4):
                R = RB[i & 1]+k
                A(f"v_dot2c_f32_bf16 v{t0 if k%2==0 else t1}, v{R}, v{t4}")
                A(f"v_dot2c_f32_bf16 v{t2 if k%2==0 else t3}, v{R}, v{R}")
        if 'epst' not in exp: ST.stamp()
        RA = [F+8, F+12]; T = [F+16+k for k in range(8)]
        A(f"ds_read_b128 {v(RA[0],4)}, v{vD[1]}")
        A.nop(1)
        A(f"v_add_f32 v{t0}, v{t0}, v{t1}")
        A(f"v_add_f32 v{t2}, v{t2}, v{t3}")
        for qp in ("[1,0,3,2]", "[2,3,0,1]"):
            A("s_nop 1")
            A(f"v_add_f32_dpp v{t0}, v{t0}, v{t0} quad_perm:{qp} row_mask:0xf bank_mask:0xf")
            A(f"v_add_f32_dpp v{t2}, v{t2}, v{t2} quad_perm:{qp} row_mask:0xf bank_mask:0xf")
        A(f"v_mul_f32 v{t0}, {f2u(1.0/448):#x}, v{t0}")
        A(f"v_mul_f32 v{t2}, {f2u(1.0/448):#x}, v{t2}")
        A(f"v_fma_f32 v{t2}, -v{t0}, v{t0}, v{t2}")
        A(f"v_max_f32 v{t2}, 0, v{t2}")
        A(f"v_add_f32 v{t2}, {f2u(1e-5):#x}, v{t2}")
        A(f"v_rsq_f32 v{vR}, v{t2}")
        A("s_nop 0")
        A(f"v_mul_f32 v{t0}, v{t0}, v{vR}")
        A(f"v_sub_f32 v{vNMR}, 0, v{t0}")
        def norm(R0):
            R = [R0+k for k in range(4)]
            for k in range(4):
                A(f"v_lshlrev_b32 v{T[2*k]}, 16, v{R[k]}")
                A(f"v_and_b32 v{T[2*k+1]}, 0xffff0000, v{R[k]}")
            for k in range(8):
                A(f"v_fma_f32 v{T[k]}, v{T[k]}, v{vR}, v{vNMR}")
            for k in range(4):
                A(f"v_cvt_pk_bf16_f32 v{R[k]}, v{T[2*k]}, v{T[2*k+1]}")
        def nbody(last):
            A(f"ds_read_b128 {v(RA[1],4)}, v{vD[1]} offset:8192")
            A("s_waitcnt lgkmcnt(1)")
            norm(RA[0])
            A(f"ds_write_b128 v{vD[1]}, {v(RA[0],4)}")
            if not last:
                A(f"ds_read_b128 {v(RA[0],4)}, v{vD[1]} offset:16384")
            A(f"s_waitcnt lgkmcnt({2 if not last else 1})")
            norm(RA[1])
            A(f"ds_write_b128 v{vD[1]}, {v(RA[1],4)} offset:8192")
            if not last:
                A(f"v_add_u32 v{vD[1]}, 16384, v{vD[1]}")
        if A.trace:
            for it in range(6): nbody(False)
        else:
            Ln = A.newlabel(name + "_ln")
            A(f"s_mov_b32 s{sCnt}, 6")
            A.label(Ln)
            nbody(False)
            A(f"s_sub_u32 s{sCnt}, s{sCnt}, 1")
            A(f"s_cmp_lg_u32 s{sCnt}, 0")
            A(f"s_cbranch_scc1 {Ln}")
        nbody(True)
        def pblock():
            A(f"s_cmp_eq_u32 s{sTyA}, 1")
            A(f"s_mov_b32 s{sPad3}, {16*2688}")
            A(f"s_cselect_b32 s{sPad3}, {(-1792) & 0xffffffff}, s{sPad3}")
            A(f"v_add_u32 v{vPQ+1}, s{sPad3}, v{vD1}")
            for sl in range(4):
                A(f"s_add_u32 m0, s{sM1}, {sl*WSLOT}")
                A("s_nop 0")
                A(f"buffer_load_dwordx4 v{vD1}, s[{sQK}:{sQK+3}], s{sK1} offen lds")
                A(f"s_add_u32 m0, s{sM1}, {sl*WSLOT + 2048}")
                A("s_nop 0")
                A(f"buffer_load_dwordx4 v{vPQ+1}, s[{sQK}:{sQK+3}], s{sK1} offen lds")
                A(f"s_add_u32 s{sK1}, s{sK1}, s{sDel}")
            c.pf = prefetch()
            for x_ in c.pf[0] + c.pf[1] + c.pf[2]: A(x_)
            c.warm_groups = []
        if A.trace:
            if c.trace_role == 0: pblock()
        else:
            Lq = A.newlabel(name + "_qskip"); Lj = A.newlabel(name + "_qjoin")
            A(f"s_cmp_ge_u32 s{sWV}, 4")
            A(f"s_cbranch_scc1 {Lq}")
            pblock()
            A(f"s_branch {Lj}")
            A.label(Lq)
            A(f"s_lshl_b32 s{sTmp}, s{sDel}, 2")
            A(f"s_add_u32 s{sK1}, s{sK1}, s{sTmp}")
            A.label(Lj)
        return 4

    def arrive(off, total_s, flagbase):
        A(f"v_mov_b32 v{t0}, {CNT+off}")
        A(f"v_mov_b32 v{t1}, 1")
        A("s_mov_b64 exec, 1")
        A(f"ds_add_rtn_u32 v{t1}, v{t0}, v{t1}")
        A("s_waitcnt lgkmcnt(0)")
        A("s_mov_b64 exec, -1")
        A(f"v_readfirstlane_b32 s{sTmp}, v{t1}")
        A("s_nop 3")
        A(f"s_cmp_lg_u32 s{sTmp}, {total_s-1}")
        L = A.newlabel(name + "_arr")
        if not A.trace: A(f"s_cbranch_scc1 {L}")
        A(f"s_lshl_b32 s{sTmp}, s2, 6")
        A(f"s_add_u32 s{sTmp}, s{sTmp}, {flagbase}")
        A(f"v_mov_b32 v{t0}, s{c.sTAG}")
        A(f"v_mov_b32 v{t1}, 0")
        A("s_mov_b64 exec, 1")
        A(f"buffer_store_dword v{t0}, v{t1}, s[{sWS}:{sWS+3}], s{sTmp} offen sc0 sc1")
        A("s_mov_b64 exec, -1")
        A.label(L)

    c.arriveH = lambda: arrive(4, 8, FLAGA)

    def store_frags(src8, soff):
        A(f"buffer_store_dwordx4 {v(src8,4)}, v{vL16}, s[{sWS}:{sWS+3}], s{soff} offen{STF}")
        A(f"buffer_store_dwordx4 {v(src8+4,4)}, v{vL16}, s[{sWS}:{sWS+3}], s{soff} offen offset:1024{STF}")

    def pass1(kind, npf_P):
        nks = 2 if kind != 'K' else 4
        ntl = 2 if kind != 'K' else 1
        nst = 28//nks
        blkstride = 4096 if kind != 'K' else 2048
        xe, xo = (vXe, vXo) if kind != 'K' else (vX1e, vX1o)
        per = 4*ntl + 4
        F1 = 88
        assert F1 + 2*nks*per <= 152
        def FB(b, ks): return F1 + (b*nks + ks)*per
        XG = (nks//2)*8192
        def reads(b, slot, xi):
            L = []
            for ks in range(nks):
                for q in range(2):
                    L.append(f"ds_read_b64_tr_b16 {v(FB(b,ks)+4*ntl+2*q,2)}, v{vW1} offset:{slot*WSLOT + ks*blkstride + q*256}")
                ad = xe if ks % 2 == 0 else xo
                for tl in range(ntl):
                    L.append(f"ds_read_b128 {v(FB(b,ks)+4*tl,4)}, v{ad} offset:{xi*XG + (ks//2)*8192 + tl*2048}")
            return L
        def mfm(b, first):
            L = []
            for ks in range(nks):
                for tl in range(ntl):
                    acc = ACC + 16*tl
                    cc = "0" if (first and ks == 0) else v(acc,16)
                    W = v(FB(b,ks)+4*ntl,4); X = v(FB(b,ks)+4*tl,4)
                    if kind == 'V': L.append(f"v_mfma_f32_32x32x16_bf16 {v(acc,16)}, {X}, {W}, {cc}")
                    else: L.append(f"v_mfma_f32_32x32x16_bf16 {v(acc,16)}, {W}, {X}, {cc}")
            return L
        grp = 4 if XG*4 + 4096 < 65536 else 2
        def stage(s4, first, last, vm, do_dma, pre=()):
            b = s4 & 1
            M = mfm(b, first)
            A("s_waitcnt lgkmcnt(0)")
            A(M[0])
            if last:
                for m in M[1:]: A(m)
                return
            A(f"s_waitcnt vmcnt({vm})")
            A("s_barrier")
            nx = (s4+1) % 4
            xi = (s4+1) % grp
            if xi == 0:
                A(f"v_add_u32 v{xe}, {grp*XG}, v{xe}")
                A(f"v_add_u32 v{xo}, {grp*XG}, v{xo}")
            R_ = reads(b ^ 1, nx, xi)
            h = len(R_)//2
            for x_ in R_[:h]: A(x_)
            A(M[1])
            for x_ in R_[h:]: A(x_)
            A(M[2])
            if do_dma:
                A(f"s_add_u32 m0, s{sM1}, {s4*WSLOT}")
            A(M[3])
            if do_dma:
                A(f"buffer_load_dwordx4 v{vD1}, s[{sQK}:{sQK+3}], s{sK1} offen lds")
                A(f"s_add_u32 s{sK1}, s{sK1}, s{sDel}")
            for x_ in pre: A(x_)
        stage.grp = grp; stage.XG = XG
        return stage, reads, nst

    def run_pass1(kind, role):
        stage, reads, nst = pass1(kind, c.npf)
        isP = role == 0
        fifo = (["st0","st0","st1","st1","st2","st2","st3","st3"] + ["pf"]*13) if isP else []
        def need(tagname):
            if tagname not in fifo: return len(fifo)
            i = len(fifo) - 1 - fifo[::-1].index(tagname)
            return len(fifo) - 1 - i
        A(f"s_waitcnt vmcnt({need('st0')}) lgkmcnt(0)")
        A("s_barrier")
        if 'epst' not in exp: ST.stamp()
        for x_ in reads(0, 0, 0): A(x_)
        A(f"s_mov_b32 s52, s{c.sDBG}"); A(f"s_and_b32 s53, s{c.sDBG+1}, 0xffff"); A("s_mov_b32 s54, 256"); A("s_mov_b32 s55, 0x20000")
        A(f"buffer_load_dword v{vTAG}, v{vZ}, s[52:55], 0 offen sc0 sc1")
        fifo.append("tag")
        tag = f"{name}_p1{kind}{role}"
        def nloads(L): return sum(1 for x_ in L if x_.startswith("buffer_load"))
        def one(s_, pre=()):
            last = s_ == nst-1
            vm = None if last else need(f"st{s_+1}")
            dd = s_+4 <= nst-1
            stage(s_ % 4, s_ == 0, last, vm, dd, pre)
            if dd: fifo.append(f"st{s_+4}")
            fifo.extend(["pf"]*nloads(pre))
        pres = {}
        nexp = 8 if isP else 4
        s_ = 0
        while s_ < nst:
            cnt = (nst-5) - s_ + 1
            if False:
                pass
            else:
                one(s_, pres.get(s_, ()))
                s_ += 1
        A("s_barrier")
        if 'epst' not in exp: ST.stamp()
        A(f"v_readfirstlane_b32 s{c.sTAG}, v{vTAG}")
        if not A.trace:
            Lt = A.newlabel(name + "_havetag")
            A("s_nop 3")
            A(f"s_cmp_lg_u32 s{c.sTAG}, 0")
            A(f"s_cbranch_scc1 {Lt}")
            c.get_tag(t0, 52)
            A.label(Lt)

    def epilogue1(kind):
        ntl = 2 if kind != 'K' else 1
        if kind == 'V':
            A(f"v_cmp_eq_u32 vcc, 28, v{l}" )
            A(f"v_cmp_eq_u32 s[4:5], 60, v{l}")
            A("s_nop 3")
            A("s_or_b64 s[4:5], s[4:5], vcc")
        for tl in range(ntl):
            C = ACC + 16*tl
            if kind == 'Q':
                A(f"s_mov_b32 s{sScale}, {f2u(CSCALE):#x}")
                for i in range(16): A(f"v_mul_f32 v{C+i}, s{sScale}, v{C+i}")
            for r in range(8):
                A(f"v_cvt_pk_bf16_f32 v{C+r}, v{C+2*r}, v{C+2*r+1}")
            if kind == 'V':
                A(f"s_mov_b64 exec, s[4:5]")
                for r in range(8): A(f"v_mov_b32 v{C+r}, 0x3f803f80")
            else:
                A(f"s_mov_b64 exec, s[{sHi}:{sHi+1}]")
                A(f"v_mov_b32 v{C+6}, {0 if kind == 'Q' else 0x3f803f80:#x}")
                A(f"v_mov_b32 v{C+7}, {0 if kind == 'Q' else 0x00003f80:#x}")
            A(f"s_mov_b64 exec, -1")
            A(f"s_lshl_b32 s{sTmp}, s{sE}, 6")
            if kind == 'K':
                A(f"s_add_u32 s{sTmp}, s{sTmp}, s{sTT0}")
                A(f"s_add_u32 s{sTmp}, s{sTmp}, s{sRole}")
            else:
                A(f"s_add_u32 s{sTmp}, s{sTmp}, s{[sTT0, sTT1][tl]}")
            A(f"s_lshl_b32 s{sTmp}, s{sTmp}, 11")
            store_frags(C, sTmp)
        return 2*ntl

    def dma2(slot, cond):
        L = [f"s_add_u32 m0, s{sM2}, {slot*WSLOT}", "s_nop 0",
             f"buffer_load_dwordx4 v{vD2}, s[{sA}:{sA+3}], s{sK2} offen lds",
             f"s_add_u32 s{sK2}, s{sK2}, {16*3584}"]
        return L
    def emit_dma2(slot, cond):
        if cond and not A.trace:
            Ls = A.newlabel(name + "_nod")
            A(f"s_cmp_eq_u32 s{sNoD}, 1")
            A(f"s_cbranch_scc1 {Ls}")
            for x_ in dma2(slot, cond): A(x_)
            A.label(Ls)
        else:
            for x_ in dma2(slot, cond): A(x_)

    def pass2(ntl, nst1):
        cond = (ntl == 1)
        xe, xo = (vXe, vXo) if ntl == 2 else (vX1e, vX1o)
        def reads(b, k4, slot):
            L = []
            for t in range(2):
                for q in range(2):
                    L.append(f"ds_read_b64_tr_b16 {v(FW(b,t)+2*q,2)}, v{vW} offset:{slot*WSLOT + t*1024 + q*256}")
            ad = xe if k4 % 2 == 0 else xo
            for tl in range(ntl):
                L.append(f"ds_read_b128 {v(FX(b,tl),4)}, v{ad} offset:{(k4//2)*8192 + tl*2048}")
            return L
        def mfm(b, first):
            L = []
            for t in range(2):
                for tl in range(ntl):
                    acc = AC(t, tl)
                    cc = "0" if first else v(acc,16)
                    L.append(f"v_mfma_f32_32x32x16_bf16 {v(acc,16)}, {v(FW(b,t),4)}, {v(FX(b,tl),4)}, {cc}")
            return L
        def kstep(k4, first=False, last=False, do_dma=True, vm=None, after=None):
            b = k4 & 1
            M = mfm(b, first)
            npre = 1 if ntl == 1 else 2
            A("s_waitcnt lgkmcnt(0)")
            for m in M[:npre]: A(m)
            if last:
                for m in M[npre:]: A(m)
                return
            A(f"s_waitcnt vmcnt({vm})")
            A("s_barrier")
            nxt = (k4+1) % 4
            oth = []
            if k4 == 3:
                oth += [f"v_add_u32 v{xe}, 16384, v{xe}", f"v_add_u32 v{xo}, 16384, v{xo}"]
            oth += reads(b ^ 1, nxt, nxt)
            rest = M[npre:]
            k = len(oth); per = (k + len(rest) - 1)//len(rest); idx = 0
            for m in rest:
                A(m)
                for _ in range(per):
                    if idx < k: A(oth[idx]); idx += 1
            if do_dma: emit_dma2(k4, cond)
            if after: after()
        return reads, kstep

    def run_pass2(ntl, nst1, tag, warm=()):
        reads, kstep = pass2(ntl, nst1)
        A(f"s_waitcnt vmcnt({3+nst1}) lgkmcnt(0)")
        A("s_barrier")
        for x_ in reads(0, 0, 0): A(x_)
        def body(first, final):
            for k in range(4):
                if final:
                    nw = len(warm)
                    def wl():
                        for g_ in warm:
                            for x_ in g_: A(x_)
                    kstep(k, last=(k == 3), do_dma=False, vm=((2-k) + (nw if k > 0 else 0)) if k < 3 else None, after=(wl if k == 0 else None))
                elif first:
                    nw = len(warm)
                    vm = [2+nst1, 2+nst1, 2+nst1, 2][k]
                    def aft():
                        if ntl == 1 and not A.trace:
                            Ls = A.newlabel(name + "_ndw")
                            A(f"s_cmp_eq_u32 s{sNoD}, 0")
                            A(f"s_cbranch_scc1 {Ls}")
                            A("s_waitcnt vmcnt(0)")
                            A.label(Ls)
                        arrive(0, 8, FLAGQ)
                    kstep(k, first=(k == 0), vm=vm, after=(aft if k == 3 else None))
                else: kstep(k, vm=2)
        body(True, False)
        if A.trace:
            for it in range(5): body(False, False)
        else:
            A(f"s_mov_b32 s{sCnt}, 5")
            A.label(tag + "_loop")
            body(False, False)
            A(f"s_sub_u32 s{sCnt}, s{sCnt}, 1")
            A(f"s_cmp_lg_u32 s{sCnt}, 0")
            A(f"s_cbranch_scc1 {tag}_loop")
        body(False, True)
        A("s_barrier")
        ST.stamp()
        A.nop(11)


    SL2 = 12288
    def run_pass2A(ntl, nst1, tag):
        xe, xo = (vXe, vXo) if ntl == 2 else (vX1e, vX1o)
        nd = 2 if ntl == 2 else 1
        per = 4*ntl + 8
        F2 = 176
        def FB(b, ks): return F2 + (b*2 + ks)*per
        def reads(b, slot, xi):
            L = []
            for ks in range(2):
                for t in range(2):
                    for q in range(2):
                        L.append(f"ds_read_b64_tr_b16 {v(FB(b,ks)+4*ntl+4*t+2*q,2)}, v{vW} offset:{slot*SL2 + ks*6144 + t*1024 + q*256}")
                ad = xe if ks == 0 else xo
                for tl in range(ntl):
                    L.append(f"ds_read_b128 {v(FB(b,ks)+4*tl,4)}, v{ad} offset:{xi*8192 + tl*2048}")
            return L
        def mfm(b, first):
            L = []
            for ks in range(2):
                for t in range(2):
                    for tl in range(ntl):
                        acc = AC(t, tl)
                        cc = "0" if (first and ks == 0) else v(acc,16)
                        L.append(f"v_mfma_f32_32x32x16_bf16 {v(acc,16)}, {v(FB(b,ks)+4*ntl+4*t,4)}, {v(FB(b,ks)+4*tl,4)}, {cc}")
            return L
        def dma(slot):
            L = []
            if ntl == 2:
                for ks in range(2):
                    L += [f"s_add_u32 m0, s{sM2}, {slot*SL2 + ks*6144}", "s_nop 0",
                          f"buffer_load_dwordx4 v{vD2}, s[{sA}:{sA+3}], s{sK2} offen lds", f"s_add_u32 s{sK2}, s{sK2}, {16*3584}"]
            else:
                L += [f"s_add_u32 m0, s{sM2}, {slot*SL2}", "s_nop 0",
                      f"buffer_load_dwordx4 v{vD2}, s[{sA}:{sA+3}], s{sK2} offen lds", f"s_add_u32 s{sK2}, s{sK2}, {32*3584}"]
            return L
        return reads, mfm, dma, nd, xe, xo

    def pass2A_init(ntl):
        reads, mfm, dma, nd, xe, xo = run_pass2A(ntl, 0, "")
        if ntl == 1:
            A(f"s_mul_i32 s{sTmp}, s{sCH}, 6144")
            A(f"s_add_u32 s{sM2}, s{sM2}, s{sTmp}")
            A(f"s_mul_i32 s{sK2}, s{sCH}, {16*3584}")
        for sl in range(3):
            for x_ in dma(sl): A(x_)
        return 3*nd

    def pass2A_main(ntl, nst1, tag):
        reads, mfm, dma, nd, xe, xo = run_pass2A(ntl, nst1, tag)
        fifo = []
        for st_ in range(3): fifo += [f"st{st_}"]*nd
        fifo += ["sto"]*nst1
        def need(tg):
            i = len(fifo) - 1 - fifo[::-1].index(tg)
            return len(fifo) - 1 - i
        A(f"s_waitcnt vmcnt({need('st0')}) lgkmcnt(0)")
        A("s_barrier")
        for x_ in reads(0, 0, 0): A(x_)
        NST = 14
        for s_ in range(NST):
            b = s_ & 1
            M = mfm(b, s_ == 0)
            npre = 2 if ntl == 2 else 1
            A("s_waitcnt lgkmcnt(0)")
            for m in M[:npre]: A(m)
            if s_ == NST-1:
                for m in M[npre:]: A(m)
                break
            A(f"s_waitcnt vmcnt({need(f'st{s_+1}')})")
            A("s_barrier")
            xi = (s_+1) % 4
            oth = []
            if xi == 0:
                oth += [f"v_add_u32 v{xe}, 32768, v{xe}", f"v_add_u32 v{xo}, 32768, v{xo}"]
            oth += reads(b ^ 1, (s_+1) % 3, xi)
            rest = M[npre:]
            k = len(oth); perm = (k + len(rest) - 1)//len(rest); idx = 0
            for m in rest:
                A(m)
                for _ in range(perm):
                    if idx < k: A(oth[idx]); idx += 1
            if s_+3 <= NST-1:
                for x_ in dma(s_ % 3): A(x_)
                fifo += [f"st{s_+3}"]*nd
            if s_ == 3:
                arrive(0, 8, FLAGQ)
        A("s_barrier")
        ST.stamp()
        A.nop(11)

    def epilogue2(ntl, role):
        TM = [F, F+1, F+2, F+3]
        def compute(tl):
            G = AC(0, tl); U = AC(1, tl)
            A(f"s_mov_b32 s{sTmp2}, {f2u(-LOG2E):#x}")
            for i0 in range(0, 16, 4):
                for i in range(4): A(f"v_mul_f32 v{TM[i]}, s{sTmp2}, v{G+i0+i}")
                for i in range(4): A(f"v_exp_f32 v{TM[i]}, v{TM[i]}")
                for i in range(4): A(f"v_mul_f32 v{G+i0+i}, v{G+i0+i}, v{U+i0+i}")
                for i in range(4): A(f"v_add_f32 v{TM[i]}, 1.0, v{TM[i]}")
                for i in range(4): A(f"v_rcp_f32 v{TM[i]}, v{TM[i]}")
                A("s_nop 0")
                for i in range(4): A(f"v_mul_f32 v{G+i0+i}, v{G+i0+i}, v{TM[i]}")
            for r in range(8):
                A(f"v_cvt_pk_bf16_f32 v{U+r}, v{G+2*r}, v{G+2*r+1}")
        def store(tl):
            U = AC(1, tl)
            if ntl == 2:
                A(f"s_mul_i32 s{sTmp}, s{[sTT0, sTT1][tl]}, 144")
            else:
                A(f"s_add_u32 s{sTmp}, s{sTT0}, s{sCH}")
                A(f"s_mul_i32 s{sTmp}, s{sTmp}, 144")
            A(f"s_add_u32 s{sTmp}, s{sTmp}, s{sFB}")
            A(f"s_lshl_b32 s{sTmp}, s{sTmp}, 10")
            A(f"s_add_u32 s{sTmp}, s{sTmp}, {HF}")
            store_frags(U, sTmp)
        if role == 0:
            c.attn_pre()
            compute(0)
            if "epst" in exp: ST.stamp()
            c.attn_pre2()
            if "epst" in exp: ST.stamp()
            compute(1)
            store(0); store(1)
            if "epst" in exp: ST.stamp()
            c.attn_pre3()
        else:
            for tl in range(ntl):
                compute(tl); store(tl)
            A("s_waitcnt vmcnt(0)")
            arrive(4, 8, FLAGA)
            c.gemm_pre()

    def variant(kind, role):
        tag = f"{name}_{kind}{role}"
        run_pass1(kind, role)
        ntl2 = 1 if kind == 'Q' else 2
        if kind == 'K':
            pass
        elif kind == 'V':
            A(f"v_subrev_u32 v{vXe}, {3*4*8192}, v{vXe}"); A(f"v_subrev_u32 v{vXo}, {3*4*8192}, v{vXo}")
        else:
            A(f"v_subrev_u32 v{vXe}, {3*4*8192}, v{vXe}")
            A(f"s_lshl_b32 s{sTmp}, s{sCH}, 11")
            A(f"v_add_u32 v{vX1e}, s{sTmp}, v{vXe}")
            A(f"v_xor_b32 v{vX1o}, 32, v{vX1e}")
        if kind == 'K':
            for sl in range(4): emit_dma2(sl, False)
            A.nop(8)
            nst1 = epilogue1(kind)
            run_pass2(ntl2, nst1, tag + "_p2", warm=())
        else:
            pass2A_init(ntl2)
            A.nop(8)
            nst1 = epilogue1(kind)
            pass2A_main(ntl2, nst1, tag + "_p2")
        epilogue2(ntl2, role)
        c.nstamp_after_A = ST.n if not (role == 1 and 'epst' in exp) else ST.n + 3
        if not A.trace: A(f"s_branch {c.LB[role]}")

    setup()
    c.trace_role = only[1] if only is not None else None
    c.npf = ln()
    if only is not None:
        variant(*only)
        return
    nsave = ST.n
    keys = [('V',0), ('Q',1), ('K',0), ('K',1)]
    labs = {k: f"{name}_V{k[0]}{k[1]}" for k in keys}
    A(f"s_lshl_b32 s{sTmp}, s{sTyA}, 1")
    A(f"s_add_u32 s{sTmp}, s{sTmp}, s{sRole}")
    A(f"s_cmp_eq_u32 s{sTmp}, 3"); A(f"s_cbranch_scc1 {labs[('Q',1)]}")
    A(f"s_cmp_eq_u32 s{sTmp}, 0"); A(f"s_cbranch_scc1 {labs[('K',0)]}")
    A(f"s_cmp_eq_u32 s{sTmp}, 1"); A(f"s_cbranch_scc1 {labs[('K',1)]}")
    for k in keys:
        A.label(labs[k])
        ST.n = nsave
        variant(*k)
```

```python
from common import *
FLAGA = 24*1024*1024
FLAGO = FLAGA + 65536
FLAGQ = FLAGA + 2*65536
G_LDS = 66560

def wg_of(A, rb_expr_v, g_expr_v, dst, t):
    A(f"v_lshrrev_b32 v{dst}, 3, v{rb_expr_v}")
    A(f"v_lshrrev_b32 v{t}, 2, v{g_expr_v}")
    A(f"v_lshl_add_u32 v{dst}, v{t}, 1, v{dst}")
    A(f"v_and_b32 v{t}, 7, v{rb_expr_v}")
    A(f"v_lshl_add_u32 v{dst}, v{t}, 3, v{dst}")
    A(f"v_and_b32 v{t}, 3, v{g_expr_v}")
    A(f"v_lshl_add_u32 v{dst}, v{t}, 6, v{dst}")

def publish(c, vt, flagbase, add):
    A = c.A
    c.flag_srd(60)
    A(f"s_lshl_b32 s35, s2, 6")
    A(f"s_add_u32 s35, s35, {flagbase}")
    A(f"s_add_u32 s36, s{c.sTAG}, {add}")
    A(f"v_mov_b32 v{vt}, s36")
    A(f"v_mov_b32 v{vt+1}, 0")
    A("s_mov_b64 exec, 1")
    A(f"buffer_store_dword v{vt}, v{vt+1}, s[60:63], s35 offen sc0 sc1")
    A("s_mov_b64 exec, -1")

def attention(c, part="all"):
    A, ST, name, STF, LDF = c.A, c.ST, c.name, c.STF, c.LDF
    sWV = c.sWV
    vL16 = 2; vLane = 1
    vT = [3,4,5,6,7,9]
    Q = 120
    O = 44
    S = 12
    P = 108
    E = 116
    KV = 152
    vM = 216
    vFL, vFA = 220, 221
    def Qf(qt, s): return Q + 8*qt + 4*s
    def Of(qt): return O + 16*qt
    def Sf(b): return S + 16*b
    def Kf(b, s): return KV + 16*b + 4*s
    def Vf(b, s): return KV + 16*b + 8 + 4*s
    sK, sV, sW = 8, 12, 4
    sH, sQB = 16, 17
    sKoff, sVoff, sQoff = 48, 49, 50
    sCnt, sExact, sTmp, sTmp2 = 51, 29, 24, 25
    sK0, sKbeg, sVbeg = 26, 27, 18
    sHiMask, sSave = 30, 32
    t0, t1 = vT[0], vT[1]
    def load_tile(b):
        A(f"buffer_load_dwordx4 {v(Kf(b,0),4)}, v{vL16}, s[{sK}:{sK+3}], s{sKoff} offen{LDF}")
        A(f"buffer_load_dwordx4 {v(Kf(b,1),4)}, v{vL16}, s[{sK}:{sK+3}], s{sKoff} offen offset:1024{LDF}")
        A(f"buffer_load_dwordx4 {v(Vf(b,0),4)}, v{vL16}, s[{sV}:{sV+3}], s{sVoff} offen{LDF}")
        A(f"buffer_load_dwordx4 {v(Vf(b,1),4)}, v{vL16}, s[{sV}:{sV+3}], s{sVoff} offen offset:1024{LDF}")
        A(f"s_add_u32 s{sKoff}, s{sKoff}, 2048")
        A(f"s_add_u32 s{sVoff}, s{sVoff}, 2048")
    a0, a1, a2 = vT[2], vT[3], vT[4]
    if part in ("pre", "all"):
        if not A.trace:
            Lp = A.newlabel(name + "_nozero")
            A(f"s_cmp_lg_u32 s{sWV}, 0")
            A(f"s_cbranch_scc1 {Lp}")
        A(f"v_lshlrev_b32 v{t0}, 2, v{vLane}")
        A(f"v_add_u32 v{t0}, {65536+16}, v{t0}")
        A(f"v_mov_b32 v{t0+1}, 0")
        A(f"ds_write_b32 v{t0}, v{t0+1}")
        if not A.trace: A.label(Lp)
        A(f"s_and_b32 s{sTmp}, s2, 7")
        A(f"s_lshr_b32 s{sTmp2}, s2, 3")
        A(f"s_and_b32 s{sH}, s{sTmp2}, 1")
        A(f"s_lshl_b32 s{sTmp}, s{sTmp}, 1")
        A(f"s_add_u32 s{sH}, s{sH}, s{sTmp}")
        A(f"s_lshr_b32 s{sQB}, s{sTmp2}, 1")
        A(f"s_mov_b32 s{sHiMask}, 0")
        A(f"s_mov_b32 s{sHiMask+1}, -1")
        A(f"s_lshl_b32 s{sTmp}, s{sH}, 6")
        A(f"s_lshl_b32 s{sTmp2}, s{sQB}, 2")
        A(f"s_add_u32 s{sQoff}, s{sTmp}, s{sTmp2}")
        A(f"s_lshl_b32 s{sQoff}, s{sQoff}, 11")
        A(f"s_lshl_b32 s{sK0}, s{sTmp}, 11")
        A(f"s_add_u32 s{sK0}, s{sK0}, {KF}")
        A(f"s_lshl_b32 s{sTmp2}, s{sWV}, 15")
        A(f"s_add_u32 s{sKbeg}, s{sK0}, s{sTmp2}")
        A(f"s_add_u32 s{sVbeg}, s{sKbeg}, {VF-KF}")
        make_srd(A, sW, c.sWSp, 0x2000000)
        make_srd(A, sK, c.sWSp, 0)
        make_srd(A, sV, c.sWSp, 0)
        A(f"s_add_u32 s{sK+2}, s{sKbeg}, {16*2048}")
        A(f"s_add_u32 s{sV+2}, s{sVbeg}, {16*2048}")
        A(f"s_mov_b32 s{sExact}, 0")
        a0, a1, a2 = vT[2], vT[3], vT[4]
        A(f"v_and_b32 v{a0}, 15, v{vLane}")
        A(f"s_and_b32 s{sTmp}, s{sH}, 0xfffe")
        A(f"v_bfe_u32 v{a1}, v{vLane}, 4, 1")
        A(f"v_add_u32 v{a1}, s{sTmp}, v{a1}")
        wg_of(A, a0, a1, a2, vT[5])
        A(f"v_lshlrev_b32 v{a2}, 6, v{a2}")
        A(f"v_add_u32 v{a2}, {FLAGQ}, v{a2}")
        if part == "pre":
            A(f"buffer_load_dword v{vFL}, v{a2}, s[{sW}:{sW+3}], 0 offen sc0 sc1")
            A(f"v_mov_b32 v{vFA}, v{a2}")
            return
        c.poll(a2, a0, sW, 0, 0xffffffff, 0xffffffff)
    if part == "pre2":
        A("s_waitcnt vmcnt(0)")
        A(f"v_cmp_ne_u32 vcc, s{c.sTAG}, v{vFL}")
        if not A.trace:
            Lok = A.newlabel(name + "_qok")
            A("s_nop 3")
            A("s_cmp_eq_u64 vcc, 0")
            A(f"s_cbranch_scc1 {Lok}")
            c.poll(vFA, vFL, sW, 0, 0xffffffff, 0xffffffff)
            A.label(Lok)
    if part in ("pre2", "all"):
        for qt in range(4):
            for s_ in range(2):
                off = qt*2048 + s_*1024
                if off < 4096:
                    A(f"buffer_load_dwordx4 {v(Qf(qt,s_),4)}, v{vL16}, s[{sW}:{sW+3}], s{sQoff} offen offset:{off}{LDF}")
                else:
                    if off == 4096: A(f"s_add_u32 s{sTmp}, s{sQoff}, 4096")
                    A(f"buffer_load_dwordx4 {v(Qf(qt,s_),4)}, v{vL16}, s[{sW}:{sW+3}], s{sTmp} offen offset:{off-4096}{LDF}")
        A(f"buffer_load_dwordx4 {v(Kf(3,0),4)}, v{vL16}, s[{sW}:{sW+3}], s{sK0} offen{LDF}")
        A(f"buffer_load_dwordx4 {v(Kf(3,1),4)}, v{vL16}, s[{sW}:{sW+3}], s{sK0} offen offset:1024{LDF}")
    if part == "pre2": return
    if part in ("pre3", "all"):
        A(f"s_mov_b32 s{sKoff}, s{sKbeg}")
        A(f"s_mov_b32 s{sVoff}, s{sVbeg}")
        for b in range(3): load_tile(b)
    if part == "pre3": return

    def set_m(qt, vm):
        x0, x1, x2, x3 = vT[0], vT[1], vT[2], vT[3]
        A(f"v_sub_f32 v{x0}, 0, v{vm}")
        A(f"v_cvt_pk_bf16_f32 v{x1}, v{x0}, v{x0}")
        A(f"v_and_b32 v{x2}, 0xffff0000, v{x1}")
        A(f"v_sub_f32 v{x0}, v{x0}, v{x2}")
        A(f"v_cvt_pk_bf16_f32 v{x2}, v{x0}, v{x0}")
        A(f"v_and_b32 v{x3}, 0xffff0000, v{x2}")
        A(f"v_sub_f32 v{x0}, v{x0}, v{x3}")
        A(f"v_cvt_pk_bf16_f32 v{x0}, v{x0}, 0")
        A(f"v_and_b32 v{x1}, 0xffff, v{x1}")
        A(f"v_or_b32 v{x1}, v{x1}, v{x3}")
        A(f"s_mov_b64 exec, s[{sHiMask}:{sHiMask+1}]")
        A(f"v_mov_b32 v{Qf(qt,1)+2}, v{x1}")
        A(f"v_mov_b32 v{Qf(qt,1)+3}, v{x0}")
        A(f"s_mov_b64 exec, -1")
    def qk(dst, b, qt):
        return [f"v_mfma_f32_32x32x16_bf16 {v(dst,16)}, {v(Kf(b,0),4)}, {v(Qf(qt,0),4)}, 0",
                f"v_mfma_f32_32x32x16_bf16 {v(dst,16)}, {v(Kf(b,1),4)}, {v(Qf(qt,1),4)}, {v(dst,16)}"]
    def maxtree(src, dst):
        A(f"v_max3_f32 v{dst}, v{src}, v{src+1}, v{src+2}")
        for i in range(3, 15, 2):
            A(f"v_max3_f32 v{dst}, v{dst}, v{src+i}, v{src+i+1}")
        A(f"v_max_f32 v{dst}, v{dst}, v{src+15}")
    def crosshalf_max(r):
        t = vT[4]
        A(f"v_mov_b32 v{t}, v{r}")
        A("s_nop 1")
        A(f"v_permlane32_swap_b32 v{r}, v{t}")
        A("s_nop 1")
        A(f"v_max_f32 v{r}, v{r}, v{t}")
    def zero_state():
        for r in range(64): A(f"v_mov_b32 v{O+r}, 0")
        for r in range(4):
            A(f"v_mov_b32 v{P+4+r}, 0")
    zero_state()
    A(f"s_waitcnt vmcnt({12 + (4 if part == 'main' else 0)})")
    for qt in range(4):
        for m in qk(Sf(qt & 1), 3, qt): A(m)
        if qt >= 1:
            A.nop(10)
            maxtree(Sf((qt-1) & 1), vM+qt-1)
    A.nop(12)
    maxtree(Sf(1), vM+3)
    for qt in range(4):
        crosshalf_max(vM+qt)
        A(f"v_add_f32 v{vM+qt}, 0x42c00000, v{vM+qt}")
        set_m(qt, vM+qt)
    Lmain = name + "_amain"
    Lm2 = name + "_amain2"
    if not A.trace:
        A(f"s_branch {Lm2}")
        A.label(Lmain)
        A(f"s_mov_b32 s{sKoff}, s{sKbeg}")
        A(f"s_mov_b32 s{sVoff}, s{sVbeg}")
        for b in range(3): load_tile(b)
        zero_state()
        A.label(Lm2)
    for r in range(4): A(f"v_mov_b32 v{Vf(3,1)+r}, 0")
    A("s_waitcnt vmcnt(8)")
    for m in qk(Sf(0), 0, 0): A(m)
    if part == "main":
        if not A.trace:
            Lh = A.newlabel(name + "_noh")
            A(f"s_cmp_eq_u32 s{sExact}, 1")
            A(f"s_cbranch_scc1 {Lh}")
        c.arriveH()
        if not A.trace: A.label(Lh)
    A.nop(12)
    ST.stamp()

    def slot(j, qt):
        b = j & 3
        sb = qt & 1
        cur = Sf(sb); nxt = Sf(sb ^ 1)
        if qt < 3: nb, nq = b, qt+1
        else: nb, nq = (j+1) & 3, 0
        if qt > 0: pb, pq = b, qt-1
        else: pb, pq = (j-1) & 3, 3
        m = qk(nxt, nb, nq)
        def grp(g):
            for i in range(4): A(f"v_exp_f32 v{E+i}, v{cur+4*g+i}")
            A(f"v_cvt_pk_bf16_f32 v{P+2*g}, v{E}, v{E+1}")
            A(f"v_cvt_pk_bf16_f32 v{P+2*g+1}, v{E+2}, v{E+3}")
        if qt == 3: A("s_waitcnt vmcnt(8)")
        A(m[0])
        grp(0)
        A(f"v_mfma_f32_32x32x16_bf16 {v(Of(pq),16)}, {v(Vf(pb,1),4)}, {v(P+4,4)}, {v(Of(pq),16)}")
        if qt == 0: load_tile((j+3) & 3)
        grp(1)
        A(m[1])
        grp(2)
        A(f"v_mfma_f32_32x32x16_bf16 {v(Of(qt),16)}, {v(Vf(b,0),4)}, {v(P,4)}, {v(Of(qt),16)}")
        grp(3)
    def body():
        for j in range(4):
            for qt in range(4): slot(j, qt)
    if A.trace:
        for it in range(4): body()
    else:
        A(f"s_mov_b32 s{sCnt}, 4")
        Ll = name + "_aloop"
        A.label(Ll)
        body()
        A(f"s_sub_u32 s{sCnt}, s{sCnt}, 1")
        A(f"s_cmp_lg_u32 s{sCnt}, 0")
        A(f"s_cbranch_scc1 {Ll}")
    ST.stamp()
    A("s_nop 1")
    A(f"v_mfma_f32_32x32x16_bf16 {v(Of(3),16)}, {v(Vf(3,1),4)}, {v(P+4,4)}, {v(Of(3),16)}")
    A("s_waitcnt vmcnt(0)")
    A.nop(12)
    A(f"v_add_f32 v{t1}, v{Of(0)+12}, v{Of(1)+12}")
    A(f"v_add_f32 v{t1}, v{t1}, v{Of(2)+12}")
    A(f"v_add_f32 v{t1}, v{t1}, v{Of(3)+12}")
    A(f"s_mov_b32 s{sTmp}, {f2u(2.0**60):#x}")
    A(f"v_cmp_ngt_f32 vcc, s{sTmp}, v{t1}")
    A(f"s_nop 3")
    A(f"s_and_b64 s[{sSave}:{sSave+1}], vcc, s[{sHiMask}:{sHiMask+1}]")
    A(f"v_min3_f32 v{t0}, v{Of(0)+12}, v{Of(1)+12}, v{Of(2)+12}")
    A(f"v_min_f32 v{t0}, v{t0}, v{Of(3)+12}")
    A(f"s_mov_b32 s{sTmp}, {f2u(2.0**-110):#x}")
    A(f"v_cmp_gt_f32 vcc, s{sTmp}, v{t0}")
    A(f"s_nop 3")
    A(f"s_and_b64 vcc, vcc, s[{sHiMask}:{sHiMask+1}]")
    A(f"s_cmp_eq_u32 s{sWV}, 0")
    A(f"s_cselect_b64 vcc, vcc, 0")
    A(f"s_or_b64 s[{sSave}:{sSave+1}], s[{sSave}:{sSave+1}], vcc")
    A(f"s_cmp_lg_u64 s[{sSave}:{sSave+1}], 0")
    A(f"s_cselect_b32 s{sTmp}, 1, 0")
    if c.force_fallback: A(f"s_mov_b32 s{sTmp}, 1")
    A(f"s_cmp_eq_u32 s{sExact}, 1")
    A(f"s_cselect_b32 s{sTmp}, 0, s{sTmp}")
    A(f"s_lshl_b32 s{sTmp2}, s{sWV}, 14")
    A(f"v_add_u32 v{t0}, s{sTmp2}, v{vL16}")
    for qt in range(4):
        for a_ in range(4):
            A(f"ds_write_b128 v{t0}, {v(Of(qt)+4*a_,4)} offset:{(qt*4+a_)*1024}")
    A(f"s_lshl_b32 s{sTmp2}, s{sWV}, 2")
    A(f"s_add_u32 s{sTmp2}, s{sTmp2}, 65536")
    A(f"v_mov_b32 v{t0}, s{sTmp2}")
    A(f"v_mov_b32 v{t1}, s{sTmp}")
    A(f"ds_write_b32 v{t0}, v{t1}")
    A("s_waitcnt lgkmcnt(0)")
    if not A.trace:
        Lx = A.newlabel(name + "_r1x"); Ly = A.newlabel(name + "_r1y")
        A(f"s_cmp_eq_u32 s{sExact}, 1")
        A(f"s_cbranch_scc1 {Lx}")
        A("s_barrier")
        A(f"s_branch {Ly}")
        A.label(Lx)
        fb_sync(c, sTmp, sTmp2, vT[2], vT[3], 4)
        A.label(Ly)
    else:
        A("s_barrier")
    A(f"v_mov_b32 v{t0}, 0x10000")
    A(f"ds_read_b128 {v(E,4)}, v{t0}")
    A(f"s_lshl_b32 s{sTmp2}, s{sWV}, 12")
    A(f"v_add_u32 v{t1}, s{sTmp2}, v{vL16}")
    for ww in range(4):
        for a_ in range(4):
            A(f"ds_read_b128 {v(O+16*ww+4*a_,4)}, v{t1} offset:{ww*16384+a_*1024}")
    A("s_waitcnt lgkmcnt(0)")
    A(f"v_or_b32 v{E}, v{E}, v{E+1}")
    A(f"v_or_b32 v{E+2}, v{E+2}, v{E+3}")
    A(f"v_or_b32 v{E}, v{E}, v{E+2}")
    A("s_nop 1")
    A(f"v_readfirstlane_b32 s{sTmp}, v{E}")
    A("s_nop 3")
    A(f"s_cmp_lg_u32 s{sTmp}, 0")
    Lfb = name + "_fallback"
    if not A.trace: A(f"s_cbranch_scc1 {Lfb}")
    for r in range(16):
        A(f"v_add_f32 v{O+r}, v{O+r}, v{O+16+r}")
        A(f"v_add_f32 v{O+32+r}, v{O+32+r}, v{O+48+r}")
    for r in range(16):
        A(f"v_add_f32 v{O+r}, v{O+r}, v{O+32+r}")
    A(f"v_mov_b32 v{t0}, v{O+12}")
    A(f"v_mov_b32 v{t1}, v{O+12}")
    A("s_nop 1")
    A(f"v_permlane32_swap_b32 v{t0}, v{t1}")
    A("s_nop 1")
    A(f"v_rcp_f32 v{t1}, v{t1}")
    A("s_nop 0")
    for r in range(16): A(f"v_mul_f32 v{O+r}, v{O+r}, v{t1}")
    for r in range(8): A(f"v_cvt_pk_bf16_f32 v{P+r}, v{O+2*r}, v{O+2*r+1}")
    A(f"s_mov_b64 exec, s[{sHiMask}:{sHiMask+1}]")
    A(f"v_mov_b32 v{P+6}, 0")
    A(f"v_mov_b32 v{P+7}, 0")
    A(f"s_mov_b64 exec, -1")
    A(f"s_lshl_b32 s{sTmp}, s{sQB}, 2")
    A(f"s_add_u32 s{sTmp}, s{sTmp}, s{sWV}")
    A(f"s_mul_i32 s{sTmp}, s{sTmp}, 144")
    A(f"s_lshl_b32 s{sTmp2}, s{sH}, 1")
    A(f"s_add_u32 s{sTmp}, s{sTmp}, s{sTmp2}")
    A(f"s_add_u32 s{sTmp}, s{sTmp}, 112")
    A(f"s_lshl_b32 s{sTmp}, s{sTmp}, 10")
    A(f"s_add_u32 s{sTmp}, s{sTmp}, {HF}")
    A(f"buffer_store_dwordx4 {v(P,4)}, v{vL16}, s[{sW}:{sW+3}], s{sTmp} offen{STF}")
    A(f"buffer_store_dwordx4 {v(P+4,4)}, v{vL16}, s[{sW}:{sW+3}], s{sTmp} offen offset:1024{STF}")
    A("s_waitcnt vmcnt(0)")
    A(f"v_mov_b32 v{t0}, {65536+16}")
    A(f"v_mov_b32 v{t1}, 1")
    A("s_mov_b64 exec, 1")
    A(f"ds_add_rtn_u32 v{t1}, v{t0}, v{t1}")
    A("s_waitcnt lgkmcnt(0)")
    A("s_mov_b64 exec, -1")
    A(f"v_readfirstlane_b32 s{sTmp}, v{t1}")
    A("s_nop 3")
    A(f"s_cmp_lg_u32 s{sTmp}, 3")
    Lnp = A.newlabel(name + "_nopubO")
    if not A.trace: A(f"s_cbranch_scc1 {Lnp}")
    publish(c, t0, FLAGO, 1)
    A.label(Lnp)
    if c.stamps:
        A("s_waitcnt vmcnt(0)")
        ST.stamp(); ST.stamp(real=True)
        ST.flush(2, sWV, c.sWSp, t0, t1, sTmp, 60)
    A("s_endpgm")
    if A.trace: return
    A.label(Lfb)
    A(f"s_mov_b32 s{sExact}, 1")
    fb_sync(c, sTmp, sTmp2, t0, t1, 1)
    A(f"s_mov_b64 exec, s[{sHiMask}:{sHiMask+1}]")
    for qt in range(4):
        A(f"v_mov_b32 v{Qf(qt,1)+2}, 0")
        A(f"v_mov_b32 v{Qf(qt,1)+3}, 0")
    A(f"s_mov_b64 exec, -1")
    for qt in range(4): A(f"v_mov_b32 v{vM+qt}, 0xff800000")
    A(f"s_mov_b32 s{sKoff}, s{sKbeg}")
    A(f"s_mov_b32 s{sCnt}, 16")
    Lf = name + "_fbloop"
    A.label(Lf)
    A(f"buffer_load_dwordx4 {v(Kf(0,0),4)}, v{vL16}, s[{sK}:{sK+3}], s{sKoff} offen{LDF}")
    A(f"buffer_load_dwordx4 {v(Kf(0,1),4)}, v{vL16}, s[{sK}:{sK+3}], s{sKoff} offen offset:1024{LDF}")
    A(f"s_add_u32 s{sKoff}, s{sKoff}, 2048")
    A("s_waitcnt vmcnt(0)")
    for qt in range(4):
        for m in qk(Sf(0), 0, qt): A(m)
        A.nop(12)
        maxtree(Sf(0), vT[5])
        A(f"v_max_f32 v{vM+qt}, v{vM+qt}, v{vT[5]}")
        A.nop(8)
    A(f"s_sub_u32 s{sCnt}, s{sCnt}, 1")
    A(f"s_cmp_lg_u32 s{sCnt}, 0")
    A(f"s_cbranch_scc1 {Lf}")
    for qt in range(4): crosshalf_max(vM+qt)
    A(f"s_lshl_b32 s{sTmp2}, s{sWV}, 10")
    A(f"v_lshrrev_b32 v{t0}, 2, v{vL16}")
    A(f"v_add_u32 v{t1}, s{sTmp2}, v{t0}")
    for qt in range(4):
        A(f"ds_write_b32 v{t1}, v{vM+qt} offset:{qt*256}")
    A("s_waitcnt lgkmcnt(0)")
    fb_sync(c, sTmp, sTmp2, vT[2], vT[3], 2)
    A(f"v_lshrrev_b32 v{t0}, 2, v{vL16}")
    for qt in range(4):
        for ww in range(4):
            A(f"ds_read_b32 v{E+ww}, v{t0} offset:{ww*1024+qt*256}")
        A("s_waitcnt lgkmcnt(0)")
        A(f"v_max3_f32 v{vM+qt}, v{E}, v{E+1}, v{E+2}")
        A(f"v_max_f32 v{vM+qt}, v{vM+qt}, v{E+3}")
    fb_sync(c, sTmp, sTmp2, vT[2], vT[3], 3)
    for qt in range(4): set_m(qt, vM+qt)
    A(f"s_branch {Lmain}")

def fb_sync(c, sTmp, sTmp2, va, vb, k):
    A = c.A
    L = A.newlabel(c.name + "_fbs"); L2 = A.newlabel(c.name + "_fbsx")
    A("s_waitcnt lgkmcnt(0)")
    A(f"v_mov_b32 v{va}, {65536+16+4*k}")
    A(f"v_mov_b32 v{vb}, 1")
    A("s_mov_b64 exec, 1")
    A(f"ds_add_u32 v{va}, v{vb}")
    A("s_mov_b64 exec, -1")
    A(f"s_mov_b32 s{sTmp2}, {1<<20}")
    A.label(L)
    A(f"ds_read_b32 v{vb}, v{va}")
    A("s_waitcnt lgkmcnt(0)")
    A(f"v_readfirstlane_b32 s{sTmp}, v{vb}")
    A(f"s_sub_u32 s{sTmp2}, s{sTmp2}, 1")
    A(f"s_cmp_eq_u32 s{sTmp2}, 0")
    A(f"s_cbranch_scc1 {L2}")
    A(f"s_cmp_lt_u32 s{sTmp}, 4")
    A(f"s_cbranch_scc1 {L}")
    A.label(L2)

def gemm(c, part="all"):
    A, ST, name, STF, LDF = c.A, c.ST, c.name, c.STF, c.LDF
    NS = 4
    vLane, vL16 = 1, 2
    vWd, vA0, vA1, vX = 3, 4, 5, 6
    vT = [7, 8, 11, 12]
    XR = 188
    ACC = 20
    AF = 84
    BF = 116
    sWS, sWD, sWO, sX, sOUT = 4, 8, 12, 16, 60
    sTB, sCB, sB, sWoff, sTmp, sTmp2, sLds, sW4 = 24, 29, 31, 32, 33, 34, 38, 39
    l = vLane
    t0, t1, t2, t3 = vT
    class Mute:
        trace = A.trace
        def __call__(self, t): pass
        def label(self, t): pass
        def newlabel(self, b): return b
        def nop(self, n): pass
    realA = A
    if part == "main": A = Mute()
    Lskip = name + "_gskip"
    A(f"s_load_dwordx2 s[52:53], s[0:1], 56")
    A(f"s_sub_u32 s{sW4}, s{c.sWV}, 4")
    A(f"s_and_b32 s{sTmp}, s2, 7")
    A(f"s_lshr_b32 s{sTmp2}, s2, 3")
    A(f"s_and_b32 s{sTB}, s{sTmp2}, 3")
    A(f"s_lshl_b32 s{sTmp}, s{sTmp}, 2")
    A(f"s_add_u32 s{sTB}, s{sTB}, s{sTmp}")
    A(f"s_lshr_b32 s{sCB}, s{sTmp2}, 2")
    A(f"v_lshrrev_b32 v{t0}, 3, v{l}")
    A(f"v_and_b32 v{t1}, 7, v{l}")
    A(f"v_bfe_u32 v{t2}, v{l}, 4, 1")
    A(f"v_lshlrev_b32 v{t2}, 2, v{t2}")
    A(f"v_xor_b32 v{t1}, v{t1}, v{t2}")
    A(f"v_lshlrev_b32 v{t1}, 4, v{t1}")
    A(f"v_mul_u32_u24 v{t0}, 896, v{t0}")
    A(f"s_lshl_b32 s{sTmp}, s{sCB}, 7")
    A(f"v_add3_u32 v{vWd}, v{t0}, v{t1}, s{sTmp}")
    A(f"v_lshrrev_b32 v{t0}, 5, v{l}")
    A(f"v_bfe_u32 v{t1}, v{l}, 2, 2")
    A(f"v_lshl_add_u32 v{t0}, v{t0}, 2, v{t1}")
    A(f"v_lshlrev_b32 v{t0}, 7, v{t0}")
    A(f"v_bfe_u32 v{t2}, v{l}, 4, 1")
    A(f"v_bfe_u32 v{t3}, v{l}, 1, 1")
    A(f"v_lshl_add_u32 v{t2}, v{t2}, 1, v{t3}")
    A(f"v_bfe_u32 v{t3}, v{l}, 3, 1")
    A(f"v_lshlrev_b32 v{t3}, 2, v{t3}")
    A(f"v_xor_b32 v{t2}, v{t2}, v{t3}")
    A(f"v_lshl_add_u32 v{t0}, v{t2}, 4, v{t0}")
    A(f"v_and_b32 v{t3}, 1, v{l}")
    A(f"v_lshl_add_u32 v{t0}, v{t3}, 3, v{t0}")
    A(f"s_mul_i32 s{sLds}, s{sW4}, {NS*4096}")
    A(f"s_add_u32 s{sLds}, s{sLds}, {G_LDS}")
    A(f"v_add_u32 v{vA0}, s{sLds}, v{t0}")
    A(f"v_xor_b32 v{vA1}, 64, v{vA0}")
    A(f"s_and_b32 s{sTmp2}, s{sW4}, 1")
    A(f"s_lshl_b32 s{sTmp2}, s{sTmp2}, 5")
    A(f"s_lshl_b32 s{sTmp}, s{sTB}, 6")
    A(f"s_add_u32 s{sTmp2}, s{sTmp2}, s{sTmp}")
    A(f"v_and_b32 v{t0}, 31, v{l}")
    A(f"v_add_u32 v{t0}, s{sTmp2}, v{t0}")
    A(f"v_mul_u32_u24 v{t0}, 896, v{t0}")
    A(f"s_lshr_b32 s{sTmp}, s{sW4}, 1")
    A(f"s_lshl_b32 s{sTmp}, s{sTmp}, 6")
    A(f"s_lshl_b32 s{sTmp2}, s{sCB}, 7")
    A(f"s_add_u32 s{sTmp}, s{sTmp}, s{sTmp2}")
    A(f"v_lshrrev_b32 v{t1}, 5, v{l}")
    A(f"v_lshlrev_b32 v{t1}, 4, v{t1}")
    A(f"v_add3_u32 v{vX}, v{t0}, v{t1}, s{sTmp}")
    A("s_waitcnt lgkmcnt(0)")
    make_srd(A, sWS, c.sWSp, 0x2000000)
    make_srd(A, sWD, 64, SZ_WD)
    make_srd(A, sWO, 66, SZ_WO)
    make_srd(A, sX, 56, SZ_X)
    make_srd(A, sOUT, 52, SZ_OUT)
    NCH = 14
    def set_chunk(first_chunk_sgpr):
        A(f"s_mul_i32 s{sB}, s{sTB}, {2*144}")
        A(f"s_lshl_b32 s{sTmp}, s{first_chunk_sgpr}, 1")
        A(f"s_add_u32 s{sB}, s{sB}, s{sTmp}")
        A(f"s_lshl_b32 s{sB}, s{sB}, 10")
        A(f"s_add_u32 s{sB}, s{sB}, {HF}")
    sCB0, sCA0, sWoffA, sBA = 48, 49, 50, 51
    A(f"s_lshl_b32 s{sCB0}, s{sW4}, 3")
    A(f"s_add_u32 s{sCB0}, s{sCB0}, 24")
    A(f"s_mul_i32 s{sCA0}, s{sW4}, 6")
    set_chunk(sCA0); A(f"s_mov_b32 s{sBA}, s{sB}")
    A(f"s_mul_i32 s{sWoffA}, s{sCA0}, {32*896}")
    set_chunk(sCB0)
    A(f"s_mul_i32 s{sWoff}, s{sCB0}, {32*896}")

    def issue_w(sl, srd, rowstep_tail):
        for rg in range(4):
            A(f"s_add_u32 m0, s{sLds}, {sl*4096 + rg*1024}")
            if rg: A(f"s_add_u32 s{sWoff}, s{sWoff}, {8*896}")
            else: A("s_nop 0")
            A(f"buffer_load_dwordx4 v{vWd}, s[{srd}:{srd+3}], s{sWoff} offen lds")
        A(f"s_add_u32 s{sWoff}, s{sWoff}, {rowstep_tail}")
    def issue_b(sl):
        A(f"s_add_u32 s{sTmp}, s{sB}, {144*1024}")
        for kb in range(2):
            A(f"buffer_load_dwordx4 {v(BF+16*sl+4*kb,4)}, v{vL16}, s[{sWS}:{sWS+3}], s{sB} offen offset:{kb*1024}{LDF}")
        for kb in range(2):
            A(f"buffer_load_dwordx4 {v(BF+16*sl+8+4*kb,4)}, v{vL16}, s[{sWS}:{sWS+3}], s{sTmp} offen offset:{kb*1024}{LDF}")
        A(f"s_add_u32 s{sB}, s{sB}, 2048")
    def trreads(sl, bb):
        for ct in range(2):
            for kb in range(2):
                for q in range(2):
                    A(f"ds_read_b64_tr_b16 {v(AF+16*bb+8*ct+4*kb+2*q,2)}, v{vA0 if ct==0 else vA1} offset:{sl*4096+(2*kb+q)*1024}")
    def mfmas(sl, bb, first):
        for kb in range(2):
            for ct in range(2):
                for tl in range(2):
                    acc = ACC + 16*(ct*2+tl)
                    cc = "0" if (first and kb == 0) else v(acc,16)
                    A(f"v_mfma_f32_32x32x16_bf16 {v(acc,16)}, {v(AF+16*bb+8*ct+4*kb,4)}, {v(BF+16*sl+8*tl+4*kb,4)}, {cc}")
    for i in range(3): issue_w(i, sWD, 8*896)
    A(f"buffer_load_dwordx4 {v(XR,4)}, v{vX}, s[{sX}:{sX+3}], 0 offen")
    A(f"buffer_load_dwordx4 {v(XR+4,4)}, v{vX}, s[{sX}:{sX+3}], 0 offen offset:32")
    A = realA
    if part == "pre": return
    if not A.trace:
        A("s_cmp_ge_u32 s2, 224")
        A(f"s_cbranch_scc1 {Lskip}")
    vFB, vFA, vFV = 184, 185, 186
    A(f"s_lshr_b32 s{sTmp}, s{sTB}, 1")
    A(f"v_mov_b32 v{t0}, s{sTmp}")
    A(f"v_and_b32 v{t1}, 1, v{l}")
    A(f"v_lshlrev_b32 v{t1}, 1, v{t1}")
    A(f"s_lshl_b32 s{sTmp}, s{sW4}, 2")
    A(f"v_add_u32 v{t1}, s{sTmp}, v{t1}")
    wg_of(A, t0, t1, t2, t3)
    A(f"v_lshlrev_b32 v{t2}, 6, v{t2}")
    A(f"v_add_u32 v{vFA}, {FLAGA}, v{t2}")
    A(f"v_add_u32 v{t1}, 1, v{t1}")
    wg_of(A, t0, t1, t2, t3)
    A(f"v_lshlrev_b32 v{t2}, 6, v{t2}")
    A(f"v_add_u32 v{vFB}, {FLAGA}, v{t2}")
    c.poll(vFB, t0, sWS, 0, 0xffffffff, 0xffffffff)
    ST.stamp()
    fifo = []
    def need(tagname):
        i_ = len(fifo) - 1 - fifo[::-1].index(tagname)
        return len(fifo) - 1 - i_
    for i in range(3):
        issue_b(i); fifo.extend([f"c{i}"]*4)
    A(f"s_waitcnt vmcnt({need('c0')})")
    trreads(0, 0)
    for i in range(NCH):
        sl = i % NS; bb = i & 1
        last = i == NCH-1
        if not last:
            A(f"s_waitcnt vmcnt({need(f'c{i+1}')})")
            trreads((i+1) % NS, bb ^ 1)
            n_ = i+3
            if n_ < NCH:
                if n_ == 8:
                    A(f"s_waitcnt vmcnt({need('fl')})")
                    A(f"v_cmp_ne_u32 vcc, s{c.sTAG}, v{vFV}")
                    if not A.trace:
                        Lok = A.newlabel(name + "_hok")
                        A("s_nop 3")
                        A("s_cmp_eq_u64 vcc, 0")
                        A(f"s_cbranch_scc1 {Lok}")
                        c.poll(vFA, vFV, sWS, 0, 0xffffffff, 0xffffffff)
                        A.label(Lok)
                    A(f"s_mov_b32 s{sB}, s{sBA}")
                    A(f"s_mov_b32 s{sWoff}, s{sWoffA}")
                issue_w(n_ % NS, sWD, 8*896); issue_b(n_ % NS); fifo.extend([f"c{n_}"]*8)
                if n_ == 5:
                    A(f"buffer_load_dword v{vFV}, v{vFA}, s[{sWS}:{sWS+3}], 0 offen sc0 sc1"); fifo.append("fl")
            A("s_waitcnt lgkmcnt(8)")
        else:
            A("s_waitcnt lgkmcnt(0)")
        mfmas(sl, bb, i == 0)
    ST.stamp()
    A(f"s_mul_i32 s{sWoff}, s{sW4}, {4*28*896}")
    for k in range(4): issue_w(k, sWO, (28-24)*896)
    A(f"s_mul_i32 s{sB}, s{sTB}, {2*144}")
    A(f"s_lshl_b32 s{sTmp}, s{sW4}, 3")
    A(f"s_add_u32 s{sB}, s{sB}, s{sTmp}")
    A(f"s_add_u32 s{sB}, s{sB}, 112")
    A(f"s_lshl_b32 s{sB}, s{sB}, 10")
    A(f"s_add_u32 s{sB}, s{sB}, {HF}")
    A("s_barrier")
    A(f"v_and_b32 v{t0}, 15, v{l}")
    A(f"v_lshrrev_b32 v{t1}, 1, v{t0}")
    A(f"v_and_b32 v{t0}, 1, v{t0}")
    A(f"s_lshr_b32 s{sTmp}, s{sTB}, 1")
    A(f"s_lshl_b32 s{sTmp}, s{sTmp}, 1")
    A(f"v_add_u32 v{t0}, s{sTmp}, v{t0}")
    A(f"v_lshl_add_u32 v{t2}, v{t0}, 3, v{t1}")
    A(f"v_lshlrev_b32 v{t2}, 6, v{t2}")
    A(f"v_add_u32 v{t2}, {FLAGO}, v{t2}")
    c.poll(t2, t0, sWS, 1, 0xffffffff, 0xffffffff)
    ST.stamp()
    for k in range(4): issue_b(k)
    for k in range(4):
        A(f"s_waitcnt vmcnt({12-4*k})")
        trreads(k, k & 1)
        A("s_waitcnt lgkmcnt(0)")
        mfmas(k, k & 1, False)
    A.nop(12)
    A(f"v_add_u32 v{t0}, s{sLds}, v{vL16}")
    for tile in range(4):
        for a_ in range(4):
            A(f"ds_write_b128 v{t0}, {v(ACC+16*tile+4*a_,4)} offset:{(tile*4+a_)*1024}")
    A("s_waitcnt lgkmcnt(0)")
    A("s_barrier")
    R = AF
    A(f"s_lshl_b32 s{sTmp}, s{sW4}, 12")
    A(f"s_add_u32 s{sTmp}, s{sTmp}, {G_LDS}")
    A(f"v_add_u32 v{t0}, s{sTmp}, v{vL16}")
    for ww in range(4):
        for a_ in range(4):
            A(f"ds_read_b128 {v(R+16*ww+4*a_,4)}, v{t0} offset:{ww*16384+a_*1024}")
    A("s_waitcnt lgkmcnt(0)")
    for r in range(16):
        A(f"v_add_f32 v{R+r}, v{R+r}, v{R+16+r}")
        A(f"v_add_f32 v{R+32+r}, v{R+32+r}, v{R+48+r}")
    for r in range(16):
        A(f"v_add_f32 v{R+r}, v{R+r}, v{R+32+r}")
    A("s_nop 1")
    for x in range(2):
        for r in range(4):
            A(f"v_permlane32_swap_b32 v{R+8*x+r}, v{R+8*x+4+r}")
    for x in range(2):
        for r in range(4):
            A(f"v_lshlrev_b32 v{t0}, 16, v{XR+4*x+r}")
            A(f"v_and_b32 v{t1}, 0xffff0000, v{XR+4*x+r}")
            A(f"v_add_f32 v{R+8*x+2*r}, v{R+8*x+2*r}, v{t0}")
            A(f"v_add_f32 v{R+8*x+2*r+1}, v{R+8*x+2*r+1}, v{t1}")
        for r in range(4):
            A(f"v_cvt_pk_bf16_f32 v{XR+4*x+r}, v{R+8*x+2*r}, v{R+8*x+2*r+1}")
    A(f"buffer_store_dwordx4 {v(XR,4)}, v{vX}, s[{sOUT}:{sOUT+3}], 0 offen")
    A(f"buffer_store_dwordx4 {v(XR+4,4)}, v{vX}, s[{sOUT}:{sOUT+3}], 0 offen offset:32")
    if c.stamps:
        A("s_waitcnt vmcnt(0)")
        ST.stamp(real=True)
        ST.flush(2, c.sWV, c.sWSp, t0, t1, sTmp, 40)
    A("s_endpgm")
    if not A.trace:
        A.label(Lskip)
        A("s_barrier")
        A("s_endpgm")
```

```python
from common import *

NAME = "parallel_sum__softmax_full_mha__swiglu_ffn__prompt_kernel"
XB = 14*8192
WSLOT = 10*1024
STATS = XB + 4*WSLOT
LDS_BYTES = STATS + 1024
FLAGA = 24*1024*1024
FLAGO = FLAGA + 65536
FLAGQ = FLAGA + 2*65536
G_LDS = 66560
SPIN_MAX = 1 << 17

class Ctx: pass

def gen(A, stamps=False, exp=(), force_fallback=False, trace=None, stflag="sc0 sc1", gemm_go=0):
    name = NAME
    if trace is None: kernel_header(A, name)
    ST = Stamps(A, 76, stamps, 0)
    STF = (" " + stflag) if stflag else ""
    LDF = " sc1"
    sWV = 3
    sWSp = 70
    sDBG = 72
    sTAG = 74
    sTmp, sTmp2, sTmp3 = 35, 36, 37
    Ldone = name + "_done"
    vLane, vL16 = 1, 2

    def flag_srd(d):
        make_srd(A, d, sWSp, 0x2000000)
    def get_tag(vt, srd):
        A(f"s_mov_b32 s{srd}, s{sDBG}"); A(f"s_and_b32 s{srd+1}, s{sDBG+1}, 0xffff"); A(f"s_mov_b32 s{srd+2}, 256"); A(f"s_mov_b32 s{srd+3}, 0x20000")
        L = A.newlabel(name + "_tag")
        A(f"s_mov_b32 s{sTmp2}, {SPIN_MAX}")
        A(f"v_mov_b32 v{vt+1}, 0")
        A.label(L)
        A(f"buffer_load_dword v{vt}, v{vt+1}, s[{srd}:{srd+3}], 0 offen sc0 sc1")
        A("s_waitcnt vmcnt(0)")
        A(f"v_readfirstlane_b32 s{sTAG}, v{vt}")
        A("s_nop 1")
        A(f"s_sub_u32 s{sTmp2}, s{sTmp2}, 1")
        A(f"s_cmp_eq_u32 s{sTmp2}, 0")
        L2 = A.newlabel(name + "_tagx")
        if not A.trace: A(f"s_cbranch_scc1 {L2}")
        A(f"s_cmp_eq_u32 s{sTAG}, 0")
        if not A.trace: A(f"s_cbranch_scc1 {L}")
        A.label(L2)
    def poll(vaddr, vt, srd, add, nlanes_mask_lo, nlanes_mask_hi):
        L = A.newlabel(name + "_poll"); L2 = A.newlabel(name + "_pollx")
        A(f"s_add_u32 s{sTmp3}, s{sTAG}, {add}")
        A(f"s_mov_b32 s{sTmp2}, {SPIN_MAX}")
        A(f"s_mov_b32 s68, {nlanes_mask_lo:#x}"); A(f"s_mov_b32 s69, {nlanes_mask_hi:#x}")
        A.label(L)
        A(f"buffer_load_dword v{vt}, v{vaddr}, s[{srd}:{srd+3}], 0 offen sc0 sc1")
        A("s_waitcnt vmcnt(0)")
        A(f"v_cmp_ne_u32 vcc, s{sTmp3}, v{vt}")
        A("s_nop 3")
        A(f"s_and_b64 vcc, vcc, s[68:69]")
        A(f"s_sub_u32 s{sTmp2}, s{sTmp2}, 1")
        A(f"s_cmp_eq_u32 s{sTmp2}, 0")
        if not A.trace: A(f"s_cbranch_scc1 {L2}")
        A(f"s_cmp_lg_u64 vcc, 0")
        if not A.trace:
            A(f"s_cbranch_scc0 {L2}")
            A("s_sleep 1")
            A(f"s_branch {L}")
        A.label(L2)

    A("s_cmp_ge_u32 s2, 256")
    if not A.trace: A(f"s_cbranch_scc1 {Ldone}")
    ST.stamp(real=True); ST.stamp()
    A("s_load_dwordx2 s[56:57], s[0:1], 0")
    A("s_load_dwordx2 s[58:59], s[0:1], 8")
    A("s_load_dwordx4 s[60:63], s[0:1], 32")
    A(f"s_load_dwordx2 s[{sWSp}:{sWSp+1}], s[0:1], 72")
    A(f"s_load_dwordx2 s[{sDBG}:{sDBG+1}], s[0:1], 64")
    A("s_load_dwordx2 s[66:67], s[0:1], 16")
    A("s_load_dwordx2 s[64:65], s[0:1], 48")
    l = vLane
    A(f"v_and_b32 v{l}, 63, v0")
    A(f"v_lshrrev_b32 v9, 6, v0")
    A(f"v_lshlrev_b32 v{vL16}, 4, v{l}")
    A(f"v_readfirstlane_b32 s{sWV}, v9")

    c = Ctx()
    c.A, c.ST, c.name, c.exp, c.STF, c.LDF = A, ST, name, exp, STF, LDF
    c.sWV, c.sWSp, c.sDBG, c.sTAG = sWV, sWSp, sDBG, sTAG
    c.get_tag, c.poll, c.flag_srd = get_tag, poll, flag_srd
    c.force_fallback = force_fallback
    c.stamps = stamps
    c.gemm_go = gemm_go
    import fa, fb
    c.gemm_pre = lambda: fb.gemm(c, "pre")
    c.attn_pre = lambda: fb.attention(c, "pre")
    c.attn_pre2 = lambda: fb.attention(c, "pre2")
    c.attn_pre3 = lambda: fb.attention(c, "pre3")
    if trace is not None:
        kind = trace[0]
        if kind == "A":
            fa.phaseA(c, only=trace[1:])
        elif kind == "attn":
            A("s_waitcnt lgkmcnt(0)")
            c.arriveH = lambda: None
            fb.attention(c)
        elif kind == "gemm":
            A("s_waitcnt lgkmcnt(0)"); A.nop(4)
            fb.gemm(c)
        return 256
    c.LB = {0: name + "_phaseB_attn", 1: name + "_phaseB_gemm"}
    fa.phaseA(c)
    A.label(c.LB[0])
    ST.n = c.nstamp_after_A
    ST.stamp()
    n0 = ST.n
    fb.attention(c, "main")
    A.label(c.LB[1])
    ST.n = c.nstamp_after_A
    ST.stamp()
    fb.gemm(c, "main")
    A.label(Ldone)
    A("s_endpgm")
    return 256
```

```python
from common import *
XB = 14*8192
WSLOT = 8192
NSL = 4
CNT = XB + 5*WSLOT
FLAGA = 24*1024*1024
FLAGQ = FLAGA + 2*65536

PFSTART = {'V': 6, 'K': 1, 'Q': 0}

def phaseA(c, only=None):
    A, ST, name, exp, STF = c.A, c.ST, c.name, c.exp, c.STF
    sWV = c.sWV
    vLane, vL16 = 1, 2
    vXe, vXo, vW = 3, 4, 5
    vD = [6, 7, 8]
    vT = [9, 10, 11, 12, 13]
    vR, vNMR = 14, 15
    F = 16
    ACC = 56
    vD1, vD2, vW1, vX1e, vX1o = 152, 153, 154, 155, 157
    vTAG, vZ = 156, 158
    vPA, vPQ = 160, 161
    PF = 164
    def FX(b, tl): return F + 16*b + 4*tl
    def FW(b, t): return F + 16*b + 8 + 4*t
    def AC(t, tl): return ACC + 32*t + 16*tl
    sX, sA, sQK, sWS, sWM, sU = 4, 8, 16, 20, 12, 52
    sRB, sG, sTH, sCH = 24, 25, 27, 28
    sStep2, sK1, sK2, sM1, sM2 = 29, 30, 31, 32, 33
    sCnt, sTmp, sTmp2, sTmp3 = 34, 35, 36, 37
    sTyA, sE, sScale, sPad2, sPad3 = 38, 39, 40, 41, 42
    sTT0, sTT1, sFB = 43, 44, 45
    sHi = 46
    sRole, sAi, sSlot, sDel, sNoD = 48, 49, 50, 51, 56+0
    sNoD = 26
    l = vLane
    t0, t1, t2, t3, t4 = vT

    def setup():
        A(f"s_and_b32 s{sTmp}, s2, 7")
        A(f"s_lshr_b32 s{sTmp2}, s2, 3")
        A(f"s_and_b32 s{sRB}, s{sTmp}, 1")
        A(f"s_lshl_b32 s{sRB}, s{sRB}, 3")
        A(f"s_and_b32 s{sTmp3}, s{sTmp2}, 7")
        A(f"s_add_u32 s{sRB}, s{sRB}, s{sTmp3}")
        A(f"s_lshr_b32 s{sG}, s{sTmp}, 1")
        A(f"s_lshl_b32 s{sG}, s{sG}, 2")
        A(f"s_lshr_b32 s{sTmp3}, s{sTmp2}, 4")
        A(f"s_add_u32 s{sG}, s{sG}, s{sTmp3}")
        A(f"s_bfe_u32 s{sTmp3}, s{sTmp2}, 0x10003")
        A(f"s_lshl_b32 s{sTmp3}, s{sTmp3}, 1")
        A(f"s_add_u32 s{sG}, s{sG}, s{sTmp3}")
        A(f"v_lshrrev_b32 v{t0}, 2, v{l}")
        A(f"v_and_b32 v{t1}, 3, v{l}")
        A(f"v_bfe_u32 v{t2}, v{l}, 4, 2")
        A(f"v_xor_b32 v{t2}, v{t2}, v{t1}")
        A(f"s_lshl_b32 s{sTmp}, s{sRB}, 7")
        A(f"s_lshl_b32 s{sTmp2}, s{sWV}, 4")
        A(f"s_add_u32 s{sTmp}, s{sTmp}, s{sTmp2}")
        A(f"v_add_u32 v{t3}, s{sTmp}, v{t0}")
        A(f"v_mul_u32_u24 v{t3}, 896, v{t3}")
        A(f"v_lshl_add_u32 v{vD[0]}, v{t2}, 4, v{t3}")
        A(f"s_lshl_b32 s{sTmp3}, s{sWV}, 10")
        A("s_waitcnt lgkmcnt(0)")
        make_srd(A, sX, 56, SZ_X)
        A(f"v_mov_b32 v{vZ}, 0"); A(f"v_mov_b32 v{vZ+1}, 0")
        def xissue():
            for i in range(14):
                A(f"s_add_u32 m0, s{sTmp3}, {i*8192}")
                A(f"s_movk_i32 s{sTmp}, {64*i}")
                A(f"buffer_load_dwordx4 v{vD[0]}, s[{sX}:{sX+3}], s{sTmp} offen lds")
        if A.trace or "xq" not in exp:
            xissue()
        else:
            Lo = A.newlabel(name + "_xown"); Lj = A.newlabel(name + "_xjoin")
            A(f"s_lshr_b32 s{sTmp}, s2, 6")
            A(f"s_lshr_b32 s{sTmp2}, s{sWV}, 1")
            A(f"s_cmp_eq_u32 s{sTmp}, s{sTmp2}")
            A(f"s_cbranch_scc1 {Lo}")
            A("s_barrier")
            xissue()
            A(f"s_branch {Lj}")
            A.label(Lo)
            xissue()
            A("s_waitcnt vmcnt(0)")
            A("s_barrier")
            A.label(Lj)
        if not A.trace:
            Lt = name + "_notag"
            A(f"s_or_b32 s{sTmp}, s2, s{sWV}")
            A(f"s_cmp_lg_u32 s{sTmp}, 0")
            A(f"s_cbranch_scc1 {Lt}")
            A(f"s_memrealtime s[52:53]")
            A(f"s_mov_b32 s12, s{c.sDBG}"); A(f"s_and_b32 s13, s{c.sDBG+1}, 0xffff"); A("s_mov_b32 s14, 256"); A("s_mov_b32 s15, 0x20000")
            A("s_waitcnt lgkmcnt(0)")
            A(f"s_lshl_b32 s{sTmp}, s52, 2")
            A(f"s_or_b32 s{sTmp}, s{sTmp}, 0x80000000")
            A(f"v_mov_b32 v{t3}, s{sTmp}")
            A(f"v_mov_b32 v{t4}, 0")
            A("s_mov_b64 exec, 1")
            A(f"buffer_store_dword v{t3}, v{t4}, s[12:15], 0 offen sc0 sc1")
            A("s_mov_b64 exec, -1")
            A.label(Lt)
        A(f"v_and_b32 v{t3}, 15, v{l}")
        A(f"v_lshlrev_b32 v{t3}, 2, v{t3}")
        A(f"v_add_u32 v{t3}, {CNT}, v{t3}")
        A(f"ds_write_b32 v{t3}, v{vZ}")
        make_srd(A, sWS, c.sWSp, 0x2000000)
        make_srd(A, sQK, 58, SZ_WQKV)
        A(f"v_add_u32 v{vD[1]}, s{sTmp3}, v{vL16}")
        A(f"s_and_b32 s{sTH}, s{sWV}, 1")
        A(f"s_bfe_u32 s{sCH}, s{sWV}, 0x10001")
        A(f"s_lshr_b32 s{sRole}, s{sWV}, 2")
        A(f"s_lshr_b32 s{sAi}, s{sG}, 1")
        A(f"s_and_b32 s{sTyA}, s{sG}, 1")
        A(f"s_xor_b32 s{sTyA}, s{sTyA}, 1")
        A(f"s_cmp_eq_u32 s{sTH}, 0")
        A(f"s_cselect_b32 s{sA}, s60, s62"); A(f"s_cselect_b32 s{sA+1}, s61, s63")
        for r in (sA,):
            A(f"s_and_b32 s{r+1}, s{r+1}, 0xffff"); A(f"s_mov_b32 s{r+2}, {SZ_WG}"); A(f"s_mov_b32 s{r+3}, 0x20000")
        A(f"s_lshl_b32 s{sTmp}, s{sAi}, 1")
        A(f"s_add_u32 s{sTmp}, s{sTmp}, s{sCH}")
        A(f"s_mul_i32 s{sTmp2}, s{sTmp}, 56")
        A(f"s_cmp_eq_u32 s{sRole}, 0")
        A(f"s_cselect_b32 s{sTmp3}, 1792, 0")
        A(f"s_cselect_b32 s{sE}, 32, 0")
        A(f"s_cmp_eq_u32 s{sTyA}, 1")
        A(f"s_cselect_b32 s{sTmp3}, s{sTmp3}, 896")
        A(f"s_cselect_b32 s{sE}, s{sE}, 16")
        A(f"s_add_u32 s{sTmp2}, s{sTmp2}, s{sTmp3}")
        A(f"s_add_u32 s{sE}, s{sE}, s{sTmp}")
        A(f"v_mul_u32_u24 v{t2}, 2688, v{t0}")
        A(f"v_lshl_add_u32 v{t2}, v{t1}, 4, v{t2}")
        A(f"v_add_u32 v{vD1}, s{sTmp2}, v{t2}")
        A(f"s_lshl_b32 s{sTmp}, s{sRole}, 1")
        A(f"s_add_u32 s{sTmp}, s{sTmp}, s{sCH}")
        A(f"s_lshl_b32 s{sTmp2}, s{sTH}, 2")
        A(f"s_add_u32 s{sTmp2}, s{sTmp2}, s{sTmp}")
        A(f"s_lshl_b32 s{sTmp3}, s{sTH}, 1")
        A(f"s_add_u32 s{sTmp3}, s{sTmp3}, s{sRole}")
        A(f"s_lshl_b32 s{sM1}, s{sTmp3}, 1")
        A(f"s_add_u32 s{sM1}, s{sM1}, s{sCH}")
        A(f"s_cmp_eq_u32 s{sTyA}, 1")
        A(f"s_cselect_b32 s{sM1}, s{sTmp2}, s{sM1}")
        A(f"s_cselect_b32 s{sTmp3}, s{sTH}, s{sTmp3}")
        A(f"s_cselect_b32 s{sTmp}, s{sTmp}, s{sCH}")
        A(f"s_lshl_b32 s{sM1}, s{sM1}, 10")
        A(f"s_add_u32 s{sM1}, s{sM1}, {XB}")
        A(f"s_mul_i32 s{sK1}, s{sTmp3}, {16*2688}")
        A(f"v_lshrrev_b32 v{t2}, 5, v{l}")
        A(f"v_lshlrev_b32 v{t2}, 9, v{t2}")
        A(f"v_bfe_u32 v{t3}, v{l}, 2, 2")
        A(f"v_lshl_add_u32 v{t2}, v{t3}, 6, v{t2}")
        A(f"v_bfe_u32 v{t3}, v{l}, 4, 1")
        A(f"v_lshl_add_u32 v{t2}, v{t3}, 5, v{t2}")
        A(f"v_lshl_add_u32 v{t2}, v{t1}, 3, v{t2}")
        A(f"s_lshl_b32 s{sTmp}, s{sTmp}, 10")
        A(f"s_add_u32 s{sTmp}, s{sTmp}, {XB}")
        A(f"v_add_u32 v{vW1}, s{sTmp}, v{t2}")
        A(f"s_mul_i32 s{sTmp}, s{sAi}, 3")
        A(f"s_lshl_b32 s{sTmp2}, s{sCH}, 1")
        A(f"s_cmp_eq_u32 s{sRole}, 0")
        A(f"s_cselect_b32 s{sTmp3}, s{sTmp2}, 1")
        A(f"s_add_u32 s{sTmp}, s{sTmp}, s{sTmp3}")
        A(f"s_add_u32 s{sTmp2}, s{sTmp2}, s{sRole}")
        A(f"s_lshl_b32 s{sFB}, s{sAi}, 2")
        A(f"s_add_u32 s{sFB}, s{sFB}, 24")
        A(f"s_add_u32 s{sFB}, s{sFB}, s{sTmp2}")
        A(f"s_cmp_eq_u32 s{sTyA}, 1")
        A(f"s_cselect_b32 s{sFB}, s{sTmp}, s{sFB}")
        A(f"s_cselect_b32 s{sTmp3}, s{sTmp3}, s{sTmp2}")
        A(f"s_lshl_b32 s{sTmp}, s{sFB}, 6")
        A(f"v_mul_u32_u24 v{t3}, 3584, v{t0}")
        A(f"v_lshl_add_u32 v{t3}, v{t1}, 4, v{t3}")
        A(f"v_add_u32 v{vD2}, s{sTmp}, v{t3}")
        A(f"s_lshl_b32 s{sTmp3}, s{sTmp3}, 11")
        A(f"s_add_u32 s{sTmp3}, s{sTmp3}, {XB}")
        A(f"v_add_u32 v{vW}, s{sTmp3}, v{t2}")
        A(f"s_lshl_b32 s{sM2}, s{sTH}, 10")
        A(f"s_add_u32 s{sM2}, s{sM2}, s{sTmp3}")
        A(f"s_lshl_b32 s{sFB}, s{sFB}, 1")
        A(f"s_mov_b32 s{sK2}, 0")
        A(f"s_and_b32 s{sNoD}, s{sTyA}, s{sRole}")
        A(f"s_and_b32 s{sNoD}, s{sNoD}, s{sCH}")
        A(f"s_mov_b32 s{sHi}, 0"); A(f"s_mov_b32 s{sHi+1}, -1")
        A(f"v_and_b32 v{t2}, 31, v{l}")
        A(f"v_lshrrev_b32 v{t3}, 5, v{l}")
        A(f"v_bfe_u32 v{t4}, v{l}, 2, 2")
        A(f"v_xor_b32 v{t3}, v{t3}, v{t4}")
        A(f"v_lshlrev_b32 v{t3}, 4, v{t3}")
        A(f"v_lshl_add_u32 v{t2}, v{t2}, 6, v{t3}")
        A(f"s_lshl_b32 s{sTmp}, s{sTH}, 12")
        A(f"v_add_u32 v{vXe}, s{sTmp}, v{t2}")
        A(f"v_xor_b32 v{vXo}, 32, v{vXe}")
        A(f"s_lshl_b32 s{sTmp}, s{sRole}, 11")
        A(f"v_add_u32 v{vX1e}, s{sTmp}, v{vXe}")
        A(f"v_xor_b32 v{vX1o}, 32, v{vX1e}")
        A(f"v_lshrrev_b32 v{t2}, 4, v{l}")
        A(f"v_lshlrev_b32 v{t2}, 4, v{t2}")
        A(f"v_bfe_u32 v{t3}, v{l}, 3, 1")
        A(f"v_add_u32 v{t2}, v{t2}, v{t3}")
        A(f"v_and_b32 v{t3}, 7, v{l}")
        A(f"v_lshlrev_b32 v{t3}, 4, v{t3}")
        A(f"v_mul_u32_u24 v{vPA}, 3584, v{t2}")
        A(f"v_add_u32 v{vPA}, v{vPA}, v{t3}")
        A(f"v_mul_u32_u24 v{vPQ}, 2688, v{t2}")
        A(f"v_add_u32 v{vPQ}, v{vPQ}, v{t3}")
        A(f"s_lshl_b32 s{sTT0}, s{sRB}, 2")
        A(f"s_lshl_b32 s{sTmp}, s{sTH}, 1")
        A(f"s_add_u32 s{sTT0}, s{sTT0}, s{sTmp}")
        A(f"s_add_u32 s{sTT1}, s{sTT0}, 1")

    def prefetch():
        A(f"s_and_b32 s{sTmp}, s{sRB}, 7")
        A(f"s_lshl_b32 s{sTmp}, s{sTmp}, 1")
        A(f"s_mul_i32 s{sTmp2}, s{sAi}, 112")
        A(f"s_cmp_eq_u32 s{sTH}, 0")
        A(f"s_cselect_b32 s{sTmp3}, 1792, 0")
        A(f"s_cmp_eq_u32 s{sTyA}, 1")
        A(f"s_cselect_b32 s{sTmp3}, s{sTmp3}, 896")
        A(f"s_add_u32 s{sTmp2}, s{sTmp2}, s{sTmp3}")
        A(f"s_lshl_b32 s{sTmp3}, s{sCH}, 6")
        A(f"s_add_u32 s{sTmp3}, s{sTmp3}, s{sTmp}")
        A(f"s_mul_i32 s{sTmp3}, s{sTmp3}, 2688")
        A(f"s_add_u32 s{sScale}, s{sTmp3}, s{sTmp2}")
        A(f"s_mul_i32 s{sTmp2}, s{sAi}, 192")
        A(f"s_lshl_b32 s{sTmp3}, s{sAi}, 8")
        A(f"s_add_u32 s{sTmp3}, s{sTmp3}, {24*64}")
        A(f"s_cmp_eq_u32 s{sTyA}, 1")
        A(f"s_cselect_b32 s{sTmp2}, s{sTmp2}, s{sTmp3}")
        A(f"s_lshl_b32 s{sTmp3}, s{sCH}, 7")
        A(f"s_add_u32 s{sTmp2}, s{sTmp2}, s{sTmp3}")
        A(f"s_mul_i32 s{sTmp3}, s{sTmp}, 3584")
        A(f"s_add_u32 s{sPad2}, s{sTmp2}, s{sTmp3}")
        n = [0]
        def ld(vrow, srd, soff, off=0):
            t_ = f"buffer_load_dwordx4 {v(PF+4*n[0],4)}, v{vrow}, s[{srd}:{srd+3}], s{soff} offen" + (f" offset:{off}" if off else "")
            n[0] += 1
            return t_
        gq, ga, gb = [], [], []
        for m in range(4):
            gq += [ld(vPQ, sQK, sScale), f"s_add_u32 s{sScale}, s{sScale}, {128*2688}"]
        for m in range(7):
            (ga if m < 4 else gb).extend([ld(vPA, sA, sPad2), f"s_add_u32 s{sPad2}, s{sPad2}, {64*3584}"])
        gb += [f"s_lshl_b32 s{sTmp}, s2, 2", f"s_add_u32 s{sTmp}, s{sTmp}, s{sWV}", f"s_lshl_b32 s{sTmp}, s{sTmp}, 11",
               f"s_mov_b32 s{sWM}, s64", f"s_and_b32 s{sWM+1}, s65, 0xffff", f"s_mov_b32 s{sWM+2}, {SZ_WD}", f"s_mov_b32 s{sWM+3}, 0x20000",
               f"s_cmp_lt_u32 s{sTmp}, {SZ_WD}", f"s_cselect_b32 s{sWM}, s{sWM}, s66", f"s_cselect_b32 s{sWM+1}, s{sWM+1}, s67",
               f"s_cselect_b32 s{sWM+2}, s{sWM+2}, {SZ_WO}", f"s_cselect_b32 s{sTmp2}, 0, {SZ_WD}",
               f"s_and_b32 s{sWM+1}, s{sWM+1}, 0xffff", f"s_sub_u32 s{sPad3}, s{sTmp}, s{sTmp2}",
               ld(vL16, sWM, sPad3), ld(vL16, sWM, sPad3, 1024)]
        return gq, ga, gb

    def dma1(slot_imm=None):
        L = []
        if slot_imm is None: L.append(f"s_add_u32 m0, s{sM1}, s{sSlot}")
        else: L.append(f"s_add_u32 m0, s{sM1}, {slot_imm*WSLOT}")
        L += ["s_nop 0", f"buffer_load_dwordx4 v{vD1}, s[{sQK}:{sQK+3}], s{sK1} offen lds", f"s_add_u32 s{sK1}, s{sK1}, s{sDel}"]
        return L

    def ln():
        RB = [F, F+4]
        A(f"v_mov_b32 v{t4}, 0x3f803f80")
        for r in (t0, t1, t2, t3): A(f"v_mov_b32 v{r}, 0")
        A(f"v_add_u32 v{vD[0]}, 0x10000, v{vD[1]}")
        A(f"s_cmp_eq_u32 s{sTyA}, 1")
        A(f"s_mov_b32 s{sDel}, {64*2688}")
        A(f"s_cselect_b32 s{sDel}, {32*2688}, s{sDel}")
        def rd(i, dst):
            if i*8192 < 65536: A(f"ds_read_b128 {v(dst,4)}, v{vD[1]} offset:{i*8192}")
            else: A(f"ds_read_b128 {v(dst,4)}, v{vD[0]} offset:{i*8192-65536}")
        A(f"s_waitcnt vmcnt(13)")
        rd(0, RB[0])
        for i in range(14):
            if i+1 < 14:
                A(f"s_waitcnt vmcnt({12-i})")
                rd(i+1, RB[(i+1) & 1])
                A("s_waitcnt lgkmcnt(1)")
            else:
                A("s_waitcnt lgkmcnt(0)")
            for k in range(4):
                R = RB[i & 1]+k
                A(f"v_dot2c_f32_bf16 v{t0 if k%2==0 else t1}, v{R}, v{t4}")
                A(f"v_dot2c_f32_bf16 v{t2 if k%2==0 else t3}, v{R}, v{R}")
        if 'epst' not in exp: ST.stamp()
        RA = [F+8, F+12]; T = [F+16+k for k in range(8)]
        A(f"ds_read_b128 {v(RA[0],4)}, v{vD[1]}")
        A.nop(1)
        A(f"v_add_f32 v{t0}, v{t0}, v{t1}")
        A(f"v_add_f32 v{t2}, v{t2}, v{t3}")
        for qp in ("[1,0,3,2]", "[2,3,0,1]"):
            A("s_nop 1")
            A(f"v_add_f32_dpp v{t0}, v{t0}, v{t0} quad_perm:{qp} row_mask:0xf bank_mask:0xf")
            A(f"v_add_f32_dpp v{t2}, v{t2}, v{t2} quad_perm:{qp} row_mask:0xf bank_mask:0xf")
        A(f"v_mul_f32 v{t0}, {f2u(1.0/448):#x}, v{t0}")
        A(f"v_mul_f32 v{t2}, {f2u(1.0/448):#x}, v{t2}")
        A(f"v_fma_f32 v{t2}, -v{t0}, v{t0}, v{t2}")
        A(f"v_max_f32 v{t2}, 0, v{t2}")
        A(f"v_add_f32 v{t2}, {f2u(1e-5):#x}, v{t2}")
        A(f"v_rsq_f32 v{vR}, v{t2}")
        A("s_nop 0")
        A(f"v_mul_f32 v{t0}, v{t0}, v{vR}")
        A(f"v_sub_f32 v{vNMR}, 0, v{t0}")
        def norm(R0):
            R = [R0+k for k in range(4)]
            for k in range(4):
                A(f"v_lshlrev_b32 v{T[2*k]}, 16, v{R[k]}")
                A(f"v_and_b32 v{T[2*k+1]}, 0xffff0000, v{R[k]}")
            for k in range(8):
                A(f"v_fma_f32 v{T[k]}, v{T[k]}, v{vR}, v{vNMR}")
            for k in range(4):
                A(f"v_cvt_pk_bf16_f32 v{R[k]}, v{T[2*k]}, v{T[2*k+1]}")
        def nbody(last):
            A(f"ds_read_b128 {v(RA[1],4)}, v{vD[1]} offset:8192")
            A("s_waitcnt lgkmcnt(1)")
            norm(RA[0])
            A(f"ds_write_b128 v{vD[1]}, {v(RA[0],4)}")
            if not last:
                A(f"ds_read_b128 {v(RA[0],4)}, v{vD[1]} offset:16384")
            A(f"s_waitcnt lgkmcnt({2 if not last else 1})")
            norm(RA[1])
            A(f"ds_write_b128 v{vD[1]}, {v(RA[1],4)} offset:8192")
            if not last:
                A(f"v_add_u32 v{vD[1]}, 16384, v{vD[1]}")
        if A.trace:
            for it in range(6): nbody(False)
        else:
            Ln = A.newlabel(name + "_ln")
            A(f"s_mov_b32 s{sCnt}, 6")
            A.label(Ln)
            nbody(False)
            A(f"s_sub_u32 s{sCnt}, s{sCnt}, 1")
            A(f"s_cmp_lg_u32 s{sCnt}, 0")
            A(f"s_cbranch_scc1 {Ln}")
        nbody(True)
        def pblock():
            A(f"s_cmp_eq_u32 s{sTyA}, 1")
            A(f"s_mov_b32 s{sPad3}, {16*2688}")
            A(f"s_cselect_b32 s{sPad3}, {(-1792) & 0xffffffff}, s{sPad3}")
            A(f"v_add_u32 v{vPQ+1}, s{sPad3}, v{vD1}")
            for sl in range(4):
                A(f"s_add_u32 m0, s{sM1}, {sl*WSLOT}")
                A("s_nop 0")
                A(f"buffer_load_dwordx4 v{vD1}, s[{sQK}:{sQK+3}], s{sK1} offen lds")
                A(f"s_add_u32 m0, s{sM1}, {sl*WSLOT + 2048}")
                A("s_nop 0")
                A(f"buffer_load_dwordx4 v{vPQ+1}, s[{sQK}:{sQK+3}], s{sK1} offen lds")
                A(f"s_add_u32 s{sK1}, s{sK1}, s{sDel}")
            c.pf = prefetch()
            for x_ in c.pf[0] + c.pf[1] + c.pf[2]: A(x_)
            c.warm_groups = []
        if A.trace:
            if c.trace_role == 0: pblock()
        else:
            Lq = A.newlabel(name + "_qskip"); Lj = A.newlabel(name + "_qjoin")
            A(f"s_cmp_ge_u32 s{sWV}, 4")
            A(f"s_cbranch_scc1 {Lq}")
            pblock()
            A(f"s_branch {Lj}")
            A.label(Lq)
            A(f"s_lshl_b32 s{sTmp}, s{sDel}, 2")
            A(f"s_add_u32 s{sK1}, s{sK1}, s{sTmp}")
            A.label(Lj)
        return 4

    def arrive(off, total_s, flagbase):
        A(f"v_mov_b32 v{t0}, {CNT+off}")
        A(f"v_mov_b32 v{t1}, 1")
        A("s_mov_b64 exec, 1")
        A(f"ds_add_rtn_u32 v{t1}, v{t0}, v{t1}")
        A("s_waitcnt lgkmcnt(0)")
        A("s_mov_b64 exec, -1")
        A(f"v_readfirstlane_b32 s{sTmp}, v{t1}")
        A("s_nop 3")
        A(f"s_cmp_lg_u32 s{sTmp}, {total_s-1}")
        L = A.newlabel(name + "_arr")
        if not A.trace: A(f"s_cbranch_scc1 {L}")
        A(f"s_lshl_b32 s{sTmp}, s2, 6")
        A(f"s_add_u32 s{sTmp}, s{sTmp}, {flagbase}")
        A(f"v_mov_b32 v{t0}, s{c.sTAG}")
        A(f"v_mov_b32 v{t1}, 0")
        A("s_mov_b64 exec, 1")
        A(f"buffer_store_dword v{t0}, v{t1}, s[{sWS}:{sWS+3}], s{sTmp} offen sc0 sc1")
        A("s_mov_b64 exec, -1")
        A.label(L)

    c.arriveH = lambda: arrive(4, 8, FLAGA)

    def store_frags(src8, soff):
        A(f"buffer_store_dwordx4 {v(src8,4)}, v{vL16}, s[{sWS}:{sWS+3}], s{soff} offen{STF}")
        A(f"buffer_store_dwordx4 {v(src8+4,4)}, v{vL16}, s[{sWS}:{sWS+3}], s{soff} offen offset:1024{STF}")

    def pass1(kind, npf_P):
        nks = 2 if kind != 'K' else 4
        ntl = 2 if kind != 'K' else 1
        nst = 28//nks
        blkstride = 4096 if kind != 'K' else 2048
        xe, xo = (vXe, vXo) if kind != 'K' else (vX1e, vX1o)
        per = 4*ntl + 4
        F1 = 88
        assert F1 + 2*nks*per <= 152
        def FB(b, ks): return F1 + (b*nks + ks)*per
        XG = (nks//2)*8192
        def reads(b, slot, xi):
            L = []
            for ks in range(nks):
                for q in range(2):
                    L.append(f"ds_read_b64_tr_b16 {v(FB(b,ks)+4*ntl+2*q,2)}, v{vW1} offset:{slot*WSLOT + ks*blkstride + q*256}")
                ad = xe if ks % 2 == 0 else xo
                for tl in range(ntl):
                    L.append(f"ds_read_b128 {v(FB(b,ks)+4*tl,4)}, v{ad} offset:{xi*XG + (ks//2)*8192 + tl*2048}")
            return L
        def mfm(b, first):
            L = []
            for ks in range(nks):
                for tl in range(ntl):
                    acc = ACC + 16*tl
                    cc = "0" if (first and ks == 0) else v(acc,16)
                    W = v(FB(b,ks)+4*ntl,4); X = v(FB(b,ks)+4*tl,4)
                    if kind == 'V': L.append(f"v_mfma_f32_32x32x16_bf16 {v(acc,16)}, {X}, {W}, {cc}")
                    else: L.append(f"v_mfma_f32_32x32x16_bf16 {v(acc,16)}, {W}, {X}, {cc}")
            return L
        grp = 4 if XG*4 + 4096 < 65536 else 2
        def stage(s4, first, last, vm, do_dma, pre=()):
            b = s4 & 1
            M = mfm(b, first)
            A("s_waitcnt lgkmcnt(0)")
            A(M[0])
            if last:
                for m in M[1:]: A(m)
                return
            A(f"s_waitcnt vmcnt({vm})")
            A("s_barrier")
            nx = (s4+1) % 4
            xi = (s4+1) % grp
            if xi == 0:
                A(f"v_add_u32 v{xe}, {grp*XG}, v{xe}")
                A(f"v_add_u32 v{xo}, {grp*XG}, v{xo}")
            R_ = reads(b ^ 1, nx, xi)
            h = len(R_)//2
            for x_ in R_[:h]: A(x_)
            A(M[1])
            for x_ in R_[h:]: A(x_)
            A(M[2])
            if do_dma:
                A(f"s_add_u32 m0, s{sM1}, {s4*WSLOT}")
            A(M[3])
            if do_dma:
                A(f"buffer_load_dwordx4 v{vD1}, s[{sQK}:{sQK+3}], s{sK1} offen lds")
                A(f"s_add_u32 s{sK1}, s{sK1}, s{sDel}")
            for x_ in pre: A(x_)
        stage.grp = grp; stage.XG = XG
        return stage, reads, nst

    def run_pass1(kind, role):
        stage, reads, nst = pass1(kind, c.npf)
        isP = role == 0
        fifo = (["st0","st0","st1","st1","st2","st2","st3","st3"] + ["pf"]*13) if isP else []
        def need(tagname):
            if tagname not in fifo: return len(fifo)
            i = len(fifo) - 1 - fifo[::-1].index(tagname)
            return len(fifo) - 1 - i
        A(f"s_waitcnt vmcnt({need('st0')}) lgkmcnt(0)")
        A("s_barrier")
        if 'epst' not in exp: ST.stamp()
        for x_ in reads(0, 0, 0): A(x_)
        A(f"s_mov_b32 s52, s{c.sDBG}"); A(f"s_and_b32 s53, s{c.sDBG+1}, 0xffff"); A("s_mov_b32 s54, 256"); A("s_mov_b32 s55, 0x20000")
        A(f"buffer_load_dword v{vTAG}, v{vZ}, s[52:55], 0 offen sc0 sc1")
        fifo.append("tag")
        tag = f"{name}_p1{kind}{role}"
        def nloads(L): return sum(1 for x_ in L if x_.startswith("buffer_load"))
        def one(s_, pre=()):
            last = s_ == nst-1
            vm = None if last else need(f"st{s_+1}")
            dd = s_+4 <= nst-1
            stage(s_ % 4, s_ == 0, last, vm, dd, pre)
            if dd: fifo.append(f"st{s_+4}")
            fifo.extend(["pf"]*nloads(pre))
        pres = {}
        nexp = 8 if isP else 4
        s_ = 0
        while s_ < nst:
            cnt = (nst-5) - s_ + 1
            if False:
                pass
            else:
                one(s_, pres.get(s_, ()))
                s_ += 1
        A("s_barrier")
        if 'epst' not in exp: ST.stamp()
        A(f"v_readfirstlane_b32 s{c.sTAG}, v{vTAG}")
        if not A.trace:
            Lt = A.newlabel(name + "_havetag")
            A("s_nop 3")
            A(f"s_cmp_lg_u32 s{c.sTAG}, 0")
            A(f"s_cbranch_scc1 {Lt}")
            c.get_tag(t0, 52)
            A.label(Lt)

    def epilogue1(kind):
        ntl = 2 if kind != 'K' else 1
        if kind == 'V':
            A(f"v_cmp_eq_u32 vcc, 28, v{l}" )
            A(f"v_cmp_eq_u32 s[4:5], 60, v{l}")
            A("s_nop 3")
            A("s_or_b64 s[4:5], s[4:5], vcc")
        for tl in range(ntl):
            C = ACC + 16*tl
            if kind == 'Q':
                A(f"s_mov_b32 s{sScale}, {f2u(CSCALE):#x}")
                for i in range(16): A(f"v_mul_f32 v{C+i}, s{sScale}, v{C+i}")
            for r in range(8):
                A(f"v_cvt_pk_bf16_f32 v{C+r}, v{C+2*r}, v{C+2*r+1}")
            if kind == 'V':
                A(f"s_mov_b64 exec, s[4:5]")
                for r in range(8): A(f"v_mov_b32 v{C+r}, 0x3f803f80")
            else:
                A(f"s_mov_b64 exec, s[{sHi}:{sHi+1}]")
                A(f"v_mov_b32 v{C+6}, {0 if kind == 'Q' else 0x3f803f80:#x}")
                A(f"v_mov_b32 v{C+7}, {0 if kind == 'Q' else 0x00003f80:#x}")
            A(f"s_mov_b64 exec, -1")
            A(f"s_lshl_b32 s{sTmp}, s{sE}, 6")
            if kind == 'K':
                A(f"s_add_u32 s{sTmp}, s{sTmp}, s{sTT0}")
                A(f"s_add_u32 s{sTmp}, s{sTmp}, s{sRole}")
            else:
                A(f"s_add_u32 s{sTmp}, s{sTmp}, s{[sTT0, sTT1][tl]}")
            A(f"s_lshl_b32 s{sTmp}, s{sTmp}, 11")
            store_frags(C, sTmp)
        return 2*ntl

    def dma2(slot, cond):
        L = [f"s_add_u32 m0, s{sM2}, {slot*WSLOT}", "s_nop 0",
             f"buffer_load_dwordx4 v{vD2}, s[{sA}:{sA+3}], s{sK2} offen lds",
             f"s_add_u32 s{sK2}, s{sK2}, {16*3584}"]
        return L
    def emit_dma2(slot, cond):
        if cond and not A.trace:
            Ls = A.newlabel(name + "_nod")
            A(f"s_cmp_eq_u32 s{sNoD}, 1")
            A(f"s_cbranch_scc1 {Ls}")
            for x_ in dma2(slot, cond): A(x_)
            A.label(Ls)
        else:
            for x_ in dma2(slot, cond): A(x_)

    def pass2(ntl, nst1):
        cond = (ntl == 1)
        xe, xo = (vXe, vXo) if ntl == 2 else (vX1e, vX1o)
        def reads(b, k4, slot):
            L = []
            for t in range(2):
                for q in range(2):
                    L.append(f"ds_read_b64_tr_b16 {v(FW(b,t)+2*q,2)}, v{vW} offset:{slot*WSLOT + t*1024 + q*256}")
            ad = xe if k4 % 2 == 0 else xo
            for tl in range(ntl):
                L.append(f"ds_read_b128 {v(FX(b,tl),4)}, v{ad} offset:{(k4//2)*8192 + tl*2048}")
            return L
        def mfm(b, first):
            L = []
            for t in range(2):
                for tl in range(ntl):
                    acc = AC(t, tl)
                    cc = "0" if first else v(acc,16)
                    L.append(f"v_mfma_f32_32x32x16_bf16 {v(acc,16)}, {v(FW(b,t),4)}, {v(FX(b,tl),4)}, {cc}")
            return L
        def kstep(k4, first=False, last=False, do_dma=True, vm=None, after=None):
            b = k4 & 1
            M = mfm(b, first)
            npre = 1 if ntl == 1 else 2
            A("s_waitcnt lgkmcnt(0)")
            for m in M[:npre]: A(m)
            if last:
                for m in M[npre:]: A(m)
                return
            A(f"s_waitcnt vmcnt({vm})")
            A("s_barrier")
            nxt = (k4+1) % 4
            oth = []
            if k4 == 3:
                oth += [f"v_add_u32 v{xe}, 16384, v{xe}", f"v_add_u32 v{xo}, 16384, v{xo}"]
            oth += reads(b ^ 1, nxt, nxt)
            rest = M[npre:]
            k = len(oth); per = (k + len(rest) - 1)//len(rest); idx = 0
            for m in rest:
                A(m)
                for _ in range(per):
                    if idx < k: A(oth[idx]); idx += 1
            if do_dma: emit_dma2(k4, cond)
            if after: after()
        return reads, kstep

    def run_pass2(ntl, nst1, tag, warm=()):
        reads, kstep = pass2(ntl, nst1)
        A(f"s_waitcnt vmcnt({3+nst1}) lgkmcnt(0)")
        A("s_barrier")
        for x_ in reads(0, 0, 0): A(x_)
        def body(first, final):
            for k in range(4):
                if final:
                    nw = len(warm)
                    def wl():
                        for g_ in warm:
                            for x_ in g_: A(x_)
                    kstep(k, last=(k == 3), do_dma=False, vm=((2-k) + (nw if k > 0 else 0)) if k < 3 else None, after=(wl if k == 0 else None))
                elif first:
                    nw = len(warm)
                    vm = [2+nst1, 2+nst1, 2+nst1, 2][k]
                    def aft():
                        if ntl == 1 and not A.trace:
                            Ls = A.newlabel(name + "_ndw")
                            A(f"s_cmp_eq_u32 s{sNoD}, 0")
                            A(f"s_cbranch_scc1 {Ls}")
                            A("s_waitcnt vmcnt(0)")
                            A.label(Ls)
                        arrive(0, 8, FLAGQ)
                    kstep(k, first=(k == 0), vm=vm, after=(aft if k == 3 else None))
                else: kstep(k, vm=2)
        body(True, False)
        if A.trace:
            for it in range(5): body(False, False)
        else:
            A(f"s_mov_b32 s{sCnt}, 5")
            A.label(tag + "_loop")
            body(False, False)
            A(f"s_sub_u32 s{sCnt}, s{sCnt}, 1")
            A(f"s_cmp_lg_u32 s{sCnt}, 0")
            A(f"s_cbranch_scc1 {tag}_loop")
        body(False, True)
        A("s_barrier")
        ST.stamp()
        A.nop(11)


    def run_pass1A(sub):
        isP = sub != 'H'
        NST = 14
        def FB(b, ks): return (16 if b == 0 else 216) + 16*ks
        if sub == 'Q': A(f"v_add_u32 v{vW1}, 1024, v{vW1}")
        def reads(b, slot, xi):
            L = []
            for ks in range(2):
                for t in range(2):
                    for q in range(2):
                        L.append(f"ds_read_b64_tr_b16 {v(FB(b,ks)+8+4*t+2*q,2)}, v{vW1} offset:{slot*WSLOT + ks*4096 + t*1024 + q*256}")
                ad = vXe if ks == 0 else vXo
                for tl in range(2):
                    L.append(f"ds_read_b128 {v(FB(b,ks)+4*tl,4)}, v{ad} offset:{xi*8192 + tl*2048}")
            return L
        def mfm(b, first):
            L = []
            for ks in range(2):
                for t in range(2):
                    for tl in range(2):
                        acc = ACC + 32*t + 16*tl
                        cc = "0" if (first and ks == 0) else v(acc,16)
                        W = v(FB(b,ks)+8+4*t,4); X = v(FB(b,ks)+4*tl,4)
                        if sub == 'V': L.append(f"v_mfma_f32_32x32x16_bf16 {v(acc,16)}, {X}, {W}, {cc}")
                        else: L.append(f"v_mfma_f32_32x32x16_bf16 {v(acc,16)}, {W}, {X}, {cc}")
            return L
        fifo = (["st0","st0","st1","st1","st2","st2","st3","st3"] + ["pf"]*13) if isP else []
        def need(tg):
            if tg not in fifo: return len(fifo)
            i = len(fifo) - 1 - fifo[::-1].index(tg)
            return len(fifo) - 1 - i
        A(f"s_waitcnt vmcnt({min(63, need('st0'))}) lgkmcnt(0)")
        A("s_barrier")
        if 'epst' not in exp: ST.stamp()
        if isP:
            for x_ in reads(0, 0, 0): A(x_)
        else:
            A(f"v_add_u32 v{vPQ+1}, 1792, v{vD1}")
        A(f"s_mov_b32 s52, s{c.sDBG}"); A(f"s_and_b32 s53, s{c.sDBG+1}, 0xffff"); A("s_mov_b32 s54, 256"); A("s_mov_b32 s55, 0x20000")
        A(f"buffer_load_dword v{vTAG}, v{vZ}, s[52:55], 0 offen sc0 sc1")
        fifo.append("tag")
        for s_ in range(NST):
            b = s_ & 1
            last = s_ == NST-1
            if isP:
                M = mfm(b, s_ == 0)
                A("s_waitcnt lgkmcnt(0)")
                A(M[0]); A(M[1])
                if last:
                    for m in M[2:]: A(m)
                    break
            elif last: break
            A(f"s_waitcnt vmcnt({min(63, need(f'st{s_+1}'))})")
            A("s_barrier")
            if isP:
                xi = (s_+1) % 4
                oth = []
                if xi == 0: oth += [f"v_add_u32 v{vXe}, 32768, v{vXe}", f"v_add_u32 v{vXo}, 32768, v{vXo}"]
                oth += reads(b ^ 1, (s_+1) % 4, xi)
                rest = M[2:]; k = len(oth); perm = (k + len(rest) - 1)//len(rest); idx = 0
                for m in rest:
                    A(m)
                    for _ in range(perm):
                        if idx < k: A(oth[idx]); idx += 1
            elif s_+4 <= NST-1:
                sl = s_ % 4
                A(f"s_add_u32 m0, s{sM1}, {sl*WSLOT}")
                A("s_nop 0")
                A(f"buffer_load_dwordx4 v{vD1}, s[{sQK}:{sQK+3}], s{sK1} offen lds")
                A(f"s_add_u32 m0, s{sM1}, {(sl*WSLOT - 2048) & 0xffffffff}")
                A("s_nop 0")
                A(f"buffer_load_dwordx4 v{vPQ+1}, s[{sQK}:{sQK+3}], s{sK1} offen lds")
                A(f"s_add_u32 s{sK1}, s{sK1}, s{sDel}")
                fifo += [f"st{s_+4}"]*2
        A("s_waitcnt vmcnt(0)" if not isP else "s_nop 0")
        A("s_barrier")
        if 'epst' not in exp: ST.stamp()
        if isP: A("s_waitcnt vmcnt(0)")
        A(f"v_readfirstlane_b32 s{c.sTAG}, v{vTAG}")
        if not A.trace:
            Lt = A.newlabel(name + "_havetag")
            A("s_nop 3")
            A(f"s_cmp_lg_u32 s{c.sTAG}, 0")
            A(f"s_cbranch_scc1 {Lt}")
            c.get_tag(t0, 52)
            A.label(Lt)

    def epilogue1A(sub):
        if sub == 'H': return 0
        A(f"s_lshl_b32 s{sE}, s{sAi}, 1")
        if sub == 'V':
            A(f"s_add_u32 s{sE}, s{sE}, 32")
            A(f"v_cmp_eq_u32 vcc, 28, v{l}" )
            A(f"v_cmp_eq_u32 s[4:5], 60, v{l}")
            A("s_nop 3")
            A("s_or_b64 s[4:5], s[4:5], vcc")
        else:
            A(f"s_mov_b32 s{sScale}, {f2u(CSCALE):#x}")
        for t in range(2):
            for tl in range(2):
                C = ACC + 32*t + 16*tl
                if sub == 'Q':
                    for i in range(16): A(f"v_mul_f32 v{C+i}, s{sScale}, v{C+i}")
                for r in range(8):
                    A(f"v_cvt_pk_bf16_f32 v{C+r}, v{C+2*r}, v{C+2*r+1}")
                if sub == 'V':
                    A(f"s_mov_b64 exec, s[4:5]")
                    for r in range(8): A(f"v_mov_b32 v{C+r}, 0x3f803f80")
                else:
                    A(f"s_mov_b64 exec, s[{sHi}:{sHi+1}]")
                    A(f"v_mov_b32 v{C+6}, 0"); A(f"v_mov_b32 v{C+7}, 0")
                A(f"s_mov_b64 exec, -1")
                A(f"s_add_u32 s{sTmp}, s{sE}, {t}")
                A(f"s_lshl_b32 s{sTmp}, s{sTmp}, 6")
                A(f"s_add_u32 s{sTmp}, s{sTmp}, s{[sTT0, sTT1][tl]}")
                A(f"s_lshl_b32 s{sTmp}, s{sTmp}, 11")
                store_frags(C, sTmp)
        return 8

    SL2 = 12288
    def run_pass2A(ntl, nst1, tag):
        xe, xo = (vXe, vXo) if ntl == 2 else (vX1e, vX1o)
        nd = 2 if ntl == 2 else 1
        per = 4*ntl + 8
        F2 = 176
        def FB(b, ks): return F2 + (b*2 + ks)*per
        def reads(b, slot, xi):
            L = []
            for ks in range(2):
                for t in range(2):
                    for q in range(2):
                        L.append(f"ds_read_b64_tr_b16 {v(FB(b,ks)+4*ntl+4*t+2*q,2)}, v{vW} offset:{slot*SL2 + ks*6144 + t*1024 + q*256}")
                ad = xe if ks == 0 else xo
                for tl in range(ntl):
                    L.append(f"ds_read_b128 {v(FB(b,ks)+4*tl,4)}, v{ad} offset:{xi*8192 + tl*2048}")
            return L
        def mfm(b, first):
            L = []
            for ks in range(2):
                for t in range(2):
                    for tl in range(ntl):
                        acc = AC(t, tl)
                        cc = "0" if (first and ks == 0) else v(acc,16)
                        L.append(f"v_mfma_f32_32x32x16_bf16 {v(acc,16)}, {v(FB(b,ks)+4*ntl+4*t,4)}, {v(FB(b,ks)+4*tl,4)}, {cc}")
            return L
        def dma(slot):
            L = []
            if ntl == 2:
                for ks in range(2):
                    L += [f"s_add_u32 m0, s{sM2}, {slot*SL2 + ks*6144}", "s_nop 0",
                          f"buffer_load_dwordx4 v{vD2}, s[{sA}:{sA+3}], s{sK2} offen lds", f"s_add_u32 s{sK2}, s{sK2}, {16*3584}"]
            else:
                L += [f"s_add_u32 m0, s{sM2}, {slot*SL2}", "s_nop 0",
                      f"buffer_load_dwordx4 v{vD2}, s[{sA}:{sA+3}], s{sK2} offen lds", f"s_add_u32 s{sK2}, s{sK2}, {32*3584}"]
            return L
        return reads, mfm, dma, nd, xe, xo

    def pass2A_init(ntl):
        reads, mfm, dma, nd, xe, xo = run_pass2A(ntl, 0, "")
        if ntl == 1:
            A(f"s_mul_i32 s{sTmp}, s{sCH}, 6144")
            A(f"s_add_u32 s{sM2}, s{sM2}, s{sTmp}")
            A(f"s_mul_i32 s{sK2}, s{sCH}, {16*3584}")
        for sl in range(3):
            for x_ in dma(sl): A(x_)
        return 3*nd

    def pass2A_main(ntl, nst1, tag):
        reads, mfm, dma, nd, xe, xo = run_pass2A(ntl, nst1, tag)
        fifo = []
        for st_ in range(3): fifo += [f"st{st_}"]*nd
        fifo += ["sto"]*nst1
        def need(tg):
            i = len(fifo) - 1 - fifo[::-1].index(tg)
            return len(fifo) - 1 - i
        A(f"s_waitcnt vmcnt({need('st0')}) lgkmcnt(0)")
        A("s_barrier")
        for x_ in reads(0, 0, 0): A(x_)
        NST = 14
        for s_ in range(NST):
            b = s_ & 1
            M = mfm(b, s_ == 0)
            npre = 2 if ntl == 2 else 1
            A("s_waitcnt lgkmcnt(0)")
            for m in M[:npre]: A(m)
            if s_ == NST-1:
                for m in M[npre:]: A(m)
                break
            A(f"s_waitcnt vmcnt({need(f'st{s_+1}')})")
            A("s_barrier")
            xi = (s_+1) % 4
            oth = []
            if xi == 0:
                oth += [f"v_add_u32 v{xe}, 32768, v{xe}", f"v_add_u32 v{xo}, 32768, v{xo}"]
            oth += reads(b ^ 1, (s_+1) % 3, xi)
            rest = M[npre:]
            k = len(oth); perm = (k + len(rest) - 1)//len(rest); idx = 0
            for m in rest:
                A(m)
                for _ in range(perm):
                    if idx < k: A(oth[idx]); idx += 1
            if s_+3 <= NST-1:
                for x_ in dma(s_ % 3): A(x_)
                fifo += [f"st{s_+3}"]*nd
            if s_ == 3:
                arrive(0, 8, FLAGQ)
        A("s_barrier")
        ST.stamp()
        A.nop(11)

    def epilogue2(ntl, role):
        TM = [F, F+1, F+2, F+3]
        def compute(tl):
            G = AC(0, tl); U = AC(1, tl)
            A(f"s_mov_b32 s{sTmp2}, {f2u(-LOG2E):#x}")
            for i0 in range(0, 16, 4):
                for i in range(4): A(f"v_mul_f32 v{TM[i]}, s{sTmp2}, v{G+i0+i}")
                for i in range(4): A(f"v_exp_f32 v{TM[i]}, v{TM[i]}")
                for i in range(4): A(f"v_mul_f32 v{G+i0+i}, v{G+i0+i}, v{U+i0+i}")
                for i in range(4): A(f"v_add_f32 v{TM[i]}, 1.0, v{TM[i]}")
                for i in range(4): A(f"v_rcp_f32 v{TM[i]}, v{TM[i]}")
                A("s_nop 0")
                for i in range(4): A(f"v_mul_f32 v{G+i0+i}, v{G+i0+i}, v{TM[i]}")
            for r in range(8):
                A(f"v_cvt_pk_bf16_f32 v{U+r}, v{G+2*r}, v{G+2*r+1}")
        def store(tl):
            U = AC(1, tl)
            if ntl == 2:
                A(f"s_mul_i32 s{sTmp}, s{[sTT0, sTT1][tl]}, 144")
            else:
                A(f"s_add_u32 s{sTmp}, s{sTT0}, s{sCH}")
                A(f"s_mul_i32 s{sTmp}, s{sTmp}, 144")
            A(f"s_add_u32 s{sTmp}, s{sTmp}, s{sFB}")
            A(f"s_lshl_b32 s{sTmp}, s{sTmp}, 10")
            A(f"s_add_u32 s{sTmp}, s{sTmp}, {HF}")
            store_frags(U, sTmp)
        if role == 0:
            c.attn_pre()
            compute(0)
            if "epst" in exp: ST.stamp()
            c.attn_pre2()
            if "epst" in exp: ST.stamp()
            compute(1)
            store(0); store(1)
            if "epst" in exp: ST.stamp()
            c.attn_pre3()
        else:
            for tl in range(ntl):
                compute(tl); store(tl)
            A("s_waitcnt vmcnt(0)")
            arrive(4, 8, FLAGA)
            c.gemm_pre()

    def variant(kind, role):
        tag = f"{name}_{kind}{role}"
        if kind == 'K':
            run_pass1(kind, role)
            ntl2 = 2
            for sl in range(4): emit_dma2(sl, False)
            A.nop(8)
            nst1 = epilogue1(kind)
            run_pass2(ntl2, nst1, tag + "_p2", warm=())
        else:
            run_pass1A(kind)
            if kind == 'H':
                ntl2 = 1
                A(f"s_lshl_b32 s{sTmp}, s{sCH}, 11")
                A(f"v_add_u32 v{vX1e}, s{sTmp}, v{vXe}")
                A(f"v_xor_b32 v{vX1o}, 32, v{vX1e}")
            else:
                ntl2 = 2
                A(f"v_subrev_u32 v{vXe}, {3*4*8192}, v{vXe}"); A(f"v_subrev_u32 v{vXo}, {3*4*8192}, v{vXo}")
            pass2A_init(ntl2)
            A.nop(8)
            nst1 = epilogue1A(kind)
            pass2A_main(ntl2, nst1, tag + "_p2")
        epilogue2(ntl2, role)
        c.nstamp_after_A = ST.n if not (role == 1 and 'epst' in exp) else ST.n + 3
        if not A.trace: A(f"s_branch {c.LB[role]}")

    setup()
    c.trace_role = only[1] if only is not None else None
    c.npf = ln()
    if only is not None:
        variant(*only)
        return
    nsave = ST.n
    keys = [('V',0), ('Q',0), ('H',1), ('K',0), ('K',1)]
    labs = {k: f"{name}_V{k[0]}{k[1]}" for k in keys}
    A(f"s_lshl_b32 s{sTmp}, s{sTyA}, 1")
    A(f"s_add_u32 s{sTmp}, s{sTmp}, s{sRole}")
    A(f"s_cmp_eq_u32 s{sTmp}, 3"); A(f"s_cbranch_scc1 {labs[('H',1)]}")
    A(f"s_cmp_eq_u32 s{sTmp}, 0"); A(f"s_cbranch_scc1 {labs[('K',0)]}")
    A(f"s_cmp_eq_u32 s{sTmp}, 1"); A(f"s_cbranch_scc1 {labs[('K',1)]}")
    A(f"s_cmp_eq_u32 s{sCH}, 1"); A(f"s_cbranch_scc1 {labs[('Q',0)]}")
    for k in keys:
        A.label(labs[k])
        ST.n = nsave
        variant(*k)
```

```python
from common import *
FLAGA = 24*1024*1024
FLAGO = FLAGA + 65536
FLAGQ = FLAGA + 2*65536
G_LDS = 66560
CNTB = 14*8192 + 5*8192 + 16

def wg_of(A, rb_expr_v, g_expr_v, dst, t):
    A(f"v_lshrrev_b32 v{dst}, 3, v{rb_expr_v}")
    A(f"v_lshrrev_b32 v{t}, 2, v{g_expr_v}")
    A(f"v_lshl_add_u32 v{dst}, v{t}, 1, v{dst}")
    A(f"v_and_b32 v{t}, 7, v{rb_expr_v}")
    A(f"v_lshl_add_u32 v{dst}, v{t}, 3, v{dst}")
    A(f"v_and_b32 v{t}, 1, v{g_expr_v}")
    A(f"v_lshl_add_u32 v{dst}, v{t}, 7, v{dst}")
    A(f"v_bfe_u32 v{t}, v{g_expr_v}, 1, 1")
    A(f"v_lshl_add_u32 v{dst}, v{t}, 6, v{dst}")

def publish(c, vt, flagbase, add):
    A = c.A
    c.flag_srd(60)
    A(f"s_lshl_b32 s35, s2, 6")
    A(f"s_add_u32 s35, s35, {flagbase}")
    A(f"s_add_u32 s36, s{c.sTAG}, {add}")
    A(f"v_mov_b32 v{vt}, s36")
    A(f"v_mov_b32 v{vt+1}, 0")
    A("s_mov_b64 exec, 1")
    A(f"buffer_store_dword v{vt}, v{vt+1}, s[60:63], s35 offen sc0 sc1")
    A("s_mov_b64 exec, -1")

def attention(c, part="all"):
    A, ST, name, STF, LDF = c.A, c.ST, c.name, c.STF, c.LDF
    sWV = c.sWV
    vL16 = 2; vLane = 1
    vT = [3,4,5,6,7,9]
    Q = 120
    O = 44
    S = 12
    P = 108
    E = 116
    KV = 152
    vM = 216
    vFL, vFA = 220, 221
    def Qf(qt, s): return Q + 8*qt + 4*s
    def Of(qt): return O + 16*qt
    def Sf(b): return S + 16*b
    def Kf(b, s): return KV + 16*b + 4*s
    def Vf(b, s): return KV + 16*b + 8 + 4*s
    sK, sV, sW = 8, 12, 4
    sH, sQB = 16, 17
    sKoff, sVoff, sQoff = 48, 49, 50
    sCnt, sExact, sTmp, sTmp2 = 51, 29, 24, 25
    sK0, sKbeg, sVbeg = 26, 27, 18
    sHiMask, sSave = 30, 32
    t0, t1 = vT[0], vT[1]
    def load_tile(b):
        A(f"buffer_load_dwordx4 {v(Kf(b,0),4)}, v{vL16}, s[{sK}:{sK+3}], s{sKoff} offen{LDF}")
        A(f"buffer_load_dwordx4 {v(Kf(b,1),4)}, v{vL16}, s[{sK}:{sK+3}], s{sKoff} offen offset:1024{LDF}")
        A(f"buffer_load_dwordx4 {v(Vf(b,0),4)}, v{vL16}, s[{sV}:{sV+3}], s{sVoff} offen{LDF}")
        A(f"buffer_load_dwordx4 {v(Vf(b,1),4)}, v{vL16}, s[{sV}:{sV+3}], s{sVoff} offen offset:1024{LDF}")
        A(f"s_add_u32 s{sKoff}, s{sKoff}, 2048")
        A(f"s_add_u32 s{sVoff}, s{sVoff}, 2048")
    a0, a1, a2 = vT[2], vT[3], vT[4]
    if part in ("pre", "all"):
        A(f"s_and_b32 s{sTmp}, s2, 7")
        A(f"s_lshr_b32 s{sTmp2}, s2, 3")
        A(f"s_and_b32 s{sH}, s{sTmp2}, 1")
        A(f"s_lshl_b32 s{sTmp}, s{sTmp}, 1")
        A(f"s_add_u32 s{sH}, s{sH}, s{sTmp}")
        A(f"s_lshr_b32 s{sQB}, s{sTmp2}, 1")
        A(f"s_mov_b32 s{sHiMask}, 0")
        A(f"s_mov_b32 s{sHiMask+1}, -1")
        A(f"s_lshl_b32 s{sTmp}, s{sH}, 6")
        A(f"s_lshl_b32 s{sTmp2}, s{sQB}, 2")
        A(f"s_add_u32 s{sQoff}, s{sTmp}, s{sTmp2}")
        A(f"s_lshl_b32 s{sQoff}, s{sQoff}, 11")
        A(f"s_lshl_b32 s{sK0}, s{sTmp}, 11")
        A(f"s_add_u32 s{sK0}, s{sK0}, {KF}")
        A(f"s_lshl_b32 s{sTmp2}, s{sWV}, 15")
        A(f"s_add_u32 s{sKbeg}, s{sK0}, s{sTmp2}")
        A(f"s_add_u32 s{sVbeg}, s{sKbeg}, {VF-KF}")
        make_srd(A, sW, c.sWSp, 0x2000000)
        make_srd(A, sK, c.sWSp, 0)
        make_srd(A, sV, c.sWSp, 0)
        A(f"s_add_u32 s{sK+2}, s{sKbeg}, {16*2048}")
        A(f"s_add_u32 s{sV+2}, s{sVbeg}, {16*2048}")
        A(f"s_mov_b32 s{sExact}, 0")
        a0, a1, a2 = vT[2], vT[3], vT[4]
        A(f"v_and_b32 v{a0}, 15, v{vLane}")
        A(f"s_and_b32 s{sTmp}, s{sH}, 0xfffe")
        A(f"v_bfe_u32 v{a1}, v{vLane}, 4, 1")
        A(f"v_add_u32 v{a1}, s{sTmp}, v{a1}")
        wg_of(A, a0, a1, a2, vT[5])
        A(f"v_lshlrev_b32 v{a2}, 6, v{a2}")
        A(f"v_add_u32 v{a2}, {FLAGQ}, v{a2}")
        if part == "pre":
            A(f"buffer_load_dword v{vFL}, v{a2}, s[{sW}:{sW+3}], 0 offen sc0 sc1")
            A(f"v_mov_b32 v{vFA}, v{a2}")
            return
        c.poll(a2, a0, sW, 0, 0xffffffff, 0xffffffff)
    if part == "pre2":
        A("s_waitcnt vmcnt(0)")
        A(f"v_cmp_ne_u32 vcc, s{c.sTAG}, v{vFL}")
        if not A.trace:
            Lok = A.newlabel(name + "_qok")
            A("s_nop 3")
            A("s_cmp_eq_u64 vcc, 0")
            A(f"s_cbranch_scc1 {Lok}")
            c.poll(vFA, vFL, sW, 0, 0xffffffff, 0xffffffff)
            A.label(Lok)
    if part in ("pre2", "all"):
        for qt in range(4):
            for s_ in range(2):
                off = qt*2048 + s_*1024
                if off < 4096:
                    A(f"buffer_load_dwordx4 {v(Qf(qt,s_),4)}, v{vL16}, s[{sW}:{sW+3}], s{sQoff} offen offset:{off}{LDF}")
                else:
                    if off == 4096: A(f"s_add_u32 s{sTmp}, s{sQoff}, 4096")
                    A(f"buffer_load_dwordx4 {v(Qf(qt,s_),4)}, v{vL16}, s[{sW}:{sW+3}], s{sTmp} offen offset:{off-4096}{LDF}")
        A(f"buffer_load_dwordx4 {v(Kf(3,0),4)}, v{vL16}, s[{sW}:{sW+3}], s{sK0} offen{LDF}")
        A(f"buffer_load_dwordx4 {v(Kf(3,1),4)}, v{vL16}, s[{sW}:{sW+3}], s{sK0} offen offset:1024{LDF}")
    if part == "pre2": return
    if part in ("pre3", "all"):
        A(f"s_mov_b32 s{sKoff}, s{sKbeg}")
        A(f"s_mov_b32 s{sVoff}, s{sVbeg}")
        for b in range(3): load_tile(b)
    if part == "pre3": return

    def set_m(qt, vm):
        x0, x1, x2, x3 = vT[0], vT[1], vT[2], vT[3]
        A(f"v_sub_f32 v{x0}, 0, v{vm}")
        A(f"v_cvt_pk_bf16_f32 v{x1}, v{x0}, v{x0}")
        A(f"v_and_b32 v{x2}, 0xffff0000, v{x1}")
        A(f"v_sub_f32 v{x0}, v{x0}, v{x2}")
        A(f"v_cvt_pk_bf16_f32 v{x2}, v{x0}, v{x0}")
        A(f"v_and_b32 v{x3}, 0xffff0000, v{x2}")
        A(f"v_sub_f32 v{x0}, v{x0}, v{x3}")
        A(f"v_cvt_pk_bf16_f32 v{x0}, v{x0}, 0")
        A(f"v_and_b32 v{x1}, 0xffff, v{x1}")
        A(f"v_or_b32 v{x1}, v{x1}, v{x3}")
        A(f"s_mov_b64 exec, s[{sHiMask}:{sHiMask+1}]")
        A(f"v_mov_b32 v{Qf(qt,1)+2}, v{x1}")
        A(f"v_mov_b32 v{Qf(qt,1)+3}, v{x0}")
        A(f"s_mov_b64 exec, -1")
    def qk(dst, b, qt):
        return [f"v_mfma_f32_32x32x16_bf16 {v(dst,16)}, {v(Kf(b,0),4)}, {v(Qf(qt,0),4)}, 0",
                f"v_mfma_f32_32x32x16_bf16 {v(dst,16)}, {v(Kf(b,1),4)}, {v(Qf(qt,1),4)}, {v(dst,16)}"]
    def maxtree(src, dst):
        A(f"v_max3_f32 v{dst}, v{src}, v{src+1}, v{src+2}")
        for i in range(3, 15, 2):
            A(f"v_max3_f32 v{dst}, v{dst}, v{src+i}, v{src+i+1}")
        A(f"v_max_f32 v{dst}, v{dst}, v{src+15}")
    def crosshalf_max(r):
        t = vT[4]
        A(f"v_mov_b32 v{t}, v{r}")
        A("s_nop 1")
        A(f"v_permlane32_swap_b32 v{r}, v{t}")
        A("s_nop 1")
        A(f"v_max_f32 v{r}, v{r}, v{t}")
    def zero_state():
        for r in range(64): A(f"v_mov_b32 v{O+r}, 0")
        for r in range(4):
            A(f"v_mov_b32 v{P+4+r}, 0")
    zero_state()
    A(f"s_waitcnt vmcnt({12 + (4 if part == 'main' else 0)})")
    for qt in range(4):
        for m in qk(Sf(qt & 1), 3, qt): A(m)
        if qt >= 1:
            A.nop(10)
            maxtree(Sf((qt-1) & 1), vM+qt-1)
    A.nop(12)
    maxtree(Sf(1), vM+3)
    for qt in range(4):
        crosshalf_max(vM+qt)
        A(f"v_add_f32 v{vM+qt}, 0x42c00000, v{vM+qt}")
        set_m(qt, vM+qt)
    Lmain = name + "_amain"
    Lm2 = name + "_amain2"
    if not A.trace:
        A(f"s_branch {Lm2}")
        A.label(Lmain)
        A(f"s_mov_b32 s{sKoff}, s{sKbeg}")
        A(f"s_mov_b32 s{sVoff}, s{sVbeg}")
        for b in range(3): load_tile(b)
        zero_state()
        A.label(Lm2)
    for r in range(4): A(f"v_mov_b32 v{Vf(3,1)+r}, 0")
    A("s_waitcnt vmcnt(8)")
    for m in qk(Sf(0), 0, 0): A(m)
    if part == "main":
        if not A.trace:
            Lh = A.newlabel(name + "_noh")
            A(f"s_cmp_eq_u32 s{sExact}, 1")
            A(f"s_cbranch_scc1 {Lh}")
        c.arriveH()
        if not A.trace: A.label(Lh)
    A.nop(12)
    ST.stamp()

    def slot(j, qt):
        b = j & 3
        sb = qt & 1
        cur = Sf(sb); nxt = Sf(sb ^ 1)
        if qt < 3: nb, nq = b, qt+1
        else: nb, nq = (j+1) & 3, 0
        if qt > 0: pb, pq = b, qt-1
        else: pb, pq = (j-1) & 3, 3
        m = qk(nxt, nb, nq)
        def grp(g):
            for i in range(4): A(f"v_exp_f32 v{E+i}, v{cur+4*g+i}")
            A(f"v_cvt_pk_bf16_f32 v{P+2*g}, v{E}, v{E+1}")
            A(f"v_cvt_pk_bf16_f32 v{P+2*g+1}, v{E+2}, v{E+3}")
        if qt == 3: A("s_waitcnt vmcnt(8)")
        A(m[0])
        grp(0)
        A(f"v_mfma_f32_32x32x16_bf16 {v(Of(pq),16)}, {v(Vf(pb,1),4)}, {v(P+4,4)}, {v(Of(pq),16)}")
        if qt == 0: load_tile((j+3) & 3)
        grp(1)
        A(m[1])
        grp(2)
        A(f"v_mfma_f32_32x32x16_bf16 {v(Of(qt),16)}, {v(Vf(b,0),4)}, {v(P,4)}, {v(Of(qt),16)}")
        grp(3)
    def body():
        for j in range(4):
            for qt in range(4): slot(j, qt)
    if A.trace:
        for it in range(4): body()
    else:
        A(f"s_mov_b32 s{sCnt}, 4")
        Ll = name + "_aloop"
        A.label(Ll)
        if c.gemm_go < 4:
            Lg = A.newlabel(name + "_go")
            A(f"s_cmp_lg_u32 s{sCnt}, {4 - c.gemm_go}")
            A(f"s_cbranch_scc1 {Lg}")
            A(f"v_mov_b32 v{vT[0]}, {CNTB+4*6}")
            A(f"v_mov_b32 v{vT[1]}, 1")
            A(f"ds_write_b32 v{vT[0]}, v{vT[1]}")
            A.label(Lg)
        body()
        A(f"s_sub_u32 s{sCnt}, s{sCnt}, 1")
        A(f"s_cmp_lg_u32 s{sCnt}, 0")
        A(f"s_cbranch_scc1 {Ll}")
    ST.stamp()
    if c.gemm_go >= 4 and not A.trace:
        A(f"v_mov_b32 v{vT[0]}, {CNTB+4*6}")
        A(f"v_mov_b32 v{vT[1]}, 1")
        A(f"ds_write_b32 v{vT[0]}, v{vT[1]}")
    A("s_nop 1")
    A(f"v_mfma_f32_32x32x16_bf16 {v(Of(3),16)}, {v(Vf(3,1),4)}, {v(P+4,4)}, {v(Of(3),16)}")
    A("s_waitcnt vmcnt(0)")
    A.nop(12)
    A(f"v_add_f32 v{t1}, v{Of(0)+12}, v{Of(1)+12}")
    A(f"v_add_f32 v{t1}, v{t1}, v{Of(2)+12}")
    A(f"v_add_f32 v{t1}, v{t1}, v{Of(3)+12}")
    A(f"s_mov_b32 s{sTmp}, {f2u(2.0**60):#x}")
    A(f"v_cmp_ngt_f32 vcc, s{sTmp}, v{t1}")
    A(f"s_nop 3")
    A(f"s_and_b64 s[{sSave}:{sSave+1}], vcc, s[{sHiMask}:{sHiMask+1}]")
    A(f"v_min3_f32 v{t0}, v{Of(0)+12}, v{Of(1)+12}, v{Of(2)+12}")
    A(f"v_min_f32 v{t0}, v{t0}, v{Of(3)+12}")
    A(f"s_mov_b32 s{sTmp}, {f2u(2.0**-110):#x}")
    A(f"v_cmp_gt_f32 vcc, s{sTmp}, v{t0}")
    A(f"s_nop 3")
    A(f"s_and_b64 vcc, vcc, s[{sHiMask}:{sHiMask+1}]")
    A(f"s_cmp_eq_u32 s{sWV}, 0")
    A(f"s_cselect_b64 vcc, vcc, 0")
    A(f"s_or_b64 s[{sSave}:{sSave+1}], s[{sSave}:{sSave+1}], vcc")
    A(f"s_cmp_lg_u64 s[{sSave}:{sSave+1}], 0")
    A(f"s_cselect_b32 s{sTmp}, 1, 0")
    if c.force_fallback: A(f"s_mov_b32 s{sTmp}, 1")
    A(f"s_cmp_eq_u32 s{sExact}, 1")
    A(f"s_cselect_b32 s{sTmp}, 0, s{sTmp}")
    A(f"s_lshl_b32 s{sTmp2}, s{sWV}, 14")
    A(f"v_add_u32 v{t0}, s{sTmp2}, v{vL16}")
    for qt in range(4):
        for a_ in range(4):
            A(f"ds_write_b128 v{t0}, {v(Of(qt)+4*a_,4)} offset:{(qt*4+a_)*1024}")
    A(f"s_lshl_b32 s{sTmp2}, s{sWV}, 2")
    A(f"s_add_u32 s{sTmp2}, s{sTmp2}, 65536")
    A(f"v_mov_b32 v{t0}, s{sTmp2}")
    A(f"v_mov_b32 v{t1}, s{sTmp}")
    A(f"ds_write_b32 v{t0}, v{t1}")
    A("s_waitcnt lgkmcnt(0)")
    if not A.trace:
        Lx = A.newlabel(name + "_r1x"); Ly = A.newlabel(name + "_r1y")
        A(f"s_cmp_eq_u32 s{sExact}, 1")
        A(f"s_cbranch_scc1 {Lx}")
        fb_sync(c, sTmp, sTmp2, vT[2], vT[3], 5)
        A(f"s_branch {Ly}")
        A.label(Lx)
        fb_sync(c, sTmp, sTmp2, vT[2], vT[3], 4)
        A.label(Ly)
    A(f"v_mov_b32 v{t0}, 0x10000")
    A(f"ds_read_b128 {v(E,4)}, v{t0}")
    A(f"s_lshl_b32 s{sTmp2}, s{sWV}, 12")
    A(f"v_add_u32 v{t1}, s{sTmp2}, v{vL16}")
    for ww in range(4):
        for a_ in range(4):
            A(f"ds_read_b128 {v(O+16*ww+4*a_,4)}, v{t1} offset:{ww*16384+a_*1024}")
    A("s_waitcnt lgkmcnt(0)")
    A(f"v_or_b32 v{E}, v{E}, v{E+1}")
    A(f"v_or_b32 v{E+2}, v{E+2}, v{E+3}")
    A(f"v_or_b32 v{E}, v{E}, v{E+2}")
    A("s_nop 1")
    A(f"v_readfirstlane_b32 s{sTmp}, v{E}")
    A("s_nop 3")
    A(f"s_cmp_lg_u32 s{sTmp}, 0")
    Lfb = name + "_fallback"
    if not A.trace: A(f"s_cbranch_scc1 {Lfb}")
    for r in range(16):
        A(f"v_add_f32 v{O+r}, v{O+r}, v{O+16+r}")
        A(f"v_add_f32 v{O+32+r}, v{O+32+r}, v{O+48+r}")
    for r in range(16):
        A(f"v_add_f32 v{O+r}, v{O+r}, v{O+32+r}")
    A(f"v_mov_b32 v{t0}, v{O+12}")
    A(f"v_mov_b32 v{t1}, v{O+12}")
    A("s_nop 1")
    A(f"v_permlane32_swap_b32 v{t0}, v{t1}")
    A("s_nop 1")
    A(f"v_rcp_f32 v{t1}, v{t1}")
    A("s_nop 0")
    for r in range(16): A(f"v_mul_f32 v{O+r}, v{O+r}, v{t1}")
    for r in range(8): A(f"v_cvt_pk_bf16_f32 v{P+r}, v{O+2*r}, v{O+2*r+1}")
    A(f"s_mov_b64 exec, s[{sHiMask}:{sHiMask+1}]")
    A(f"v_mov_b32 v{P+6}, 0")
    A(f"v_mov_b32 v{P+7}, 0")
    A(f"s_mov_b64 exec, -1")
    A(f"s_lshl_b32 s{sTmp}, s{sQB}, 2")
    A(f"s_add_u32 s{sTmp}, s{sTmp}, s{sWV}")
    A(f"s_mul_i32 s{sTmp}, s{sTmp}, 144")
    A(f"s_lshl_b32 s{sTmp2}, s{sH}, 1")
    A(f"s_add_u32 s{sTmp}, s{sTmp}, s{sTmp2}")
    A(f"s_add_u32 s{sTmp}, s{sTmp}, 112")
    A(f"s_lshl_b32 s{sTmp}, s{sTmp}, 10")
    A(f"s_add_u32 s{sTmp}, s{sTmp}, {HF}")
    A(f"buffer_store_dwordx4 {v(P,4)}, v{vL16}, s[{sW}:{sW+3}], s{sTmp} offen{STF}")
    A(f"buffer_store_dwordx4 {v(P+4,4)}, v{vL16}, s[{sW}:{sW+3}], s{sTmp} offen offset:1024{STF}")
    A("s_waitcnt vmcnt(0)")
    A(f"v_mov_b32 v{t0}, {CNTB}")
    A(f"v_mov_b32 v{t1}, 1")
    A("s_mov_b64 exec, 1")
    A(f"ds_add_rtn_u32 v{t1}, v{t0}, v{t1}")
    A("s_waitcnt lgkmcnt(0)")
    A("s_mov_b64 exec, -1")
    A(f"v_readfirstlane_b32 s{sTmp}, v{t1}")
    A("s_nop 3")
    A(f"s_cmp_lg_u32 s{sTmp}, 3")
    Lnp = A.newlabel(name + "_nopubO")
    if not A.trace: A(f"s_cbranch_scc1 {Lnp}")
    publish(c, t0, FLAGO, 1)
    A.label(Lnp)
    if c.stamps:
        A("s_waitcnt vmcnt(0)")
        ST.stamp(); ST.stamp(real=True)
        ST.flush(2, sWV, c.sWSp, t0, t1, sTmp, 60)
    A("s_endpgm")
    if A.trace: return
    A.label(Lfb)
    A(f"s_mov_b32 s{sExact}, 1")
    fb_sync(c, sTmp, sTmp2, t0, t1, 1)
    A(f"s_mov_b64 exec, s[{sHiMask}:{sHiMask+1}]")
    for qt in range(4):
        A(f"v_mov_b32 v{Qf(qt,1)+2}, 0")
        A(f"v_mov_b32 v{Qf(qt,1)+3}, 0")
    A(f"s_mov_b64 exec, -1")
    for qt in range(4): A(f"v_mov_b32 v{vM+qt}, 0xff800000")
    A(f"s_mov_b32 s{sKoff}, s{sKbeg}")
    A(f"s_mov_b32 s{sCnt}, 16")
    Lf = name + "_fbloop"
    A.label(Lf)
    A(f"buffer_load_dwordx4 {v(Kf(0,0),4)}, v{vL16}, s[{sK}:{sK+3}], s{sKoff} offen{LDF}")
    A(f"buffer_load_dwordx4 {v(Kf(0,1),4)}, v{vL16}, s[{sK}:{sK+3}], s{sKoff} offen offset:1024{LDF}")
    A(f"s_add_u32 s{sKoff}, s{sKoff}, 2048")
    A("s_waitcnt vmcnt(0)")
    for qt in range(4):
        for m in qk(Sf(0), 0, qt): A(m)
        A.nop(12)
        maxtree(Sf(0), vT[5])
        A(f"v_max_f32 v{vM+qt}, v{vM+qt}, v{vT[5]}")
        A.nop(8)
    A(f"s_sub_u32 s{sCnt}, s{sCnt}, 1")
    A(f"s_cmp_lg_u32 s{sCnt}, 0")
    A(f"s_cbranch_scc1 {Lf}")
    for qt in range(4): crosshalf_max(vM+qt)
    A(f"s_lshl_b32 s{sTmp2}, s{sWV}, 10")
    A(f"v_lshrrev_b32 v{t0}, 2, v{vL16}")
    A(f"v_add_u32 v{t1}, s{sTmp2}, v{t0}")
    for qt in range(4):
        A(f"ds_write_b32 v{t1}, v{vM+qt} offset:{qt*256}")
    A("s_waitcnt lgkmcnt(0)")
    fb_sync(c, sTmp, sTmp2, vT[2], vT[3], 2)
    A(f"v_lshrrev_b32 v{t0}, 2, v{vL16}")
    for qt in range(4):
        for ww in range(4):
            A(f"ds_read_b32 v{E+ww}, v{t0} offset:{ww*1024+qt*256}")
        A("s_waitcnt lgkmcnt(0)")
        A(f"v_max3_f32 v{vM+qt}, v{E}, v{E+1}, v{E+2}")
        A(f"v_max_f32 v{vM+qt}, v{vM+qt}, v{E+3}")
    fb_sync(c, sTmp, sTmp2, vT[2], vT[3], 3)
    for qt in range(4): set_m(qt, vM+qt)
    A(f"s_branch {Lmain}")

def fb_sync(c, sTmp, sTmp2, va, vb, k):
    A = c.A
    L = A.newlabel(c.name + "_fbs"); L2 = A.newlabel(c.name + "_fbsx")
    A("s_waitcnt lgkmcnt(0)")
    A(f"v_mov_b32 v{va}, {CNTB+4*k}")
    A(f"v_mov_b32 v{vb}, 1")
    A("s_mov_b64 exec, 1")
    A(f"ds_add_u32 v{va}, v{vb}")
    A("s_mov_b64 exec, -1")
    A(f"s_mov_b32 s{sTmp2}, {1<<20}")
    A.label(L)
    A(f"ds_read_b32 v{vb}, v{va}")
    A("s_waitcnt lgkmcnt(0)")
    A(f"v_readfirstlane_b32 s{sTmp}, v{vb}")
    A(f"s_sub_u32 s{sTmp2}, s{sTmp2}, 1")
    A(f"s_cmp_eq_u32 s{sTmp2}, 0")
    A(f"s_cbranch_scc1 {L2}")
    A(f"s_cmp_lt_u32 s{sTmp}, 4")
    A(f"s_cbranch_scc1 {L}")
    A.label(L2)

def gemm(c, part="all"):
    A, ST, name, STF, LDF = c.A, c.ST, c.name, c.STF, c.LDF
    NS = 4
    vLane, vL16 = 1, 2
    vWd, vA0, vA1, vX = 3, 4, 5, 6
    vT = [7, 8, 11, 12]
    XR = 188
    ACC = 20
    AF = 84
    BF = 116
    sWS, sWD, sWO, sX, sOUT = 4, 8, 12, 16, 60
    sTB, sCB, sB, sWoff, sTmp, sTmp2, sLds, sW4 = 24, 29, 31, 32, 33, 34, 38, 39
    l = vLane
    t0, t1, t2, t3 = vT
    class Mute:
        trace = A.trace
        def __call__(self, t): pass
        def label(self, t): pass
        def newlabel(self, b): return b
        def nop(self, n): pass
    realA = A
    if part == "main": A = Mute()
    Lskip = name + "_gskip"
    A(f"s_load_dwordx2 s[52:53], s[0:1], 56")
    A(f"s_sub_u32 s{sW4}, s{c.sWV}, 4")
    A(f"s_and_b32 s{sTmp}, s2, 7")
    A(f"s_lshr_b32 s{sTmp2}, s2, 3")
    A(f"s_and_b32 s{sTB}, s{sTmp2}, 3")
    A(f"s_lshl_b32 s{sTmp}, s{sTmp}, 2")
    A(f"s_add_u32 s{sTB}, s{sTB}, s{sTmp}")
    A(f"s_lshr_b32 s{sCB}, s{sTmp2}, 2")
    A(f"v_lshrrev_b32 v{t0}, 3, v{l}")
    A(f"v_and_b32 v{t1}, 7, v{l}")
    A(f"v_bfe_u32 v{t2}, v{l}, 4, 1")
    A(f"v_lshlrev_b32 v{t2}, 2, v{t2}")
    A(f"v_xor_b32 v{t1}, v{t1}, v{t2}")
    A(f"v_lshlrev_b32 v{t1}, 4, v{t1}")
    A(f"v_mul_u32_u24 v{t0}, 896, v{t0}")
    A(f"s_lshl_b32 s{sTmp}, s{sCB}, 7")
    A(f"v_add3_u32 v{vWd}, v{t0}, v{t1}, s{sTmp}")
    A(f"v_lshrrev_b32 v{t0}, 5, v{l}")
    A(f"v_bfe_u32 v{t1}, v{l}, 2, 2")
    A(f"v_lshl_add_u32 v{t0}, v{t0}, 2, v{t1}")
    A(f"v_lshlrev_b32 v{t0}, 7, v{t0}")
    A(f"v_bfe_u32 v{t2}, v{l}, 4, 1")
    A(f"v_bfe_u32 v{t3}, v{l}, 1, 1")
    A(f"v_lshl_add_u32 v{t2}, v{t2}, 1, v{t3}")
    A(f"v_bfe_u32 v{t3}, v{l}, 3, 1")
    A(f"v_lshlrev_b32 v{t3}, 2, v{t3}")
    A(f"v_xor_b32 v{t2}, v{t2}, v{t3}")
    A(f"v_lshl_add_u32 v{t0}, v{t2}, 4, v{t0}")
    A(f"v_and_b32 v{t3}, 1, v{l}")
    A(f"v_lshl_add_u32 v{t0}, v{t3}, 3, v{t0}")
    A(f"s_mul_i32 s{sLds}, s{sW4}, {NS*4096}")
    A(f"s_add_u32 s{sLds}, s{sLds}, {G_LDS}")
    A(f"v_add_u32 v{vA0}, s{sLds}, v{t0}")
    A(f"v_xor_b32 v{vA1}, 64, v{vA0}")
    A(f"s_and_b32 s{sTmp2}, s{sW4}, 1")
    A(f"s_lshl_b32 s{sTmp2}, s{sTmp2}, 5")
    A(f"s_lshl_b32 s{sTmp}, s{sTB}, 6")
    A(f"s_add_u32 s{sTmp2}, s{sTmp2}, s{sTmp}")
    A(f"v_and_b32 v{t0}, 31, v{l}")
    A(f"v_add_u32 v{t0}, s{sTmp2}, v{t0}")
    A(f"v_mul_u32_u24 v{t0}, 896, v{t0}")
    A(f"s_lshr_b32 s{sTmp}, s{sW4}, 1")
    A(f"s_lshl_b32 s{sTmp}, s{sTmp}, 6")
    A(f"s_lshl_b32 s{sTmp2}, s{sCB}, 7")
    A(f"s_add_u32 s{sTmp}, s{sTmp}, s{sTmp2}")
    A(f"v_lshrrev_b32 v{t1}, 5, v{l}")
    A(f"v_lshlrev_b32 v{t1}, 4, v{t1}")
    A(f"v_add3_u32 v{vX}, v{t0}, v{t1}, s{sTmp}")
    A("s_waitcnt lgkmcnt(0)")
    make_srd(A, sWS, c.sWSp, 0x2000000)
    make_srd(A, sWD, 64, SZ_WD)
    make_srd(A, sWO, 66, SZ_WO)
    make_srd(A, sX, 56, SZ_X)
    make_srd(A, sOUT, 52, SZ_OUT)
    NCH = 14
    def set_chunk(first_chunk_sgpr):
        A(f"s_mul_i32 s{sB}, s{sTB}, {2*144}")
        A(f"s_lshl_b32 s{sTmp}, s{first_chunk_sgpr}, 1")
        A(f"s_add_u32 s{sB}, s{sB}, s{sTmp}")
        A(f"s_lshl_b32 s{sB}, s{sB}, 10")
        A(f"s_add_u32 s{sB}, s{sB}, {HF}")
    sCB0, sCA0, sWoffA, sBA = 48, 49, 50, 51
    A(f"s_lshl_b32 s{sCB0}, s{sW4}, 3")
    A(f"s_add_u32 s{sCB0}, s{sCB0}, 24")
    A(f"s_mul_i32 s{sCA0}, s{sW4}, 6")
    set_chunk(sCA0); A(f"s_mov_b32 s{sBA}, s{sB}")
    A(f"s_mul_i32 s{sWoffA}, s{sCA0}, {32*896}")
    set_chunk(sCB0)
    A(f"s_mul_i32 s{sWoff}, s{sCB0}, {32*896}")

    def issue_w(sl, srd, rowstep_tail):
        for rg in range(4):
            A(f"s_add_u32 m0, s{sLds}, {sl*4096 + rg*1024}")
            if rg: A(f"s_add_u32 s{sWoff}, s{sWoff}, {8*896}")
            else: A("s_nop 0")
            A(f"buffer_load_dwordx4 v{vWd}, s[{srd}:{srd+3}], s{sWoff} offen lds")
        A(f"s_add_u32 s{sWoff}, s{sWoff}, {rowstep_tail}")
    def issue_b(sl):
        A(f"s_add_u32 s{sTmp}, s{sB}, {144*1024}")
        for kb in range(2):
            A(f"buffer_load_dwordx4 {v(BF+16*sl+4*kb,4)}, v{vL16}, s[{sWS}:{sWS+3}], s{sB} offen offset:{kb*1024}{LDF}")
        for kb in range(2):
            A(f"buffer_load_dwordx4 {v(BF+16*sl+8+4*kb,4)}, v{vL16}, s[{sWS}:{sWS+3}], s{sTmp} offen offset:{kb*1024}{LDF}")
        A(f"s_add_u32 s{sB}, s{sB}, 2048")
    def trreads(sl, bb):
        for ct in range(2):
            for kb in range(2):
                for q in range(2):
                    A(f"ds_read_b64_tr_b16 {v(AF+16*bb+8*ct+4*kb+2*q,2)}, v{vA0 if ct==0 else vA1} offset:{sl*4096+(2*kb+q)*1024}")
    def mfmas(sl, bb, first):
        for kb in range(2):
            for ct in range(2):
                for tl in range(2):
                    acc = ACC + 16*(ct*2+tl)
                    cc = "0" if (first and kb == 0) else v(acc,16)
                    A(f"v_mfma_f32_32x32x16_bf16 {v(acc,16)}, {v(AF+16*bb+8*ct+4*kb,4)}, {v(BF+16*sl+8*tl+4*kb,4)}, {cc}")
    for i in range(3): issue_w(i, sWD, 8*896)
    A(f"buffer_load_dwordx4 {v(XR,4)}, v{vX}, s[{sX}:{sX+3}], 0 offen")
    A(f"buffer_load_dwordx4 {v(XR+4,4)}, v{vX}, s[{sX}:{sX+3}], 0 offen offset:32")
    A = realA
    if part == "pre": return
    if not A.trace:
        A("s_cmp_ge_u32 s2, 224")
        A(f"s_cbranch_scc1 {Lskip}")
    vFB, vFA, vFV = 184, 185, 186
    A(f"s_lshr_b32 s{sTmp}, s{sTB}, 1")
    A(f"v_mov_b32 v{t0}, s{sTmp}")
    A(f"v_and_b32 v{t1}, 1, v{l}")
    A(f"v_lshlrev_b32 v{t1}, 1, v{t1}")
    A(f"s_lshl_b32 s{sTmp}, s{sW4}, 2")
    A(f"v_add_u32 v{t1}, s{sTmp}, v{t1}")
    wg_of(A, t0, t1, t2, t3)
    A(f"v_lshlrev_b32 v{t2}, 6, v{t2}")
    A(f"v_add_u32 v{vFA}, {FLAGA}, v{t2}")
    A(f"v_add_u32 v{t1}, 1, v{t1}")
    wg_of(A, t0, t1, t2, t3)
    A(f"v_lshlrev_b32 v{t2}, 6, v{t2}")
    A(f"v_add_u32 v{vFB}, {FLAGA}, v{t2}")
    c.poll(vFB, t0, sWS, 0, 0xffffffff, 0xffffffff)
    ST.stamp()
    fifo = []
    def need(tagname):
        i_ = len(fifo) - 1 - fifo[::-1].index(tagname)
        return len(fifo) - 1 - i_
    for i in range(3):
        issue_b(i); fifo.extend([f"c{i}"]*4)
    if "wdpf" in c.exp:
        A(f"s_and_b32 s{sTmp}, s{sTB}, 3")
        A(f"s_lshl_b32 s{sTmp}, s{sTmp}, 2")
        A(f"s_add_u32 s{sTmp}, s{sTmp}, s{sW4}")
        A(f"s_mul_i32 s{sTmp}, s{sTmp}, {112*896}")
        for q in range(14):
            A(f"buffer_load_dwordx4 {v(200+4*q,4)}, v{vWd}, s[{sWD}:{sWD+3}], s{sTmp} offen")
            if q < 13: A(f"s_add_u32 s{sTmp}, s{sTmp}, {8*896}")
        fifo.extend(["pf"]*14)
    if not A.trace and c.gemm_go > 0:
        Lw = A.newlabel(name + "_gow"); Lw2 = A.newlabel(name + "_gowx")
        A(f"v_mov_b32 v{t0}, {CNTB+4*6}")
        A(f"s_mov_b32 s{sTmp2}, {1<<20}")
        A.label(Lw)
        A(f"ds_read_b32 v{t1}, v{t0}")
        A("s_waitcnt lgkmcnt(0)")
        A(f"v_readfirstlane_b32 s{sTmp}, v{t1}")
        A(f"s_sub_u32 s{sTmp2}, s{sTmp2}, 1")
        A(f"s_cmp_eq_u32 s{sTmp2}, 0")
        A(f"s_cbranch_scc1 {Lw2}")
        A(f"s_cmp_lg_u32 s{sTmp}, 0")
        A(f"s_cbranch_scc1 {Lw2}")
        A("s_sleep 2")
        A(f"s_branch {Lw}")
        A.label(Lw2)
    A(f"s_waitcnt vmcnt({need('c0')})")
    trreads(0, 0)
    for i in range(NCH):
        sl = i % NS; bb = i & 1
        last = i == NCH-1
        if not last:
            A(f"s_waitcnt vmcnt({need(f'c{i+1}')})")
            trreads((i+1) % NS, bb ^ 1)
            n_ = i+3
            if n_ < NCH:
                if n_ == 8:
                    A(f"s_waitcnt vmcnt({need('fl')})")
                    A(f"v_cmp_ne_u32 vcc, s{c.sTAG}, v{vFV}")
                    if not A.trace:
                        Lok = A.newlabel(name + "_hok")
                        A("s_nop 3")
                        A("s_cmp_eq_u64 vcc, 0")
                        A(f"s_cbranch_scc1 {Lok}")
                        c.poll(vFA, vFV, sWS, 0, 0xffffffff, 0xffffffff)
                        A.label(Lok)
                    A(f"s_mov_b32 s{sB}, s{sBA}")
                    A(f"s_mov_b32 s{sWoff}, s{sWoffA}")
                issue_w(n_ % NS, sWD, 8*896); issue_b(n_ % NS); fifo.extend([f"c{n_}"]*8)
                if n_ == 5:
                    A(f"buffer_load_dword v{vFV}, v{vFA}, s[{sWS}:{sWS+3}], 0 offen sc0 sc1"); fifo.append("fl")
            A("s_waitcnt lgkmcnt(8)")
        else:
            A("s_waitcnt lgkmcnt(0)")
        mfmas(sl, bb, i == 0)
    ST.stamp()
    A(f"s_mul_i32 s{sWoff}, s{sW4}, {4*28*896}")
    for k in range(4): issue_w(k, sWO, (28-24)*896)
    A(f"s_mul_i32 s{sB}, s{sTB}, {2*144}")
    A(f"s_lshl_b32 s{sTmp}, s{sW4}, 3")
    A(f"s_add_u32 s{sB}, s{sB}, s{sTmp}")
    A(f"s_add_u32 s{sB}, s{sB}, 112")
    A(f"s_lshl_b32 s{sB}, s{sB}, 10")
    A(f"s_add_u32 s{sB}, s{sB}, {HF}")
    A(f"v_and_b32 v{t0}, 15, v{l}")
    A(f"v_lshrrev_b32 v{t1}, 1, v{t0}")
    A(f"v_and_b32 v{t0}, 1, v{t0}")
    A(f"s_lshr_b32 s{sTmp}, s{sTB}, 1")
    A(f"s_lshl_b32 s{sTmp}, s{sTmp}, 1")
    A(f"v_add_u32 v{t0}, s{sTmp}, v{t0}")
    A(f"v_lshl_add_u32 v{t2}, v{t0}, 3, v{t1}")
    A(f"v_lshlrev_b32 v{t2}, 6, v{t2}")
    A(f"v_add_u32 v{t2}, {FLAGO}, v{t2}")
    c.poll(t2, t0, sWS, 1, 0xffffffff, 0xffffffff)
    ST.stamp()
    for k in range(4): issue_b(k)
    for k in range(4):
        A(f"s_waitcnt vmcnt({12-4*k})")
        trreads(k, k & 1)
        A("s_waitcnt lgkmcnt(0)")
        mfmas(k, k & 1, False)
    A.nop(12)
    A(f"v_add_u32 v{t0}, s{sLds}, v{vL16}")
    for tile in range(4):
        for a_ in range(4):
            A(f"ds_write_b128 v{t0}, {v(ACC+16*tile+4*a_,4)} offset:{(tile*4+a_)*1024}")
    A("s_waitcnt lgkmcnt(0)")
    A("s_barrier")
    R = AF
    A(f"s_lshl_b32 s{sTmp}, s{sW4}, 12")
    A(f"s_add_u32 s{sTmp}, s{sTmp}, {G_LDS}")
    A(f"v_add_u32 v{t0}, s{sTmp}, v{vL16}")
    for ww in range(4):
        for a_ in range(4):
            A(f"ds_read_b128 {v(R+16*ww+4*a_,4)}, v{t0} offset:{ww*16384+a_*1024}")
    A("s_waitcnt lgkmcnt(0)")
    for r in range(16):
        A(f"v_add_f32 v{R+r}, v{R+r}, v{R+16+r}")
        A(f"v_add_f32 v{R+32+r}, v{R+32+r}, v{R+48+r}")
    for r in range(16):
        A(f"v_add_f32 v{R+r}, v{R+r}, v{R+32+r}")
    A("s_nop 1")
    for x in range(2):
        for r in range(4):
            A(f"v_permlane32_swap_b32 v{R+8*x+r}, v{R+8*x+4+r}")
    for x in range(2):
        for r in range(4):
            A(f"v_lshlrev_b32 v{t0}, 16, v{XR+4*x+r}")
            A(f"v_and_b32 v{t1}, 0xffff0000, v{XR+4*x+r}")
            A(f"v_add_f32 v{R+8*x+2*r}, v{R+8*x+2*r}, v{t0}")
            A(f"v_add_f32 v{R+8*x+2*r+1}, v{R+8*x+2*r+1}, v{t1}")
        for r in range(4):
            A(f"v_cvt_pk_bf16_f32 v{XR+4*x+r}, v{R+8*x+2*r}, v{R+8*x+2*r+1}")
    A(f"buffer_store_dwordx4 {v(XR,4)}, v{vX}, s[{sOUT}:{sOUT+3}], 0 offen")
    A(f"buffer_store_dwordx4 {v(XR+4,4)}, v{vX}, s[{sOUT}:{sOUT+3}], 0 offen offset:32")
    if c.stamps:
        A("s_waitcnt vmcnt(0)")
        ST.stamp(real=True)
        ST.flush(2, c.sWV, c.sWSp, t0, t1, sTmp, 40)
    A("s_endpgm")
    if not A.trace:
        A.label(Lskip)
        A("s_endpgm")
```
